```python
import torch

def _softmax(x, axis=-1):
    return torch.softmax(x, dim=axis)
def _gelu(x):
    return torch.nn.functional.gelu(x, approximate="tanh")
def _silu(x):
    return torch.nn.functional.silu(x)
def _sigmoid(x):
    return torch.sigmoid(x)
def _layernorm(x, axis=-1, eps=1e-5):
    m = x.mean(dim=axis, keepdim=True)
    v = x.var(dim=axis, keepdim=True, unbiased=False)
    return (x - m) / torch.sqrt(v + eps)
def _scatter_add(tgt, idx, src, axis=0):
    return tgt.clone().index_add_(axis, idx, src)
def _segment_sum(src, seg, n):
    out = torch.zeros((n,) + src.shape[1:], dtype=src.dtype)
    return out.index_add_(0, seg, src)
def _pad(x, pw):
    flat = tuple(v for pair in reversed(pw) for v in pair)
    return torch.nn.functional.pad(x, flat)

kernel_name = 'sequential_preLN__mha_block__geglu_ffn__prompt'

def setup_inputs():

    _w = (lambda a: (lambda t: t.to(torch.bfloat16) if t.is_floating_point() else t)(torch.as_tensor(a)))
    def _A_setup():
        B, S, D, H = 1, 2048, 640, 32
        return {
            "x": _w((lambda *s: torch.randn(*s, dtype=torch.bfloat16) * 0.05)(B, S, D)),
            "wqkv": _w((lambda *s: torch.randn(*s, dtype=torch.bfloat16) * 0.05)(D, 3 * D)),
            "wo": _w((lambda *s: torch.randn(*s, dtype=torch.bfloat16) * 0.05)(D, D)),
        }
    _A_in = _A_setup()

    def _B_setup():
        B, S, D, F = 1, 2048, 640, 1536
        return {
            "x": _w((lambda *s: torch.randn(*s, dtype=torch.bfloat16) * 0.05)(B, S, D)),
            "w_gate": _w((lambda *s: torch.randn(*s, dtype=torch.bfloat16) * 0.05)(D, F)),
            "w_up": _w((lambda *s: torch.randn(*s, dtype=torch.bfloat16) * 0.05)(D, F)),
            "w_down": _w((lambda *s: torch.randn(*s, dtype=torch.bfloat16) * 0.05)(F, D)),
        }
    _B_in = _B_setup()

    return {
        "A_x": _A_in["x"],
        "A_wqkv": _A_in["wqkv"],
        "A_wo": _A_in["wo"],
        "B_x": _B_in["x"],
        "B_w_gate": _B_in["w_gate"],
        "B_w_up": _B_in["w_up"],
        "B_w_down": _B_in["w_down"],
    }

def reference(A_x, A_wqkv, A_wo, B_x, B_w_gate, B_w_up, B_w_down):
    def _A_ref(x, wqkv, wo):
        B, S, D = x.shape
        H = 32
        Dh = D // H
        qkv = (lambda x, *d: x.permute(*d))((x @ wqkv).reshape(B, S, 3, H, Dh), 2, 0, 3, 1, 4)
        q, k, v = qkv[0], qkv[1], qkv[2]
        scores = torch.einsum("bhqd,bhkd->bhqk", q, k) * (Dh ** -0.5)
        p = _softmax(scores, axis=-1)
        o = torch.einsum("bhqk,bhkd->bhqd", p, v)
        return (lambda x, *d: x.permute(*d))(o, 0, 2, 1, 3).reshape(B, S, D) @ wo

    def _B_ref(x, w_gate, w_up, w_down):
        return (_gelu(x @ w_gate) * (x @ w_up)) @ w_down

    x = A_x
    h = x + _A_ref(_layernorm(x, axis=-1), A_wqkv, A_wo)
    h2 = h + _B_ref(_layernorm(h, axis=-1), B_w_gate, B_w_up, B_w_down)
    return h2
```

```python
import re

def _regs(tok):
    tok = tok.strip()
    neg = tok.startswith('-')
    t = tok.lstrip('-').strip('|')
    m = re.fullmatch(r'([vsa])(\d+)', t)
    if m: return [(m.group(1), int(m.group(2)))]
    m = re.fullmatch(r'([vsa])\[(\d+):(\d+)\]', t)
    if m: return [(m.group(1), i) for i in range(int(m.group(2)), int(m.group(3)) + 1)]
    if t == 'vcc': return [('s', 106), ('s', 107)]
    if t == 'exec': return [('s', 126), ('s', 127)]
    if t == 'm0': return [('s', 124)]
    if t == 'scc': return []
    return []

TRANS = ('v_exp_f32', 'v_log_f32', 'v_rcp_f32', 'v_rsq_f32', 'v_sqrt_f32', 'v_sin_f32', 'v_cos_f32', 'v_exp_f16', 'v_rcp_iflag_f32')

class Ins:
    __slots__ = ('text', 'op', 'dst', 'src', 'kind', 'passes', 'srcC', 'nops', 'raw', 'store_data', 'wide')
    def __init__(self, text):
        self.text = text
        self.raw = False
        t = text.split(';')[0].strip()
        self.dst = []; self.src = []; self.kind = 'other'; self.passes = 0; self.srcC = []; self.nops = 1
        self.store_data = []; self.wide = False
        if not t or t.endswith(':') or t.startswith('.'):
            self.op = ''; self.kind = 'label' if t.endswith(':') else 'none'; self.nops = 0
            return
        parts = t.split(None, 1)
        self.op = op = parts[0]
        rest = parts[1] if len(parts) > 1 else ''
        ops = [o.strip() for o in re.split(r',(?![^\[]*\])', rest)] if rest else []
        clean = []
        for o in ops:
            clean.append(o.split()[0] if o.split() else o)
        mods = rest
        if op == 's_nop':
            self.kind = 'nop'; self.nops = int(ops[0], 0) + 1; return
        if op.startswith('v_mfma'):
            self.kind = 'mfma'
            self.passes = 8 if '32x32' in op else 4
            if '_2b' in op or 'x4_2b' in op: self.passes = 16
            self.dst = _regs(clean[0]); self.src = _regs(clean[1]) + _regs(clean[2]); self.srcC = _regs(clean[3])
            return
        if op.startswith('v_'):
            self.kind = 'trans' if op.replace('_e32', '').replace('_e64', '') in TRANS else 'valu'
            if op.startswith('v_cmp'):
                self.dst = _regs(clean[0]); self.src = sum((_regs(c) for c in clean[1:]), [])
                if op.startswith('v_cmpx'): self.dst += _regs('exec')
            elif op.startswith('v_permlane') and 'swap' in op:
                self.kind = 'permlane'
                self.dst = _regs(clean[0]) + _regs(clean[1]); self.src = list(self.dst)
            elif op.startswith('v_readfirstlane') or op.startswith('v_readlane'):
                self.kind = 'readlane'
                self.dst = _regs(clean[0]); self.src = sum((_regs(c) for c in clean[1:]), [])
            elif op.startswith(('v_add_co', 'v_sub_co', 'v_addc_co', 'v_subb_co', 'v_subrev_co')):
                self.dst = _regs(clean[0]) + _regs(clean[1]); self.src = sum((_regs(c) for c in clean[2:]), [])
            else:
                self.dst = _regs(clean[0]); self.src = sum((_regs(c) for c in clean[1:]), [])
                if op.startswith(('v_fmac', 'v_dot2c', 'v_mac', 'v_pk_fmac')): self.src += self.dst
                if op.startswith('v_cndmask') and len(clean) == 3: self.src += _regs('vcc')
                if 'dpp' in op or 'row_' in mods or 'quad_perm' in mods: self.kind = 'dpp'
            return
        if op.startswith('ds_'):
            self.kind = 'ds'
            if op.startswith(('ds_read', 'ds_bpermute', 'ds_permute', 'ds_swizzle')):
                self.dst = _regs(clean[0]); self.src = sum((_regs(c) for c in clean[1:]), [])
            else:
                self.src = sum((_regs(c) for c in clean), [])
            return
        if op.startswith(('buffer_', 'global_', 'flat_')):
            self.kind = 'vmem'
            if op.startswith(('buffer_wbl2', 'buffer_inv')): return
            is_lds = re.search(r'\blds\b', mods) is not None
            if 'load' in op and not is_lds:
                self.dst = _regs(clean[0]); self.src = sum((_regs(c) for c in clean[1:]), [])
            elif 'load' in op and is_lds:
                self.kind = 'dma'
                self.src = sum((_regs(c) for c in clean), []) + _regs('m0')
            elif 'store' in op:
                self.src = sum((_regs(c) for c in clean), [])
                d = clean[0] if op.startswith('buffer_') else clean[1]
                self.store_data = _regs(d)
                self.wide = ('x3' in op or 'x4' in op)
            else:
                self.src = sum((_regs(c) for c in clean), [])
                if 'sc0' in mods:
                    d = clean[0] if op.startswith('buffer_') else clean[0]
                    self.dst = _regs(d)
            return
        if op.startswith('s_'):
            self.kind = 'salu'
            if op.startswith(('s_cmp', 's_bitcmp')):
                self.src = sum((_regs(c) for c in clean), [])
            elif op.startswith(('s_waitcnt', 's_barrier', 's_branch', 's_cbranch', 's_endpgm', 's_setprio', 's_sleep')):
                if op.startswith(('s_branch', 's_cbranch')): self.kind = 'branch'
            elif op.startswith('s_load') or op.startswith('s_mem') or op.startswith('s_buffer_load'):
                self.kind = 'smem'; self.dst = _regs(clean[0]); self.src = sum((_regs(c) for c in clean[1:]), [])
            elif 'saveexec' in op:
                self.dst = _regs(clean[0]) + _regs('exec'); self.src = sum((_regs(c) for c in clean[1:]), []) + _regs('exec')
            else:
                self.dst = _regs(clean[0]); self.src = sum((_regs(c) for c in clean[1:]), [])
            return

VALU_KINDS = ('valu', 'trans', 'permlane', 'readlane', 'dpp')

def need_states(p, c):
    n = 0
    pd = set(p.dst); cs = set(c.src); cd = set(c.dst); cC = set(c.srcC)
    if p.kind in VALU_KINDS:
        vd = {r for r in pd if r[0] in 'va'}
        sd = {r for r in pd if r[0] == 's'}
        if c.kind == 'mfma' and vd & (cs | cC): n = max(n, 2)
        if p.kind == 'trans' and c.kind in VALU_KINDS + ('mfma', 'ds', 'vmem', 'dma') and c.kind != 'trans' and vd & cs: n = max(n, 1)
        if p.kind == 'trans' and c.kind == 'trans' and vd & cs: n = max(n, 1)
        if c.kind == 'permlane' and vd & cs: n = max(n, 2)
        if c.kind == 'dpp' and vd & cs: n = max(n, 2)
        if c.kind == 'readlane' and vd & cs: n = max(n, 1)
        if sd:
            if c.kind in ('vmem', 'dma') and sd & cs: n = max(n, 5)
            if c.kind in VALU_KINDS and sd & cs: n = max(n, 4 if c.kind == 'readlane' else 2)
            if c.kind in ('salu', 'branch', 'smem') and sd & cs: n = max(n, 4)
            if ('s', 126) in sd and c.kind == 'mfma': n = max(n, 4)
            if ('s', 126) in sd and c.kind in ('dpp',): n = max(n, 5)
    if p.kind == 'mfma':
        P = p.passes
        big = {2: 5, 4: 8, 8: 12, 16: 20}[P]
        ovc = {2: 4, 4: 6, 8: 10, 16: 18}[P]
        if c.kind == 'mfma':
            if pd & cs: n = max(n, big)
            if pd & cC:
                if not (set(c.srcC) == pd and c.passes == p.passes): n = max(n, ovc)
            if pd & cd and not (cd == pd and cC == pd):
                n = max(n, 0)
        elif c.kind in VALU_KINDS + ('ds', 'vmem', 'dma'):
            if pd & (cs | cd): n = max(n, big)
        if c.kind in VALU_KINDS and set(p.srcC) & cd:
            n = max(n, {2: 1, 4: 3, 8: 7, 16: 15}[P])
    if p.kind == 'vmem' and p.wide and p.store_data:
        if set(p.store_data) & cd:
            n = max(n, 2)
    if p.kind == 'salu' and ('s', 124) in pd and c.kind == 'dma': n = max(n, 1)
    return n

class Asm:
    def __init__(self):
        self.ins = []
    def __call__(self, text):
        for l in text.strip('\n').split('\n'):
            l = l.strip()
            if l: self.ins.append(Ins(l))
    def label(self, name): self.ins.append(Ins(name + ':'))
    def raw(self, text):
        i = Ins(';'); i.text = text; i.raw = True; i.kind = 'none'; i.nops = 0; self.ins.append(i)
    def comment(self, c): self.raw('    ; ' + c)
    def fix_hazards(self, window=24):
        out = []
        for c in self.ins:
            if c.kind in ('none', 'label') :
                out.append(c); continue
            dist = 0; need = 0
            for p in reversed(out):
                if p.kind in ('none', 'label'): continue
                req = need_states(p, c)
                if req > dist: need = max(need, req - dist)
                dist += p.nops
                if dist >= window: break
            tail = []
            while need > 0 and out and out[-1].kind in ('label', 'none'):
                tail.append(out.pop())
            while need > 0:
                k = min(need, 16)
                out.append(Ins(f's_nop {k-1}')); need -= k
            out.extend(reversed(tail))
            out.append(c)
        self.ins = out
    def text(self):
        o = []
        for i in self.ins:
            if i.raw: o.append(i.text)
            elif i.kind == 'label': o.append(i.text)
            else: o.append('    ' + i.text)
        return '\n'.join(o) + '\n'
    def check_loop(self, start_label, end_branch_text):
        idx0 = next(i for i, x in enumerate(self.ins) if x.kind == 'label' and x.text == start_label + ':')
        idx1 = next(i for i, x in enumerate(self.ins) if x.text == end_branch_text and i > idx0)
        body = [x for x in self.ins[idx0:idx1 + 1] if x.kind not in ('none', 'label')]
        seq = body + body
        n = len(body)
        bad = []
        for ci in range(n, min(2 * n, n + 30)):
            c = seq[ci]; dist = 0
            for pi in range(ci - 1, max(-1, ci - 30), -1):
                p = seq[pi]
                req = need_states(p, c)
                if req > dist: bad.append((p.text, c.text, req, dist))
                dist += p.nops
                if dist >= 24: break
        return bad
```

```python
from asmlib import Asm
S=2048; D=640; H=32; DH=20; F=1536
WS_Q = 0
WS_K = WS_Q + 32*81920
WS_V = WS_K + 32*81920
WS_O = WS_V + 32*81920
WS_H = WS_O + S*D*2
WS_ACT = WS_H + S*D*2
WS_ST = WS_ACT + S*F*2
WS_RS1 = WS_ST + S*16*2*4
WS_MR1 = WS_RS1 + S*4
WS_CS1 = WS_MR1 + S*4
WS_CS2 = WS_CS1 + 2048*4
WS_END = WS_CS2 + 5*3072*4
import struct
def fbits(x): return '0x%08x' % struct.unpack('<I', struct.pack('<f', x))[0]
class Prof:
    def __init__(self, a, on, L): self.a = a; self.on = on; self.L = L
    def stamp(self, i):
        if self.on: self.a(f's_memtime s[{64+2*i}:{65+2*i}]')
    def finish(self, wave_sel=0):
        if not self.on: return
        a = self.a
        self.stamp(6)
        a('s_waitcnt vmcnt(0)')
        self.stamp(7)
        a(f'''
        s_load_dwordx2 s[4:5], s[0:1], 64
        s_waitcnt lgkmcnt(0)
        s_add_u32 s4, s4, 4096
        s_addc_u32 s5, s5, 0
        v_cmp_eq_u32 vcc, {wave_sel*64}, v0
        s_and_saveexec_b64 s[10:11], vcc
        s_lshl_b32 s3, s2, 5
        v_mov_b32 v2, s3
        ''')
        for i in range(8):
            a(f's_sub_u32 s3, s{64+2*i}, s64')
            a(f'v_mov_b32 v3, s3')
            a(f'global_store_dword v2, v3, s[4:5] offset:{4*i}')
def rt_begin(a, on):
    if on: a('s_memrealtime s[84:85]')
def rt_end(a, on):
    if not on: return
    a(f'''
    s_waitcnt vmcnt(0)
    s_memrealtime s[86:87]
    s_load_dwordx2 s[88:89], s[0:1], 64
    s_mov_b64 exec, -1
    v_lshrrev_b32 v2, 6, v0
    v_and_b32 v3, 63, v0
    s_lshl_b32 s90, s2, 6
    v_lshl_add_u32 v2, v2, 3, s90
    v_add_u32 v2, 16384, v2
    v_cmp_eq_u32 vcc, 0, v3
    s_and_saveexec_b64 s[92:93], vcc
    s_waitcnt lgkmcnt(0)
    v_mov_b32 v4, s84
    v_mov_b32 v5, s86
    global_store_dwordx2 v2, v[4:5], s[88:89]
    ''')
def pk(a, op, d, x, y, z=None, mods=''):
    if z is None: a(f'{op} {vr(d,2)}, {x}, {y} {mods}')
    else: a(f'{op} {vr(d,2)}, {x}, {y}, {z} {mods}')

KA = dict(x=0, wqkv=8, wo=16, bx=24, wg=32, wu=40, wd=48, out=56, dbg=64, ws=72)

def vr(base, n): return f'v[{base}:{base+n-1}]'

class Vm:
    def __init__(self, a): self.a = a; self.q = []
    def issue(self, tag): self.q.append(tag)
    def need(self, tag):
        idx = [i for i, t in enumerate(self.q) if t == tag]
        if not idx: return None
        n = len(self.q) - 1 - idx[-1]
        self.q = self.q[idx[-1] + 1:]
        return n
    def wait(self, tag):
        n = self.need(tag)
        if n is not None: self.a(f's_waitcnt vmcnt({n})')
    def wait_all(self):
        self.q = []; self.a('s_waitcnt vmcnt(0)')

def srd(a, sreg, base_lo, base_hi, off, size):
    if off:
        a(f's_add_u32 s{sreg}, s{base_lo}, {off}')
        a(f's_addc_u32 s{sreg+1}, s{base_hi}, 0')
    else:
        a(f's_mov_b32 s{sreg}, s{base_lo}')
        a(f's_mov_b32 s{sreg+1}, s{base_hi}')
    a(f's_mov_b32 s{sreg+2}, {size}')
    a(f's_mov_b32 s{sreg+3}, 0x00020000')

def kernel_wrap(name, body, vgpr, sgpr=102, accum=None):
    if accum is None: accum = (vgpr + 3) // 4 * 4
    return f'''.text
.globl {name}
.p2align 8
.type {name},@function
{name}:
{body}
.section .rodata,"a"
.p2align 6
.amdhsa_kernel {name}
  .amdhsa_next_free_vgpr {vgpr}
  .amdhsa_next_free_sgpr {sgpr}
  .amdhsa_accum_offset {accum}
  .amdhsa_group_segment_fixed_size 0
  .amdhsa_kernarg_size 80
  .amdhsa_user_sgpr_count 2
  .amdhsa_user_sgpr_kernarg_segment_ptr 1
  .amdhsa_system_sgpr_workgroup_id_x 1
.end_amdhsa_kernel
'''
```

```python
from common import *
import math
QSCALE = math.log2(math.e) / math.sqrt(20.0)

def colsum_block(a, L, tag, sSRD, voff, nload, rowstride, vdata, vacc, s_tmp, s_mask):
    for batch in range(0, nload, 20):
        n = min(20, nload - batch)
        for i in range(n):
            a(f's_mov_b32 s{s_tmp}, {(batch+i)*rowstride}')
            a(f'buffer_load_dwordx4 {vr(vdata+4*i,4)}, v{voff}, s[{sSRD}:{sSRD+3}], s{s_tmp} offen')
        for i in range(n):
            a(f's_waitcnt vmcnt({n-1-i})')
            for j in range(4):
                d = vdata + 4*i + j
                a(f'v_lshlrev_b32 v10, 16, v{d}')
                a(f'v_and_b32 v11, s{s_mask}, v{d}')
                pk(a, 'v_pk_add_f32', vacc+2*j, vr(vacc+2*j,2), vr(10,2))

def gen_k1(name='k1_kernel', prof=False, exp=''):
    a = Asm()
    L = name
    P = Prof(a, prof, L)
    NST = 10
    sX, sW, sO = 12, 16, 20
    s_mt, s_nt, s_w, s_wm, s_wn = 24, 25, 26, 27, 28
    s_m0A, s_m0B, s_offA, s_offB = 29, 30, 31, 32
    s_scale = 52
    s_t0, s_t1 = 53, 54
    s_it = 55; s_rx = 56
    sS = 60
    vlane = 1
    voffA = [16, 17, 18, 19]; voffB = [20, 21, 22, 23]
    aA = [[132 + t*2 + i for i in range(2)] for t in range(4)]
    aB = [28, 29]
    XF = lambda b, i: 36 + b * 8 + i * 4
    WF = lambda b, j: 52 + b * 8 + j * 4
    ACC = lambda p, q: 68 + (p * 2 + q) * 16
    EA = 140; EL = 148; TB = 160
    STAT = 131072
    P.stamp(0)
    rt_begin(a, prof)
    a(f'''
    s_cmp_ge_u32 s2, 256
    s_cbranch_scc1 {L}_end
    s_load_dwordx4 s[4:7], s[0:1], 0
    s_load_dwordx4 s[8:11], s[0:1], 64
    v_and_b32 v{vlane}, 63, v0
    v_lshrrev_b32 v2, 6, v0
    v_readfirstlane_b32 s{s_w}, v2
    s_cmp_lt_u32 s2, 16
    s_cbranch_scc1 {L}_stat
    s_sub_u32 s34, s2, 16
    s_and_b32 s35, s34, 7            ; x8
    s_lshr_b32 s36, s34, 3           ; i 0..29
    s_lshr_b32 s37, s35, 2
    s_mul_i32 s37, s37, 30
    s_add_u32 s37, s37, s36          ; t 0..59
    s_lshr_b32 s{s_nt}, s37, 2
    s_and_b32 s{s_mt}, s37, 3
    s_and_b32 s35, s35, 3
    s_lshl_b32 s35, s35, 2
    s_add_u32 s{s_mt}, s{s_mt}, s35
    s_cmp_lt_u32 s{s_w}, 4
    s_cbranch_scc1 {L}_comp
    ''')
    a(f'''
    s_sub_u32 s{s_w}, s{s_w}, 4
    v_lshrrev_b32 v3, 4, v{vlane}    ; lane>>4
    v_and_b32 v4, 7, v{vlane}
    v_xor_b32 v5, v4, v3
    v_xor_b32 v6, 4, v5
    v_lshrrev_b32 v2, 3, v{vlane}
    s_lshl_b32 s{s_m0A}, s{s_w}, 12
    s_add_u32 s{s_m0B}, s{s_m0A}, 65536
    s_lshl_b32 s34, s{s_mt}, 7
    s_lshl_b32 s35, s{s_w}, 5
    s_add_u32 s34, s34, s35
    v_add_u32 v2, s34, v2            ; row (i=0)
    s_movk_i32 s35, 1280
    v_mul_lo_u32 v2, v2, s35         ; row*1280
    v_lshl_add_u32 v5, v5, 4, v2
    v_lshl_add_u32 v6, v6, 4, v2
    ''')
    for i in range(4):
        a(f'v_add_u32 v{voffA[i]}, {i*(10240-1024)}, v{5 if i%2==0 else 6}')
    a(f'''
    s_lshl_b32 s34, s{s_w}, 4
    v_add_u32 v2, s34, v3            ; krow (i=0)
    s_movk_i32 s35, 3840
    v_mul_lo_u32 v2, v2, s35
    v_and_b32 v4, 15, v{vlane}
    v_lshlrev_b32 v5, 2, v3
    v_xor_b32 v4, v4, v5
    v_lshl_add_u32 v2, v4, 4, v2
    s_lshl_b32 s34, s{s_nt}, 8
    v_add_u32 v2, s34, v2
    ''')
    for i in range(4):
        a(f'v_add_u32 v{voffB[i]}, {i*(4*3840-1024)}, v2')
    a('s_waitcnt lgkmcnt(0)')
    srd(a, sX, 4, 5, 0, S*D*2)
    srd(a, sW, 6, 7, 0, D*1920*2)
    vm = Vm(a)
    gray = [0, 1, 3, 2]
    def dma_stage(stage):
        slot = gray[stage % 4]
        a(f's_add_u32 m0, s{s_m0A}, {slot*16384}')
        a(f's_movk_i32 s{s_offA}, {stage*128}')
        for i in range(4):
            a(f'buffer_load_dwordx4 v{voffA[i]}, s[{sX}:{sX+3}], s{s_offA} offen offset:{i*1024} lds'); vm.issue(stage)
        a(f's_add_u32 m0, s{s_m0B}, {slot*16384}')
        a(f's_mov_b32 s{s_offB}, {stage*64*3840}')
        for i in range(4):
            a(f'buffer_load_dwordx4 v{voffB[i]}, s[{sW}:{sW+3}], s{s_offB} offen offset:{i*1024} lds'); vm.issue(stage)
    dma_stage(0); dma_stage(1)
    srd(a, sS, 10, 11, WS_RS1, WS_END - WS_RS1)
    sG = 44; vcol = 21+40
    a(f'''
    s_load_dwordx4 s[36:39], s[0:1], 32
    s_sub_u32 s34, s2, 16                  ; j 0..239
    s_mul_i32 s35, s34, 1366
    s_lshr_b32 s35, s35, 16                ; part = j / 48
    s_mul_i32 s40, s35, 48
    s_sub_u32 s40, s34, s40                ; slab = j % 48
    s_cmp_ge_u32 s40, 24
    s_cselect_b32 s41, 24, 0
    s_sub_u32 s41, s40, s41                ; slab % 24
    s_lshl_b32 s41, s41, 7                 ; *128 bytes
    v_and_b32 v8, 7, v{vlane}
    v_lshrrev_b32 v9, 3, v{vlane}          ; rg 0..7
    s_lshl_b32 s42, s35, 7
    v_add_u32 v9, s42, v9
    v_mul_u32_u24 v9, 3072, v9
    v_lshl_add_u32 v9, v8, 4, v9
    v_add_u32 v{vcol}, s41, v9
    s_mul_i32 s57, s35, {3072*4}
    s_lshl_b32 s41, s40, 8
    s_add_u32 s57, s57, s41
    s_add_u32 s57, s57, {16384+8192}
    s_waitcnt lgkmcnt(0)
    s_cmp_ge_u32 s40, 24
    s_cselect_b32 s36, s38, s36
    s_cselect_b32 s37, s39, s37
    ''')
    srd(a, sG, 36, 37, 0, D*F*2)
    a(f'''
    v_lshlrev_b32 v8, 3, v{vlane}
    s_lshl_b32 s34, s{s_mt}, 9
    v_add_u32 v9, s34, v8
    s_lshl_b32 s34, s{s_nt}, 9
    v_add_u32 v10, s34, v8
    v_add_u32 v11, {STAT}, v8
    v_mov_b32 v12, 0
    ''')
    for st in range(NST):
        vm.wait(st)
        if st == 9:
            a(f'''
            s_cmp_lg_u32 s{s_w}, 0
            s_cbranch_scc1 {L}_ld_last
            s_waitcnt vmcnt(0)
            {L}_poll:
            v_readfirstlane_b32 s34, v13
            s_cmp_ge_u32 s34, 16
            s_cbranch_scc1 {L}_pollok
            s_sleep 2
            global_load_dword v13, v12, s[8:9] sc1
            s_waitcnt vmcnt(0)
            s_branch {L}_poll
            {L}_pollok:
            buffer_load_dwordx2 v[14:15], v9, s[{sS}:{sS+3}], 0 offen sc1
            buffer_load_dwordx2 v[16:17], v9, s[{sS}:{sS+3}], 0 offen offset:0 sc1
            ''')
            a.ins.pop()
            a(f'''
            s_movk_i32 s34, 8192
            buffer_load_dwordx2 v[16:17], v9, s[{sS}:{sS+3}], s34 offen sc1
            s_movk_i32 s35, 16384
            buffer_load_dwordx2 v[18:19], v10, s[{sS}:{sS+3}], s35 offen sc1
            s_barrier
            s_waitcnt vmcnt(0)
            ds_write_b64 v11, v[14:15]
            ds_write_b64 v11, v[16:17] offset:512
            ds_write_b64 v11, v[18:19] offset:1024
            s_waitcnt lgkmcnt(0)
            s_barrier
            s_branch {L}_end
            {L}_ld_last:
            ''')
        a('s_barrier')
        if st == 0: dma_stage(2); dma_stage(3)
        elif st + 3 < NST: dma_stage(st + 3)
        if st == 6:
            a(f'global_load_dword v13, v12, s[8:9] sc1'); vm.issue('flag')
    a(f'''
    s_cmp_lg_u32 s{s_w}, 1
    s_cbranch_scc1 {L}_end
    s_barrier
    s_mov_b32 s40, 0xffff0000
    ''')
    for i in range(16):
        a(f's_mov_b32 s34, {i*8*3072}')
        a(f'buffer_load_dwordx4 {vr(64+4*i,4)}, v{vcol}, s[{sG}:{sG+3}], s34 offen')
    for j in range(8): a(f'v_mov_b32 v{24+j}, 0')
    for i in range(16):
        a(f's_waitcnt vmcnt({15-i})')
        for j in range(4):
            d = 64 + 4*i + j
            a(f'v_lshlrev_b32 v10, 16, v{d}')
            a(f'v_and_b32 v11, s40, v{d}')
            pk(a, 'v_pk_add_f32', 24+2*j, vr(24+2*j,2), vr(10,2))
    for j in range(8):
        r = 24 + j
        a(f'v_add_f32_dpp v{r}, v{r}, v{r} row_ror:8 row_mask:0xf bank_mask:0xf')
    for j in range(8): a(f'v_mov_b32 v{40+j}, v{24+j}')
    for j in range(8): a(f'v_permlane16_swap_b32 v{40+j}, v{24+j}')
    for j in range(8): a(f'v_add_f32 v{24+j}, v{24+j}, v{40+j}')
    for j in range(8): a(f'v_mov_b32 v{40+j}, v{24+j}')
    for j in range(8): a(f'v_permlane32_swap_b32 v{40+j}, v{24+j}')
    for j in range(8): a(f'v_add_f32 v{24+j}, v{24+j}, v{40+j}')
    a(f'''
    v_cmp_gt_u32 vcc, 8, v{vlane}
    s_and_saveexec_b64 s[42:43], vcc
    v_lshlrev_b32 v10, 5, v{vlane}          ; c*32 bytes
    buffer_store_dwordx4 {vr(24,4)}, v10, s[{sS}:{sS+3}], s57 offen
    buffer_store_dwordx4 {vr(28,4)}, v10, s[{sS}:{sS+3}], s57 offen offset:16
    ''')
    rt_end(a, prof); a('s_endpgm')
    a.label(f'{L}_stat')
    s_mask = 40; s_tmp = 41
    a(f'''
    s_mov_b32 s{s_mask}, 0xffff0000
    v_and_b32 v2, 15, v{vlane}          ; lane16
    v_lshrrev_b32 v3, 4, v{vlane}
    s_lshl_b32 s34, s2, 7
    s_lshl_b32 s35, s{s_w}, 4
    s_add_u32 s34, s34, s35
    v_add_u32 v4, s34, v3               ; row (g=0)
    s_movk_i32 s35, 1280
    v_mul_lo_u32 v5, v4, s35
    v_lshl_add_u32 v5, v2, 4, v5
    s_waitcnt lgkmcnt(0)
    ''')
    srd(a, sX, 4, 5, 0, S*D*2)
    srd(a, sW, 6, 7, 0, D*1920*2)
    srd(a, sS, 10, 11, WS_RS1, WS_END - WS_RS1)
    VD = 32
    for g in range(4):
        a(f's_movk_i32 s{s_tmp}, {g*5120}')
        for i in range(5):
            a(f'buffer_load_dwordx4 {vr(VD+(g*5+i)*4,4)}, v5, s[{sX}:{sX+3}], s{s_tmp} offen offset:{i*256}')
    for g in range(4):
        a(f'''
        v_mov_b32 v12, 0
        v_mov_b32 v13, 0
        v_mov_b32 v14, 0
        v_mov_b32 v15, 0
        s_waitcnt vmcnt({15-5*g})
        ''')
        for i in range(20):
            d = VD + g*20 + i
            a(f'v_lshlrev_b32 v10, 16, v{d}')
            a(f'v_and_b32 v11, s{s_mask}, v{d}')
            pk(a, 'v_pk_add_f32', 12, vr(12,2), vr(10,2))
            pk(a, 'v_pk_fma_f32', 14, vr(10,2), vr(10,2), vr(14,2))
        a(f'''
        v_add_f32 v12, v12, v13
        v_add_f32 v14, v14, v15
        ''')
        for sh in (8, 4, 2, 1):
            a(f'v_add_f32_dpp v12, v12, v12 row_ror:{sh} row_mask:0xf bank_mask:0xf')
            a(f'v_add_f32_dpp v14, v14, v14 row_ror:{sh} row_mask:0xf bank_mask:0xf')
        a(f'''
        v_mul_f32 v12, {fbits(1.0/640)}, v12
        v_mul_f32 v14, {fbits(1.0/640)}, v14
        v_fma_f32 v14, -v12, v12, v14
        v_max_f32 v14, 0, v14
        v_add_f32 v14, {fbits(1e-5)}, v14
        v_rsq_f32 v{16+2*g}, v14
        v_mul_f32 v{17+2*g}, v12, v{16+2*g}
        ''')
    a(f'''
    v_lshlrev_b32 v6, 2, v4             ; row*4
    v_cmp_eq_u32 vcc, 0, v2
    s_and_saveexec_b64 s[42:43], vcc
    s_movk_i32 s{s_tmp}, 8192
    ''')
    for g in range(4):
        a(f'buffer_store_dword v{16+2*g}, v6, s[{sS}:{sS+3}], 0 offen offset:{16*g} sc1')
        a(f'buffer_store_dword v{17+2*g}, v6, s[{sS}:{sS+3}], s{s_tmp} offen offset:{16*g} sc1')
    a(f'''
    s_mov_b64 exec, s[42:43]
    ; part 2: colsum wqkv cols [120p, +120)
    v_and_b32 v2, 15, v0                ; c
    v_lshrrev_b32 v3, 4, v0             ; kg 0..31
    v_mul_u32_u24 v5, {20*3840}, v3
    v_lshl_add_u32 v5, v2, 4, v5
    s_mul_i32 s34, s2, 240
    v_add_u32 v5, s34, v5
    v_cmp_gt_u32 vcc, 15, v2
    v_mov_b32 v7, 0x7f000000
    v_cndmask_b32 v5, v7, v5, vcc
    ''')
    VA = 16
    for j in range(8): a(f'v_mov_b32 v{VA+j}, 0')
    a('s_waitcnt vmcnt(0)')
    colsum_block(a, L, 'c1', sW, 5, 20, 3840, VD, VA, s_tmp, s_mask)
    a(f'''
    v_lshlrev_b32 v6, 9, v3             ; kg*512
    v_lshl_add_u32 v6, v2, 5, v6        ; + c*32
    ds_write_b128 v6, {vr(VA,4)}
    ds_write_b128 v6, {vr(VA+4,4)} offset:16
    s_waitcnt lgkmcnt(0)
    s_barrier
    v_lshlrev_b32 v6, 2, v0
    v_cmp_gt_u32 vcc, 120, v0
    s_and_saveexec_b64 s[42:43], vcc
    s_cbranch_execz {L}_st2
    ''')
    for k in range(32): a(f'ds_read_b32 v{VD+k}, v6 offset:{k*512}')
    a('s_waitcnt lgkmcnt(0)')
    for k in range(1, 32): a(f'v_add_f32 v{VD}, v{VD}, v{VD+k}')
    a(f'''
    s_mul_i32 s34, s2, 480
    s_add_u32 s34, s34, 16384
    buffer_store_dword v{VD}, v6, s[{sS}:{sS+3}], s34 offen sc1
    {L}_st2:
    s_mov_b64 exec, s[42:43]
    s_waitcnt vmcnt(0)
    s_barrier
    v_cmp_eq_u32 vcc, 0, v0
    s_and_saveexec_b64 s[42:43], vcc
    s_cbranch_execz {L}_st3
    v_mov_b32 v6, 0
    v_mov_b32 v7, 1
    global_atomic_add v6, v7, s[8:9] sc1
    {L}_st3:
    s_mov_b64 exec, s[42:43]
    s_branch {L}_end
    ''')
    a.label(f'{L}_comp')
    a(f'''
    s_lshr_b32 s{s_wm}, s{s_w}, 1
    s_and_b32 s{s_wn}, s{s_w}, 1
    v_and_b32 v2, 31, v{vlane}       ; r
    v_lshrrev_b32 v3, 5, v{vlane}    ; hh
    s_lshl_b32 s36, s{s_wm}, 6       ; m base
    s_lshl_b32 s38, s{s_wn}, 6       ; n base
    v_add_u32 v4, s36, v2
    v_lshlrev_b32 v8, 2, v4
    v_add_u32 v{EL}, {STAT}, v8
    v_lshlrev_b32 v4, 7, v4
    v_bfe_u32 v5, v2, 1, 3           ; (r>>1)&7
    v_add_u32 v10, s38, v2
    v_lshlrev_b32 v12, 2, v10
    v_add_u32 v{EL+1}, {STAT+1024}, v12
    ''')
    aA1 = [132 + t for t in range(4)]
    for t in range(4):
        a(f'''
        v_add_u32 v6, {2*t}, v3
        v_xor_b32 v6, v6, v5
        v_lshl_add_u32 v{aA1[t]}, v6, 4, v4
        ''')
    a(f'''
    v_bfe_u32 v13, v{vlane}, 2, 2    ; rr
    v_and_b32 v4, 3, v{vlane}        ; cq
    v_bfe_u32 v5, v{vlane}, 4, 1     ; nhalf
    v_lshl_add_u32 v6, v3, 3, v13    ; 8hh+rr
    v_lshlrev_b32 v6, 8, v6
    v_add_u32 v6, 65536, v6
    v_and_b32 v7, 1, v4
    v_lshl_add_u32 v6, v7, 3, v6
    v_lshrrev_b32 v7, 1, v4
    v_lshl_add_u32 v7, v5, 1, v7
    v_lshl_add_u32 v6, v7, 4, v6
    s_lshl_b32 s34, s{s_wn}, 1
    s_add_u32 s35, s34, 1
    v_xor_b32 v7, s34, v13
    v_lshl_add_u32 v{aB[0]}, v7, 6, v6
    v_xor_b32 v7, s35, v13
    v_lshl_add_u32 v{aB[1]}, v7, 6, v6
    s_lshl_b32 s42, s{s_mt}, 2
    s_lshl_b32 s43, s{s_wm}, 1
    s_add_u32 s42, s42, s43
    s_mul_i32 s{s_t0}, s42, 1280
    s_add_u32 s{s_t1}, s{s_t0}, 1280
    s_mov_b32 s47, 81920
    s_cmp_lt_u32 s{s_nt}, 5
    s_cselect_b32 s{s_scale}, {fbits(QSCALE)}, 1.0
    s_mov_b32 s{s_it}, 0
    s_movk_i32 s{s_rx}, 0x4000
    s_waitcnt lgkmcnt(0)
    ''')
    srd(a, sO, 10, 11, WS_Q, 3*32*81920)
    for r in range(64): a(f'v_mov_b32 v{68+r}, 0')
    a(f'''
    s_cmp_ge_u32 s{s_nt}, 10
    s_cbranch_scc1 {L}_v
    ''')
    def rd(t, b):
        o = []
        for i in range(2):
            o.append(f'ds_read_b128 {vr(XF(b,i),4)}, v{aA1[t]} offset:{i*4096}')
            for e in range(2):
                o.append(f'ds_read_b64_tr_b16 {vr(WF(b,i)+2*e,2)}, v{aB[i]} offset:{t*4096 + e*1024}')
        return o
    def mainloop(V):
        P.stamp(3)
        a('s_barrier')
        P.stamp(4)
        for o in rd(0, 0): a(o)
        a.label(f'{L}_{V}_loop')
        for t in range(4):
            b = t & 1
            def MF(p, q):
                if V == 'qk': return f'v_mfma_f32_32x32x16_bf16 {vr(ACC(p,q),16)}, {vr(WF(b,p),4)}, {vr(XF(b,q),4)}, {vr(ACC(p,q),16)}'
                return f'v_mfma_f32_32x32x16_bf16 {vr(ACC(q,p),16)}, {vr(XF(b,q),4)}, {vr(WF(b,p),4)}, {vr(ACC(q,p),16)}'
            if t == 3:
                a('s_waitcnt lgkmcnt(0)')
                a('s_barrier')
                a(MF(0, 0))
                for tt in range(4): a(f'v_xor_b32 v{aA1[tt]}, s{s_rx}, v{aA1[tt]}')
                for j in range(2): a(f'v_xor_b32 v{aB[j]}, s{s_rx}, v{aB[j]}')
                a(f's_xor_b32 s{s_rx}, s{s_rx}, 0xc000')
                R = rd(0, b ^ 1)
                for o in R[:3]: a(o)
                a(MF(0, 1))
                for o in R[3:]: a(o)
                a(MF(1, 0)); a(MF(1, 1))
            else:
                R = rd(t + 1, b ^ 1)
                a('s_waitcnt lgkmcnt(3)')
                a(MF(0, 0))
                for o in R[:3]: a(o)
                a('s_waitcnt lgkmcnt(5)')
                a(MF(0, 1))
                for o in R[3:]: a(o)
                a('s_waitcnt lgkmcnt(6)')
                a(MF(1, 0)); a(MF(1, 1))
        a(f'''
        s_add_u32 s{s_it}, s{s_it}, 1
        s_cmp_lt_u32 s{s_it}, 10
        s_cbranch_scc1 {L}_{V}_loop
        ''')
        P.stamp(5)
    a(f'''
    v_lshlrev_b32 v6, 4, v3           ; 4hh*4
    s_lshl_b32 s34, s38, 2
    v_add_u32 v7, s34, v6
    v_add_u32 v{EL+2}, {STAT+1024}, v7
    s_cmp_ge_u32 s{s_nt}, 5
    s_cselect_b32 s40, 1, 0
    s_mul_i32 s41, s40, 5
    s_sub_u32 s41, s{s_nt}, s41      ; nt5
    s_mul_i32 s40, s40, {32*81920}
    s_add_u32 s{s_t0}, s{s_t0}, s40
    s_add_u32 s{s_t1}, s{s_t1}, s40
    s_lshl_b32 s44, s41, 5
    s_lshr_b32 s45, s38, 2
    s_add_u32 s45, s45, s44
    s_add_u32 s46, s45, 8
    v_lshlrev_b32 v9, 4, v2          ; r*16
    v_lshlrev_b32 v10, 3, v2         ; r*8
    v_add_u32 v10, 1024, v10
    ''')
    for p in range(2):
        for a4 in range(4):
            a(f'''
            v_add_u32 v11, s{45+p}, v3
            v_add_u32 v11, {2*a4}, v11           ; qd
            v_mul_u32_u24 v12, 205, v11
            v_lshrrev_b32 v12, 10, v12           ; head
            v_mul_u32_u24 v13, 5, v12
            v_sub_u32 v13, v11, v13              ; dq
            v_lshrrev_b32 v14, 1, v13
            v_lshl_add_u32 v14, v14, 9, v9       ; (dq>>1)*512 + r*16
            v_and_b32 v15, 1, v13
            v_lshl_add_u32 v14, v15, 3, v14
            v_cmp_eq_u32 vcc, 4, v13
            v_cndmask_b32 v14, v14, v10, vcc
            v_mul_lo_u32 v12, v12, s47
            v_add_u32 v{EA+p*4+a4}, v14, v12
            ''')
    mainloop('qk')
    RS = [36, 38]; MR = [40, 42]
    CSB = TB
    a(f'''
    ds_read_b32 v{RS[0]}, v{EL}
    ds_read_b32 v{MR[0]}, v{EL} offset:512
    ds_read_b32 v{RS[1]}, v{EL} offset:128
    ds_read_b32 v{MR[1]}, v{EL} offset:640
    ''')
    for p in range(2):
        for a4 in range(4):
            a(f'ds_read_b128 {vr(CSB+(p*4+a4)*4,4)}, v{EL+2} offset:{p*128 + a4*32}')
    a('s_waitcnt lgkmcnt(8)')
    for q in range(2):
        a(f'v_mul_f32 v{RS[q]}, s{s_scale}, v{RS[q]}')
        a(f'v_mul_f32 v{MR[q]}, s{s_scale}, v{MR[q]}')
    a('s_waitcnt lgkmcnt(0)')
    for p in range(2):
        for a4 in range(4):
            for q in range(2):
                A0 = ACC(p, q) + a4*4
                C0 = CSB + (p*4+a4)*4
                for h2 in range(2):
                    pk(a, 'v_pk_mul_f32', A0+2*h2, vr(A0+2*h2,2), vr(RS[q],2), mods='op_sel_hi:[1,0]')
                    pk(a, 'v_pk_fma_f32', A0+2*h2, vr(MR[q],2), vr(C0+2*h2,2), vr(A0+2*h2,2), mods='op_sel_hi:[0,1,1] neg_lo:[1,0,0] neg_hi:[1,0,0]')
                a(f'v_cvt_pk_bf16_f32 v{A0}, v{A0}, v{A0+1}')
                a(f'v_cvt_pk_bf16_f32 v{A0+1}, v{A0+2}, v{A0+3}')
                a(f'buffer_store_dwordx2 {vr(A0,2)}, v{EA+p*4+a4}, s[{sO}:{sO+3}], s{[s_t0,s_t1][q]} offen')
    a(f's_branch {L}_fin')
    a.label(f'{L}_v')
    a(f'''
    s_lshl_b32 s36, s36, 2
    v_lshlrev_b32 v8, 4, v3
    v_add_u32 v9, s36, v8
    v_add_u32 v{EL+2}, {STAT}, v9
    s_sub_u32 s40, s{s_nt}, 10
    s_lshl_b32 s40, s40, 7
    s_add_u32 s{s_t0}, s{s_t0}, {2*32*81920}
    s_add_u32 s{s_t1}, s{s_t1}, {2*32*81920}
    v_mul_u32_u24 v8, 320, v3       ; hh*320
    ''')
    for q in range(2):
        a(f'''
        v_add_u32 v12, s40, v10
        v_add_u32 v12, {32*q}, v12
        v_mul_u32_u24 v13, 3277, v12
        v_lshrrev_b32 v13, 16, v13          ; head
        v_mul_u32_u24 v14, 20, v13
        v_sub_u32 v14, v12, v14             ; d
        v_mul_lo_u32 v13, v13, s47
        v_lshl_add_u32 v14, v14, 4, v8
        v_add_u32 v{EA+q}, v14, v13
        ''')
    mainloop('v')
    RSB = TB; MRB = TB + 32
    CSV = [36, 38]
    a(f'''
    ds_read_b32 v{CSV[0]}, v{EL+1}
    ds_read_b32 v{CSV[1]}, v{EL+1} offset:128
    ''')
    for p in range(2):
        for a4 in range(4):
            a(f'ds_read_b128 {vr(RSB+(p*4+a4)*4,4)}, v{EL+2} offset:{p*128 + a4*32}')
            a(f'ds_read_b128 {vr(MRB+(p*4+a4)*4,4)}, v{EL+2} offset:{512 + p*128 + a4*32}')
    a('s_waitcnt lgkmcnt(0)')
    for p in range(2):
        for q in range(2):
            for mf in range(2):
                A0 = ACC(p, q) + mf*8
                for h2 in range(4):
                    a4 = mf*2 + h2//2
                    o = (p*4+a4)*4 + (h2 & 1)*2
                    r = A0 + h2*2
                    pk(a, 'v_pk_mul_f32', r, vr(r,2), vr(RSB+o,2))
                    pk(a, 'v_pk_fma_f32', r, vr(MRB+o,2), vr(CSV[q],2), vr(r,2), mods='op_sel_hi:[1,0,1] neg_lo:[1,0,0] neg_hi:[1,0,0]')
                for k in range(4):
                    a(f'v_cvt_pk_bf16_f32 v{A0+k}, v{A0+2*k}, v{A0+2*k+1}')
                a(f'buffer_store_dwordx4 {vr(A0,4)}, v{EA+q}, s[{sO}:{sO+3}], s{[s_t0,s_t1][p]} offen offset:{mf*640}')
    a.label(f'{L}_fin')
    P.finish()
    a.label(f'{L}_end')
    rt_end(a, prof); a('s_endpgm')
    a.fix_hazards()
    for V in ('qk', 'v'):
        bad = a.check_loop(f'{L}_{V}_loop', f's_cbranch_scc1 {L}_{V}_loop')
        assert not bad, bad
    return kernel_wrap(name, a.text(), vgpr=224, sgpr=100), 131072 + 2048
if __name__ == '__main__':
    import sys
    t, l = gen_k1(prof=('prof' in sys.argv), exp=' '.join(sys.argv[1:]))
    open('full.s', 'w').write('.amdgcn_target "amdgcn-amd-amdhsa--gfx950"\n' + t)
```

```python
from common import *

def gen_k2(name='k2_kernel', prof=False, exp=''):
    a = Asm(); L = name
    P = Prof(a, prof, L)
    NW = 8
    sQ, sO = 12, 16
    s_w, s_head, s_qb = 24, 25, 26
    s_it = 27; s_vmask = 28
    s_t = 30
    vlane = 1
    aK1, aK2, aV = 2, 3, 4
    EA = [5, 6, 7]
    Q1 = 8; Q2 = 12
    K1 = [16, 24]; K2 = [20, 28]
    V1 = [32, 40]; V2 = [36, 44]
    S_ = [48, 64]; PP = [80, 88]; O_ = 96
    T = 112
    P.stamp(0); rt_begin(a, prof)
    a(f'''
    s_cmp_ge_u32 s2, 256
    s_cbranch_scc1 {L}_end
    s_load_dwordx2 s[8:9], s[0:1], 72
    v_and_b32 v{vlane}, 63, v0
    v_lshrrev_b32 v2, 6, v0
    v_readfirstlane_b32 s{s_w}, v2
    s_and_b32 s34, s2, 7
    s_lshl_b32 s34, s34, 2
    s_bfe_u32 s35, s2, 0x20003          ; (s2>>3)&3
    s_add_u32 s{s_head}, s34, s35
    s_lshr_b32 s{s_qb}, s2, 5
    s_mul_i32 s36, s{s_head}, 81920
    s_waitcnt lgkmcnt(0)
    ''')
    srd(a, sQ, 8, 9, WS_Q, 3*32*81920)
    a(f'''
    s_cmp_lt_u32 s{s_w}, {NW}
    s_cbranch_scc1 {L}_comp
    ''')
    vm = Vm(a)
    a(f'''
    v_lshlrev_b32 v2, 4, v{vlane}
    s_add_u32 s37, s36, {WS_K - WS_Q}
    s_add_u32 s38, s36, {WS_V - WS_Q}
    ''')
    def dma_chunk(c):
        for (sreg, lbase) in ((37, 0), (38, 81920)):
            for grp in range(3):
                n = 4 if grp < 2 else 2
                off = c*10240 + grp*4096
                a(f's_mov_b32 m0, {lbase + off}')
                a(f's_add_u32 s39, s{sreg}, {off}')
                for i in range(n):
                    a(f'buffer_load_dwordx4 v2, s[{sQ}:{sQ+3}], s39 offen offset:{i*1024} lds'); vm.issue(c)
    for c in range(3): dma_chunk(c)
    for c in range(8):
        vm.wait(c)
        a('s_barrier')
        if c + 3 < 8: dma_chunk(c + 3)
    rt_end(a, prof); a('s_endpgm')
    a.label(f'{L}_comp')
    srd(a, sO, 8, 9, WS_O, S*D*2)
    a(f'''
    s_lshl_b32 s34, s{s_qb}, 3
    s_add_u32 s34, s34, s{s_w}
    s_mul_i32 s35, s34, 1280
    s_add_u32 s35, s35, s36
    v_lshlrev_b32 v{aK1}, 4, v{vlane}
    v_and_b32 v{T}, 31, v{vlane}        ; r
    v_lshrrev_b32 v{T+1}, 5, v{vlane}   ; hh
    v_lshlrev_b32 v{aK2}, 3, v{T}
    v_add_u32 v{aK2}, 1024, v{aK2}
    buffer_load_dwordx4 {vr(Q1,4)}, v{aK1}, s[{sQ}:{sQ+3}], s35 offen
    buffer_load_dwordx2 {vr(Q2,2)}, v{aK2}, s[{sQ}:{sQ+3}], s35 offen
    v_mul_u32_u24 v{aV}, 320, v{T+1}
    v_lshl_add_u32 v{aV}, v{T}, 4, v{aV}
    v_add_u32 v{aV}, 81920, v{aV}
    v_cmp_gt_u32 s[{s_vmask}:{s_vmask+1}], 20, v{T}
    v_cmp_eq_u32 vcc, 20, v{T}
    v_mov_b32 v{T+2}, 0
    v_mov_b32 v{T+3}, 0x3f803f80
    v_cndmask_b32 v{T+4}, v{T+2}, v{T+3}, vcc
    v_cmp_eq_u32 vcc, 24, v{T}
    v_cndmask_b32 v{T+4}, v{T+4}, v{T+3}, vcc
    ''')
    for b in range(2):
        for r in range(4):
            a(f'v_mov_b32 v{V1[b]+r}, v{T+4}')
            a(f'v_mov_b32 v{V2[b]+r}, v{T+4}')
    a(f'''
    v_cmp_eq_u32 vcc, 0, v{T+1}
    v_mov_b32 v{T+3}, 0x00003f80
    v_cndmask_b32 v{T+5}, v{T+2}, v{T+3}, vcc
    ''')
    for b in range(2):
        a(f'v_mov_b32 v{K2[b]+2}, v{T+5}')
        a(f'v_mov_b32 v{K2[b]+3}, 0')
    a(f'v_mov_b32 v{Q2+2}, 0')
    a(f'v_mov_b32 v{Q2+3}, 0')
    for r in range(16): a(f'v_mov_b32 v{O_+r}, 0')
    for r in range(8): a(f'v_mov_b32 v{PP[1]+r}, 0')
    a(f'''
    s_mul_i32 s37, s{s_head}, 5
    v_and_b32 v{T+6}, 15, v{T}          ; q&15
    v_lshrrev_b32 v{T+7}, 4, v{T}       ; r>>4
    v_mul_u32_u24 v{T+7}, 20480, v{T+7}
    v_lshl_add_u32 v{T+7}, v{T+6}, 4, v{T+7}
    s_mul_i32 s{s_t}, s34, 40960
    ''')
    for G in range(3):
        a(f'''
        v_add_u32 v{T+8}, s37, v{T+1}
        v_add_u32 v{T+8}, {2*G}, v{T+8}          ; a
        v_lshrrev_b32 v{T+9}, 3, v{T+8}          ; kb
        v_lshl_add_u32 v{T+10}, v{T+9}, 10, v{T+7}
        v_and_b32 v{T+9}, 3, v{T+8}              ; g
        v_lshl_add_u32 v{T+10}, v{T+9}, 8, v{T+10}
        v_bfe_u32 v{T+9}, v{T+8}, 2, 1           ; e
        v_lshl_add_u32 v{EA[G]}, v{T+9}, 3, v{T+10}
        ''')
    a(f'''
    v_cmp_eq_u32 vcc, 1, v{T+1}
    v_mov_b32 v{T+8}, 0x7f000000
    v_cndmask_b32 v{EA[2]}, v{EA[2]}, v{T+8}, vcc
    s_waitcnt vmcnt(0)
    v_cndmask_b32 v{Q2}, v{Q2}, v{T+2}, vcc
    v_cndmask_b32 v{Q2+1}, v{Q2+1}, v{T+2}, vcc
    ''')
    P.stamp(3)
    a('s_barrier')
    P.stamp(4)
    def QK(sb, kb):
        return [f'v_mfma_f32_32x32x16_bf16 {vr(S_[sb],16)}, {vr(K1[kb],4)}, {vr(Q1,4)}, 0',
                f'v_mfma_f32_32x32x16_bf16 {vr(S_[sb],16)}, {vr(K2[kb],4)}, {vr(Q2,4)}, {vr(S_[sb],16)}']
    def PV(pb, vb):
        return [f'v_mfma_f32_32x32x16_bf16 {vr(O_,16)}, {vr(V1[vb],4)}, {vr(PP[pb],4)}, {vr(O_,16)}',
                f'v_mfma_f32_32x32x16_bf16 {vr(O_,16)}, {vr(V2[vb],4)}, {vr(PP[pb]+4,4)}, {vr(O_,16)}']
    def rdK(kb, off):
        return [f'ds_read_b128 {vr(K1[kb],4)}, v{aK1} offset:{off}', f'ds_read_b64 {vr(K2[kb],2)}, v{aK2} offset:{off}']
    def rdV(vb, off):
        return [f's_mov_b64 exec, s[{s_vmask}:{s_vmask+1}]',
                f'ds_read_b128 {vr(V1[vb],4)}, v{aV} offset:{off}', f'ds_read_b128 {vr(V2[vb],4)}, v{aV} offset:{off+640}',
                's_mov_b64 exec, -1']
    def setm(mreg):
        a(f'''
        v_sub_f32 v{mreg}, 0, v{mreg}
        v_cvt_pk_bf16_f32 v{mreg}, v{mreg}, 0
        v_and_b32 v{mreg}, 0xffff, v{mreg}
        v_cmp_gt_u32 vcc, 32, v{vlane}
        v_cndmask_b32 v{Q2+2}, 0, v{mreg}, vcc
        ''')
    def maxtree(sb, dst, init=False):
        s = S_[sb]
        if init:
            a(f'v_max3_f32 v{dst}, v{s}, v{s+1}, v{s+2}'); rest = list(range(3, 16))
        else: rest = list(range(0, 16))
        while rest:
            if len(rest) >= 2:
                a(f'v_max3_f32 v{dst}, v{dst}, v{s+rest[0]}, v{s+rest[1]}'); rest = rest[2:]
            else:
                a(f'v_max_f32 v{dst}, v{dst}, v{s+rest[0]}'); rest = rest[1:]
    def crosshalf_max(dst, tmp):
        a(f'''
        v_mov_b32 v{tmp}, v{dst}
        v_permlane32_swap_b32 v{tmp}, v{dst}
        v_max_f32 v{dst}, v{dst}, v{tmp}
        ''')
    for o in rdK(0, 0) + rdK(1, 1280): a(o)
    a('s_waitcnt lgkmcnt(2)')
    for o in QK(0, 0): a(o)
    maxtree(0, T, init=True)
    crosshalf_max(T, T+2)
    setm(T)
    for o in QK(0, 0): a(o)
    a(f's_mov_b32 s{s_it}, 0')
    def phase(sb, mf_pv, mf_qk, reads):
        s = S_[sb]; p = PP[sb]
        ev = []
        for i in range(16):
            ev.append(f'v_exp_f32 v{s+i}, v{s+i}')
            if i >= 3 and i % 2 == 1:
                k = (i - 3) // 2
                ev.append(f'v_cvt_pk_bf16_f32 v{p+k}, v{s+2*k}, v{s+2*k+1}')
        ev.append(f'v_cvt_pk_bf16_f32 v{p+7}, v{s+14}, v{s+15}')
        pos = {1: mf_qk[0], 7: mf_qk[1], 13: mf_pv[0], 19: mf_pv[1]}
        rpos = 3
        if 'nomfma' in exp: pos = {}
        if 'noqk' in exp: pos = {13: mf_pv[0], 19: mf_pv[1]}
        if 'nopv' in exp: pos = {1: mf_qk[0], 7: mf_qk[1]}
        if 'noreads' in exp: reads = []
        if 'noexec' in exp: reads = [r for r in reads if not r.startswith('s_mov_b64')]
        if 'nocvt' in exp: ev = [e for e in ev if 'cvt' not in e]
        if 'expsep' in exp: ev = [e.replace(f'v_exp_f32 v', 'v_exp_f32 v1', 1) if False else e for e in ev]
        for i, e in enumerate(ev):
            if i in pos: a(pos[i])
            if i == rpos:
                for o in reads: a(o)
            a(e)
    import re as _re
    mm = _re.search(r'unr(\d+)', exp); UNR = int(mm.group(1)) if mm else 1
    mm = _re.search(r'al(\d+)', exp); AL = int(mm.group(1)) if mm else 0
    mm = _re.search(r'pad(\d+)', exp); PAD = int(mm.group(1)) if mm else 0
    if AL: a(f'.p2align {AL}')
    for i in range(PAD): a('s_nop 0')
    a.label(f'{L}_loop')
    for j in range(UNR):
        if UNR == 1:
            a(f'''
            s_and_b32 s34, s{s_it}, 3
            s_cmp_lg_u32 s34, 3
            s_cbranch_scc1 {L}_nob
            s_barrier
            {L}_nob:
            ''')
        elif UNR == 2:
            if j == 1:
                a(f'''
                s_bitcmp1_b32 s{s_it}, 0
                s_cbranch_scc0 {L}_nob
                s_barrier
                {L}_nob:
                ''')
        elif UNR == 4:
            if j == 3: a('s_barrier')
        a('s_waitcnt lgkmcnt(0)')
        o = j * 2560
        phase(0, PV(1, 1), QK(1, 1), rdK(0, o+2560) + rdV(0, o))
        a('s_waitcnt lgkmcnt(0)')
        phase(1, PV(0, 0), QK(0, 0), rdK(1, o+3840) + rdV(1, o+1280))
    a(f'''
    v_add_u32 v{aK1}, {2560*UNR}, v{aK1}
    v_add_u32 v{aK2}, {2560*UNR}, v{aK2}
    v_add_u32 v{aV}, {2560*UNR}, v{aV}
    s_add_u32 s{s_it}, s{s_it}, 1
    s_cmp_lt_u32 s{s_it}, {32//UNR}
    s_cbranch_scc1 {L}_loop
    s_waitcnt lgkmcnt(0)
    ''')
    for o in PV(1, 1): a(o)
    P.stamp(5)
    a.label(f'{L}_epi')
    a(f'''
    v_cmp_gt_u32 s[34:35], 32, v{vlane}
    v_cndmask_b32 v{T}, v{O_+8}, v{O_+12}, s[34:35]
    v_mov_b32 v{T+5}, {fbits(2.0**30)}
    v_cmp_nle_f32 vcc, v{T}, v{T+5}
    s_cbranch_vccnz {L}_slow
    ''')
    a.label(f'{L}_store')
    a(f'v_rcp_f32 v{T}, v{T}')
    for G in range(3):
        o = O_ + 4*G
        for h2 in range(2):
            pk(a, 'v_pk_mul_f32', o+2*h2, vr(o+2*h2,2), vr(T,2), mods='op_sel_hi:[1,0]')
        a(f'v_cvt_pk_bf16_f32 v{o}, v{o}, v{o+1}')
        a(f'v_cvt_pk_bf16_f32 v{o+1}, v{o+2}, v{o+3}')
        a(f'buffer_store_dwordx2 {vr(o,2)}, v{EA[G]}, s[{sO}:{sO+3}], s{s_t} offen')
    a(f's_branch {L}_fin')
    a.label(f'{L}_slow')
    a(f'''
    v_lshlrev_b32 v{aK1}, 4, v{vlane}
    v_and_b32 v{T+4}, 31, v{vlane}
    v_lshlrev_b32 v{aK2}, 3, v{T+4}
    v_add_u32 v{aK2}, 1024, v{aK2}
    v_mov_b32 v{Q2+2}, 0
    v_mov_b32 v{T}, 0xff800000
    s_mov_b32 s{s_it}, 0
    {L}_sl1:
    ''')
    for o in rdK(0, 0): a(o)
    a('s_waitcnt lgkmcnt(0)')
    for o in QK(0, 0): a(o)
    maxtree(0, T)
    a(f'''
    v_add_u32 v{aK1}, 1280, v{aK1}
    v_add_u32 v{aK2}, 1280, v{aK2}
    s_add_u32 s{s_it}, s{s_it}, 1
    s_cmp_lt_u32 s{s_it}, 64
    s_cbranch_scc1 {L}_sl1
    ''')
    crosshalf_max(T, T+2)
    setm(T)
    a(f'''
    v_lshlrev_b32 v{aK1}, 4, v{vlane}
    v_lshlrev_b32 v{aK2}, 3, v{T+4}
    v_add_u32 v{aK2}, 1024, v{aK2}
    v_lshrrev_b32 v{T+5}, 5, v{vlane}
    v_mul_u32_u24 v{aV}, 320, v{T+5}
    v_lshl_add_u32 v{aV}, v{T+4}, 4, v{aV}
    v_add_u32 v{aV}, 81920, v{aV}
    s_mov_b32 s{s_it}, 0
    ''')
    for r in range(16): a(f'v_mov_b32 v{O_+r}, 0')
    a.label(f'{L}_sl2')
    for o in rdK(0, 0) + rdV(0, 0): a(o)
    a('s_waitcnt lgkmcnt(0)')
    for o in QK(0, 0): a(o)
    for i in range(16): a(f'v_exp_f32 v{S_[0]+i}, v{S_[0]+i}')
    for k in range(8): a(f'v_cvt_pk_bf16_f32 v{PP[0]+k}, v{S_[0]+2*k}, v{S_[0]+2*k+1}')
    for o in PV(0, 0): a(o)
    a(f'''
    v_add_u32 v{aK1}, 1280, v{aK1}
    v_add_u32 v{aK2}, 1280, v{aK2}
    v_add_u32 v{aV}, 1280, v{aV}
    s_add_u32 s{s_it}, s{s_it}, 1
    s_cmp_lt_u32 s{s_it}, 64
    s_cbranch_scc1 {L}_sl2
    s_nop 15
    v_cmp_gt_u32 s[34:35], 32, v{vlane}
    v_cndmask_b32 v{T}, v{O_+8}, v{O_+12}, s[34:35]
    s_branch {L}_store
    ''')
    a.label(f'{L}_fin')
    P.finish()
    a.label(f'{L}_end')
    rt_end(a, prof)
    a('s_endpgm')
    a.fix_hazards()
    for lab in ('loop', 'sl1', 'sl2'):
        bad = a.check_loop(f'{L}_{lab}', f's_cbranch_scc1 {L}_{lab}')
        assert not bad, bad
    return kernel_wrap(name, a.text(), vgpr=128, sgpr=100), 163840
```

```python
from common import *

def gen_n640(name, mode, prof=False):
    a = Asm(); L = name
    P = Prof(a, prof, L)
    K = 640 if mode == 'wo' else 1536
    KB = K // 32
    NST = K // 128
    KH = K // 2
    sA, sB, sR, sO, sS = 12, 16, 20, 40, 44
    s_mt, s_ct, s_w, s_mh, s_kh = 24, 25, 26, 27, 28
    s_it, s_dA, s_dB, s_slot = 29, 30, 31, 32
    vlane = 1
    ASL = 16384; BSL = 20480; BBASE = 65536
    EXB = BBASE + ((NST - 2) % 4) * BSL
    P.stamp(0); rt_begin(a, prof)
    a(f'''
    s_cmp_ge_u32 s2, 256
    s_cbranch_scc1 {L}_end
    s_load_dwordx2 s[4:5], s[0:1], {KA['wo'] if mode == 'wo' else KA['wd']}
    s_load_dwordx2 s[6:7], s[0:1], {KA['x'] if mode == 'wo' else KA['out']}
    s_load_dwordx2 s[8:9], s[0:1], 72
    v_and_b32 v{vlane}, 63, v0
    v_lshrrev_b32 v2, 6, v0
    v_readfirstlane_b32 s{s_w}, v2
    s_and_b32 s34, s2, 7             ; x8
    s_lshr_b32 s35, s2, 3            ; i 0..31
    s_and_b32 s{s_ct}, s34, 1
    s_lshl_b32 s{s_ct}, s{s_ct}, 2
    s_and_b32 s36, s35, 3
    s_add_u32 s{s_ct}, s{s_ct}, s36
    s_lshr_b32 s{s_mt}, s34, 1
    s_lshl_b32 s{s_mt}, s{s_mt}, 3
    s_lshr_b32 s36, s35, 2
    s_add_u32 s{s_mt}, s{s_mt}, s36
    s_cmp_lt_u32 s{s_w}, 4
    s_cbranch_scc1 {L}_comp
    ''')
    voffB = [8, 9, 10, 11, 12]; vA = [13, 14]
    a(f'''
    s_sub_u32 s{s_w}, s{s_w}, 4
    s_lshr_b32 s{s_kh}, s{s_w}, 1
    s_and_b32 s{s_mh}, s{s_w}, 1
    s_lshl_b32 s34, s{s_mt}, 2
    s_lshl_b32 s35, s{s_mh}, 1
    s_add_u32 s34, s34, s35
    s_mul_i32 s34, s34, {KB*1024}
    s_mul_i32 s35, s{s_kh}, {KB//2*1024}
    s_add_u32 s34, s34, s35
    v_lshlrev_b32 v2, 4, v{vlane}
    v_add_u32 v{vA[0]}, s34, v2
    v_add_u32 v{vA[1]}, {KB*1024 - 2048}, v{vA[0]}
    s_lshl_b32 s36, s{s_kh}, 13
    s_lshl_b32 s37, s{s_mh}, 12
    s_add_u32 s36, s36, s37              ; m0A base
    s_mul_i32 s38, s{s_mh}, 320
    s_mul_i32 s39, s{s_kh}, {KH*1280}
    s_mul_i32 s33, s{s_ct}, 160
    s_add_u32 s39, s39, s33
    s_mul_i32 s37, s{s_kh}, 10240
    s_mul_i32 s33, s{s_mh}, 5120
    s_add_u32 s37, s37, s33
    s_add_u32 s37, s37, {BBASE}          ; m0B base
    ''')
    for i in range(5):
        a(f'''
        v_add_u32 v3, s38, v{vlane}
        v_add_u32 v3, {64*i}, v3             ; u
        v_mul_u32_u24 v4, 6554, v3
        v_lshrrev_b32 v4, 16, v4             ; row = u/10
        v_mul_u32_u24 v5, 10, v4
        v_sub_u32 v5, v3, v5                 ; chunk
        v_mul_u32_u24 v4, 1280, v4
        v_lshl_add_u32 v4, v5, 4, v4
        v_add_u32 v4, s39, v4
        ''')
        off = 1024*i if i < 4 else 0
        a(f'v_subrev_u32 v{voffB[i]}, {off}, v4' if off else f'v_mov_b32 v{voffB[i]}, v4')
    a('s_waitcnt lgkmcnt(0)')
    srd(a, sA, 8, 9, WS_O if mode == 'wo' else WS_ACT, S*K*2)
    srd(a, sB, 4, 5, 0, K*640*2)
    vm = Vm(a)
    def dma_stage(st):
        slot = st % 4
        a(f's_add_u32 m0, s36, {slot*ASL}')
        a(f's_movk_i32 s34, {st*2048}')
        for i in range(4):
            a(f'buffer_load_dwordx4 v{vA[i//2]}, s[{sA}:{sA+3}], s34 offen offset:{i*1024} lds'); vm.issue(st)
        a(f's_add_u32 m0, s37, {slot*BSL}')
        a(f's_mov_b32 s35, {st*64*1280}')
        for i in range(4):
            a(f'buffer_load_dwordx4 v{voffB[i]}, s[{sB}:{sB+3}], s35 offen offset:{i*1024} lds'); vm.issue(st)
        a(f's_add_u32 m0, s37, {slot*BSL + 4096}')
        a(f'buffer_load_dwordx4 v{voffB[4]}, s[{sB}:{sB+3}], s35 offen lds'); vm.issue(st)
    dma_stage(0); dma_stage(1)
    for st in range(NST):
        vm.wait(st)
        a('s_barrier')
        if st == 0:
            for x in (2, 3):
                if x < NST: dma_stage(x)
        elif st + 3 < NST: dma_stage(st + 3)
    rt_end(a, prof); a('s_endpgm')
    a.label(f'{L}_comp')
    aX, aW1, aW2 = 2, 3, 4
    XF = lambda b, i: 8 + b*8 + i*4
    WF = lambda b, s: 24 + b*20 + s*4
    ACC = lambda s, i: 64 + (s*2 + i)*4
    RES = lambda j, i: 104 + (j*2 + i)*2
    EAo = 116; EAr = 117; ESt = 118; aEw = 119; aEr = 120
    T = 124
    a(f'''
    s_lshr_b32 s{s_mh}, s{s_w}, 1
    s_and_b32 s{s_kh}, s{s_w}, 1
    v_lshlrev_b32 v{aX}, 4, v{vlane}
    s_lshl_b32 s34, s{s_kh}, 13
    s_lshl_b32 s35, s{s_mh}, 12
    s_add_u32 s34, s34, s35
    v_add_u32 v{aX}, s34, v{aX}
    v_lshrrev_b32 v{T}, 4, v{vlane}        ; g
    v_bfe_u32 v{T+1}, v{vlane}, 2, 2       ; rr
    v_and_b32 v{T+2}, 3, v{vlane}          ; cq
    v_lshl_add_u32 v{T+3}, v{T}, 2, v{T+1} ; 4g+rr
    v_mul_u32_u24 v{T+3}, 160, v{T+3}
    v_lshl_add_u32 v{T+3}, v{T+2}, 3, v{T+3}
    s_mul_i32 s34, s{s_kh}, {10240 + 96}
    s_add_u32 s34, s34, {BBASE}
    v_add_u32 v{aW1}, s34, v{T+3}
    s_mul_i32 s34, s{s_kh}, {10240 - 64}
    s_add_u32 s34, s34, {BBASE}
    v_add_u32 v{aW2}, s34, v{T+3}
    v_and_b32 v{T+4}, 15, v{vlane}         ; m
    s_lshl_b32 s34, s{s_mt}, 6
    s_lshl_b32 s35, s{s_mh}, 5
    s_add_u32 s34, s34, s35
    v_add_u32 v{T+5}, s34, v{T+4}
    v_mul_u32_u24 v{T+6}, 1280, v{T+5}
    v_lshl_add_u32 v{T+6}, v{T}, 3, v{T+6}
    s_mul_i32 s35, s{s_ct}, 160
    v_add_u32 v{T+6}, s35, v{T+6}
    v_lshlrev_b32 v{T+7}, 4, v{vlane}
    s_lshr_b32 s35, s34, 4
    s_mul_i32 s35, s35, 20480
    v_add_u32 v{T+7}, s35, v{T+7}
    s_mul_i32 s36, s{s_ct}, 5
    s_waitcnt lgkmcnt(0)
    ''')
    if mode == 'wo':
        srd(a, sR, 6, 7, 0, S*D*2)
        srd(a, sO, 8, 9, WS_H, S*D*2)
        srd(a, sS, 8, 9, WS_ST, S*16*8)
        a(f'v_mov_b32 v{EAr}, v{T+6}'); a(f'v_mov_b32 v{EAo}, v{T+7}')
    else:
        srd(a, sR, 8, 9, WS_H, S*D*2)
        srd(a, sO, 6, 7, 0, S*D*2)
        a(f'v_mov_b32 v{EAr}, v{T+7}'); a(f'v_mov_b32 v{EAo}, v{T+6}')
    s_nat = 48; s_fm = 54
    for j in range(3):
        a(f'''
        s_mul_i32 s34, s{s_kh}, 3
        s_add_u32 s34, s34, {j}              ; s
        s_lshl_b32 s{s_nat+j}, s34, 5
        s_add_u32 s34, s34, s36              ; T16
        s_lshr_b32 s35, s34, 1
        s_lshl_b32 s35, s35, 10
        s_and_b32 s34, s34, 1
        s_lshl_b32 s34, s34, 3
        s_add_u32 s{s_fm+j}, s35, s34
        ''')
    s_res = s_nat if mode == 'wo' else s_fm
    s_out = s_fm if mode == 'wo' else s_nat
    for j in range(3):
        for i in range(2):
            a(f's_add_u32 s34, s{s_res+j}, {i*20480}')
            a(f'buffer_load_dwordx2 {vr(RES(j,i),2)}, v{EAr}, s[{sR}:{sR+3}], s34 offen')
    for r in range(40): a(f'v_mov_b32 v{64+r}, 0')
    a(f'''
    s_mul_i32 s34, s{s_mh}, 10240
    s_add_u32 s34, s34, {EXB}
    s_cmp_eq_u32 s{s_kh}, 0
    s_movk_i32 s33, 4096
    s_cselect_b32 s35, {(-2048) & 0xffffffff}, s33
    s_cselect_b32 s33, 4096, 0
    s_add_u32 s35, s35, s34
    s_add_u32 s33, s33, s34
    v_lshlrev_b32 v{T}, 4, v{vlane}
    v_add_u32 v{aEw}, s35, v{T}
    v_add_u32 v{aEr}, s33, v{T}
    v_lshlrev_b32 v{ESt}, 7, v{T+5}
    s_lshl_b32 s34, s{s_ct}, 4
    s_lshl_b32 s35, s{s_kh}, 3
    s_add_u32 s34, s34, s35
    v_add_u32 v{ESt}, s34, v{ESt}
    s_mov_b32 s{s_it}, 0
    s_mov_b32 s{s_slot}, 0
    s_mov_b32 s58, {ASL}
    s_mov_b32 s59, {(-3*ASL) & 0xffffffff}
    s_mov_b32 s60, {BSL}
    s_mov_b32 s61, {(-3*BSL) & 0xffffffff}
    ''')
    def rd(t, b):
        o = []
        for i in range(2):
            o.append(f'ds_read_b128 {vr(XF(b,i),4)}, v{aX} offset:{(i*2+t)*1024}')
        for s in range(5):
            for e in range(2):
                o.append(f'ds_read_b64_tr_b16 {vr(WF(b,s)+2*e,2)}, v{aW1 if s < 2 else aW2} offset:{(32*t+16*e)*160 + s*32}')
        return o
    P.stamp(3)
    a('s_barrier')
    P.stamp(4)
    for o in rd(0, 0): a(o)
    a.label(f'{L}_loop')
    for t in range(2):
        b = t
        if t == 1:
            a(f'''
            s_waitcnt lgkmcnt(0)
            s_cmp_eq_u32 s{s_it}, {NST-1}
            s_cbranch_scc1 {L}_nob
            s_barrier
            {L}_nob:
            s_add_u32 s{s_slot}, s{s_slot}, 1
            s_cmp_eq_u32 s{s_slot}, 4
            s_cselect_b32 s{s_dA}, s59, s58
            s_cselect_b32 s{s_dB}, s61, s60
            s_cselect_b32 s{s_slot}, 0, s{s_slot}
            v_add_u32 v{aX}, s{s_dA}, v{aX}
            v_add_u32 v{aW1}, s{s_dB}, v{aW1}
            v_add_u32 v{aW2}, s{s_dB}, v{aW2}
            ''')
        R = rd(1, 1) if t == 0 else rd(0, 0)
        n = 0
        for s in range(5):
            for i in range(2):
                if t == 0 and i == 0:
                    a(f's_waitcnt lgkmcnt({8 - 2*s + min(12, 2*n)})')
                a(f'v_mfma_f32_16x16x32_bf16 {vr(ACC(s,i),4)}, {vr(WF(b,s),4)}, {vr(XF(b,i),4)}, {vr(ACC(s,i),4)}')
                for o in R[2*n:2*n+2]: a(o)
                n += 1
    a(f'''
    s_add_u32 s{s_it}, s{s_it}, 1
    s_cmp_lt_u32 s{s_it}, {NST}
    s_cbranch_scc1 {L}_loop
    ''')
    P.stamp(5)
    a(f'''
    s_cmp_eq_u32 s{s_kh}, 0
    s_cbranch_scc1 {L}_skipw
    ''')
    for i in range(2): a(f'ds_write_b128 v{aEw}, {vr(ACC(2,i),4)} offset:{i*1024}')
    a.label(f'{L}_skipw')
    for s in (3, 4):
        for i in range(2): a(f'ds_write_b128 v{aEw}, {vr(ACC(s,i),4)} offset:{(s-2)*2048 + i*1024}')
    a('s_waitcnt lgkmcnt(0)')
    a('s_barrier')
    EXR = lambda j, i: 8 + (j*2+i)*4
    for j in range(3):
        for i in range(2): a(f'ds_read_b128 {vr(EXR(j,i),4)}, v{aEr} offset:{j*2048 + i*1024}')
    a('s_waitcnt vmcnt(0) lgkmcnt(0)')
    SUM = [32, 34]; SQ = [36, 38]
    if mode == 'wo':
        for r in range(32, 40): a(f'v_mov_b32 v{r}, 0')
    for j in range(3):
        if j == 2:
            a(f's_cmp_lg_u32 s{s_kh}, 0')
            a(f's_cbranch_scc1 {L}_skip2')
        for i in range(2):
            A0 = ACC(j, i); E0 = EXR(j, i); R0 = RES(j, i)
            pk(a, 'v_pk_add_f32', A0, vr(A0,2), vr(E0,2))
            pk(a, 'v_pk_add_f32', A0+2, vr(A0+2,2), vr(E0+2,2))
            a(f'v_lshlrev_b32 v{E0}, 16, v{R0}')
            a(f'v_and_b32 v{E0+1}, 0xffff0000, v{R0}')
            a(f'v_lshlrev_b32 v{E0+2}, 16, v{R0+1}')
            a(f'v_and_b32 v{E0+3}, 0xffff0000, v{R0+1}')
            pk(a, 'v_pk_add_f32', A0, vr(A0,2), vr(E0,2))
            pk(a, 'v_pk_add_f32', A0+2, vr(A0+2,2), vr(E0+2,2))
            a(f'v_cvt_pk_bf16_f32 v{A0}, v{A0}, v{A0+1}')
            a(f'v_cvt_pk_bf16_f32 v{A0+1}, v{A0+2}, v{A0+3}')
            a(f's_add_u32 s34, s{s_out+j}, {i*20480}')
            a(f'buffer_store_dwordx2 {vr(A0,2)}, v{EAo}, s[{sO}:{sO+3}], s34 offen')
            if mode == 'wo':
                a(f'v_lshlrev_b32 v{E0}, 16, v{A0}')
                a(f'v_and_b32 v{E0+1}, 0xffff0000, v{A0}')
                a(f'v_lshlrev_b32 v{E0+2}, 16, v{A0+1}')
                a(f'v_and_b32 v{E0+3}, 0xffff0000, v{A0+1}')
                pk(a, 'v_pk_add_f32', SUM[i], vr(SUM[i],2), vr(E0,2))
                pk(a, 'v_pk_fma_f32', SQ[i], vr(E0,2), vr(E0,2), vr(SQ[i],2))
                pk(a, 'v_pk_add_f32', SUM[i], vr(SUM[i],2), vr(E0+2,2))
                pk(a, 'v_pk_fma_f32', SQ[i], vr(E0+2,2), vr(E0+2,2), vr(SQ[i],2))
    a.label(f'{L}_skip2')
    if mode == 'wo':
        for i in range(2):
            a(f'v_add_f32 v{40+2*i}, v{SUM[i]}, v{SUM[i]+1}')
            a(f'v_add_f32 v{41+2*i}, v{SQ[i]}, v{SQ[i]+1}')
        for r in range(4): a(f'v_mov_b32 v{44+r}, v{40+r}')
        for r in range(4): a(f'v_permlane16_swap_b32 v{44+r}, v{40+r}')
        for r in range(4): a(f'v_add_f32 v{40+r}, v{40+r}, v{44+r}')
        for r in range(4): a(f'v_mov_b32 v{44+r}, v{40+r}')
        for r in range(4): a(f'v_permlane32_swap_b32 v{44+r}, v{40+r}')
        for r in range(4): a(f'v_add_f32 v{40+r}, v{40+r}, v{44+r}')
        a(f'''
        v_cmp_gt_u32 vcc, 16, v{vlane}
        s_and_saveexec_b64 s[34:35], vcc
        buffer_store_dwordx2 v[40:41], v{ESt}, s[{sS}:{sS+3}], 0 offen
        buffer_store_dwordx2 v[42:43], v{ESt}, s[{sS}:{sS+3}], 0 offen offset:2048
        s_mov_b64 exec, s[34:35]
        ''')
    P.finish()
    a.label(f'{L}_end')
    rt_end(a, prof)
    a('s_endpgm')
    a.fix_hazards()
    bad = a.check_loop(f'{L}_loop', f's_cbranch_scc1 {L}_loop')
    assert not bad, bad
    return kernel_wrap(name, a.text(), vgpr=136, sgpr=100), 65536 + 4*20480
```

```python
from common import *

def gen_k4(name='k4_kernel', prof=False):
    a = Asm(); L = name
    P = Prof(a, prof, L)
    NST = 10
    sA, sG, sU, sO, sS, sC = 12, 16, 20, 40, 44, 48
    s_mt, s_ft, s_w, s_wm, s_wn = 24, 25, 26, 27, 28
    s_it, s_dA, s_dB, s_slot = 29, 30, 31, 32
    vlane = 1
    ASL = 16384; BSL = 24576; BBASE = 65536
    STAT = ((NST - 2) % 4) * ASL
    P.stamp(0); rt_begin(a, prof)
    a(f'''
    s_cmp_ge_u32 s2, 256
    s_cbranch_scc1 {L}_end
    s_load_dwordx4 s[4:7], s[0:1], 32
    s_load_dwordx2 s[8:9], s[0:1], 72
    v_and_b32 v{vlane}, 63, v0
    v_lshrrev_b32 v2, 6, v0
    v_readfirstlane_b32 s{s_w}, v2
    s_and_b32 s34, s2, 7
    s_lshr_b32 s35, s2, 3
    s_and_b32 s{s_mt}, s34, 1
    s_lshl_b32 s{s_mt}, s{s_mt}, 3
    s_and_b32 s36, s35, 7
    s_add_u32 s{s_mt}, s{s_mt}, s36        ; 0..15
    s_lshr_b32 s{s_ft}, s34, 1
    s_lshl_b32 s{s_ft}, s{s_ft}, 2
    s_lshr_b32 s36, s35, 3
    s_add_u32 s{s_ft}, s{s_ft}, s36        ; 0..15
    s_cmp_lt_u32 s{s_w}, 4
    s_cbranch_scc1 {L}_comp
    ''')
    voffB = [8, 9, 10, 11, 12, 13]; vA = [14, 15]
    a(f'''
    s_sub_u32 s{s_w}, s{s_w}, 4
    s_lshl_b32 s34, s{s_mt}, 3
    s_lshl_b32 s35, s{s_w}, 1
    s_add_u32 s34, s34, s35
    s_mul_i32 s34, s34, 20480
    v_lshlrev_b32 v2, 4, v{vlane}
    v_add_u32 v{vA[0]}, s34, v2
    v_add_u32 v{vA[1]}, {20480 - 2048}, v{vA[0]}
    s_lshl_b32 s36, s{s_w}, 12             ; m0A base
    s_and_b32 s35, s{s_w}, 1
    s_mul_i32 s35, s35, 96
    s_mul_i32 s39, s{s_ft}, 192
    s_add_u32 s39, s39, s35
    s_mul_i32 s37, s{s_w}, 6144
    s_add_u32 s37, s37, {BBASE}            ; m0B base
    ''')
    for i in range(6):
        a(f'''
        v_add_u32 v3, {64*i}, v{vlane}       ; u
        v_mul_u32_u24 v4, 10923, v3
        v_lshrrev_b32 v4, 16, v4             ; row = u/6
        v_mul_u32_u24 v5, 6, v4
        v_sub_u32 v5, v3, v5                 ; chunk
        v_mul_u32_u24 v4, 3072, v4
        v_lshl_add_u32 v4, v5, 4, v4
        v_add_u32 v4, s39, v4
        ''')
        off = 1024*(i % 4)
        a(f'v_subrev_u32 v{voffB[i]}, {off}, v4' if off else f'v_mov_b32 v{voffB[i]}, v4')
    a(f'''
    s_waitcnt lgkmcnt(0)
    s_cmp_lt_u32 s{s_w}, 2
    s_cselect_b32 s4, s4, s6
    s_cselect_b32 s5, s5, s7
    ''')
    srd(a, sA, 8, 9, WS_H, S*D*2)
    srd(a, sG, 4, 5, 0, D*F*2)
    vm = Vm(a)
    def dma_stage(st):
        slot = st % 4
        a(f's_add_u32 m0, s36, {slot*ASL}')
        a(f's_movk_i32 s34, {st*2048}')
        for i in range(4):
            a(f'buffer_load_dwordx4 v{vA[i//2]}, s[{sA}:{sA+3}], s34 offen offset:{i*1024} lds'); vm.issue(st)
        a(f's_add_u32 m0, s37, {slot*BSL}')
        a(f's_mov_b32 s35, {st*64*3072}')
        for i in range(4):
            a(f'buffer_load_dwordx4 v{voffB[i]}, s[{sG}:{sG+3}], s35 offen offset:{i*1024} lds'); vm.issue(st)
        a(f's_add_u32 m0, s37, {slot*BSL + 4096}')
        for i in range(4, 6):
            a(f'buffer_load_dwordx4 v{voffB[i]}, s[{sG}:{sG+3}], s35 offen offset:{(i-4)*1024} lds'); vm.issue(st)
    dma_stage(0); dma_stage(1)
    srd(a, sS, 8, 9, WS_ST, S*16*8)
    srd(a, sC, 8, 9, WS_CS2, 5*3072*4)
    a(f'''
    s_lshl_b32 s34, s{s_mt}, 7
    s_lshl_b32 s35, s{s_w}, 6
    s_add_u32 s34, s34, s35
    v_add_u32 v16, s34, v{vlane}
    v_lshlrev_b32 v16, 7, v16              ; row*128
    v_cmp_gt_u32 vcc, 24, v{vlane}
    v_lshlrev_b32 v17, 4, v{vlane}
    v_add_u32 v18, {1536*4 - 24*16}, v17
    v_cndmask_b32 v17, v18, v17, vcc
    s_mul_i32 s34, s{s_ft}, 384
    v_add_u32 v17, s34, v17
    v_cmp_gt_u32 vcc, 48, v{vlane}
    v_mov_b32 v18, 0x7f000000
    v_cndmask_b32 v17, v18, v17, vcc
    s_cmp_lt_u32 s{s_w}, 2
    s_cbranch_scc0 {L}_side2
    ''')
    for i in range(8):
        a(f'buffer_load_dwordx4 {vr(32+4*i,4)}, v16, s[{sS}:{sS+3}], 0 offen offset:{16*i}')
    a(f's_branch {L}_side3')
    a.label(f'{L}_side2')
    for i in range(8):
        a(f's_mov_b32 s34, {min(i,4)*3072*4}')
        a(f'buffer_load_dwordx4 {vr(32+4*i,4)}, v17, s[{sC}:{sC+3}], s34 offen')
    a.label(f'{L}_side3')
    for i in range(8): vm.issue('side')
    for st in range(NST):
        vm.wait(st)
        if st == 9:
            a(f'''
            s_waitcnt vmcnt(0)
            s_cmp_lt_u32 s{s_w}, 2
            s_cbranch_scc0 {L}_fin2
            ''')
            for i in range(1, 16):
                pk(a, 'v_pk_add_f32', 32, vr(32,2), vr(32+2*i,2))
            a(f'''
            v_mul_f32 v32, {fbits(1.0/640)}, v32
            v_mul_f32 v33, {fbits(1.0/640)}, v33
            v_fma_f32 v33, -v32, v32, v33
            v_max_f32 v33, 0, v33
            v_add_f32 v33, {fbits(1e-5)}, v33
            v_rsq_f32 v33, v33
            v_mul_f32 v32, v32, v33
            s_lshl_b32 s34, s{s_w}, 8
            v_lshlrev_b32 v16, 2, v{vlane}
            v_add_u32 v16, s34, v16
            s_barrier
            ds_write_b32 v16, v33 offset:{STAT}
            ds_write_b32 v16, v32 offset:{STAT+512}
            s_waitcnt lgkmcnt(0)
            s_barrier
            s_branch {L}_end
            {L}_fin2:
            s_cmp_eq_u32 s{s_w}, 2
            s_cbranch_scc0 {L}_fin3
            ''')
            for i in range(1, 5):
                pk(a, 'v_pk_add_f32', 32, vr(32,2), vr(32+4*i,2))
                pk(a, 'v_pk_add_f32', 34, vr(34,2), vr(34+4*i,2))
            a(f'''
            v_lshlrev_b32 v16, 4, v{vlane}
            v_cmp_gt_u32 vcc, 48, v{vlane}
            s_barrier
            s_and_saveexec_b64 s[34:35], vcc
            ds_write_b128 v16, v[32:35] offset:{STAT+1024}
            s_waitcnt lgkmcnt(0)
            s_mov_b64 exec, s[34:35]
            s_barrier
            s_branch {L}_end
            {L}_fin3:
            ''')
        a('s_barrier')
        if st == 0: dma_stage(2); dma_stage(3)
        elif st + 3 < NST: dma_stage(st + 3)
    rt_end(a, prof); a('s_endpgm')
    a.label(f'{L}_comp')
    aX, aW = 2, 3
    XF = lambda b, i: 8 + b*16 + i*4
    WF = lambda b, k: 40 + b*24 + k*4
    ACC = lambda k, i: 88 + (k*4 + i)*4
    aRS, aCS, EAo = 184, 185, 186
    T = 188
    a(f'''
    s_lshr_b32 s{s_wm}, s{s_w}, 1
    s_and_b32 s{s_wn}, s{s_w}, 1
    v_lshlrev_b32 v{aX}, 4, v{vlane}
    v_mov_b32 v{EAo}, v{aX}
    s_lshl_b32 s34, s{s_wm}, 13            ; (4wm)*2*1024
    v_add_u32 v{aX}, s34, v{aX}
    v_lshrrev_b32 v{T}, 4, v{vlane}        ; g
    v_bfe_u32 v{T+1}, v{vlane}, 2, 2       ; rr
    v_and_b32 v{T+2}, 3, v{vlane}          ; cq
    v_lshl_add_u32 v{T+3}, v{T}, 2, v{T+1}
    v_mul_u32_u24 v{aW}, 96, v{T+3}
    v_lshl_add_u32 v{aW}, v{T+2}, 3, v{aW}
    s_mul_i32 s34, s{s_wn}, 6144
    s_add_u32 s34, s34, {BBASE}
    v_add_u32 v{aW}, s34, v{aW}
    v_and_b32 v{T+4}, 15, v{vlane}         ; m
    s_lshl_b32 s34, s{s_wm}, 6
    v_add_u32 v{T+4}, s34, v{T+4}
    v_lshlrev_b32 v{aRS}, 2, v{T+4}        ; (wm*64 + m)*4  (+ i*64)
    s_mul_i32 s34, s{s_wn}, 192
    v_lshlrev_b32 v{aCS}, 4, v{T}
    v_add_u32 v{aCS}, s34, v{aCS}
    s_waitcnt lgkmcnt(0)
    ''')
    srd(a, sO, 8, 9, WS_ACT, S*F*2)
    s_o = 52
    a(f'''
    s_lshl_b32 s36, s{s_mt}, 3
    s_lshl_b32 s37, s{s_wm}, 2
    s_add_u32 s36, s36, s37
    s_mul_i32 s36, s36, {48*1024}
    s_mul_i32 s37, s{s_ft}, 6
    s_mul_i32 s35, s{s_wn}, 3
    s_add_u32 s37, s37, s35
    ''')
    for s in range(3):
        a(f'''
        s_add_u32 s34, s37, {s}
        s_lshr_b32 s35, s34, 1
        s_lshl_b32 s35, s35, 10
        s_and_b32 s34, s34, 1
        s_lshl_b32 s34, s34, 3
        s_add_u32 s35, s35, s34
        s_add_u32 s{s_o+s}, s35, s36
        ''')
    for r in range(96): a(f'v_mov_b32 v{88+r}, 0')
    a(f'''
    s_mov_b32 s{s_it}, 0
    s_mov_b32 s{s_slot}, 0
    s_mov_b32 s58, {ASL}
    s_mov_b32 s59, {(-3*ASL) & 0xffffffff}
    s_mov_b32 s60, {BSL}
    s_mov_b32 s61, {(-3*BSL) & 0xffffffff}
    ''')
    def rd(t, b):
        o = []
        for i in range(4):
            o.append(f'ds_read_b128 {vr(XF(b,i),4)}, v{aX} offset:{(i*2+t)*1024}')
        for k in range(6):
            mat, s = divmod(k, 3)
            for e in range(2):
                o.append(f'ds_read_b64_tr_b16 {vr(WF(b,k)+2*e,2)}, v{aW} offset:{mat*12288 + (32*t+16*e)*96 + s*32}')
        return o
    P.stamp(3)
    a('s_barrier')
    P.stamp(4)
    for o in rd(0, 0): a(o)
    a.label(f'{L}_loop')
    for t in range(2):
        b = t
        if t == 1:
            a(f'''
            s_waitcnt lgkmcnt(0)
            s_barrier
            s_add_u32 s{s_slot}, s{s_slot}, 1
            s_cmp_eq_u32 s{s_slot}, 4
            s_cselect_b32 s{s_dA}, s59, s58
            s_cselect_b32 s{s_dB}, s61, s60
            s_cselect_b32 s{s_slot}, 0, s{s_slot}
            v_add_u32 v{aX}, s{s_dA}, v{aX}
            v_add_u32 v{aW}, s{s_dB}, v{aW}
            ''')
        R = rd(1, 1) if t == 0 else rd(0, 0)
        n = 0
        for k in range(6):
            for i in range(4):
                if t == 0 and i == 0:
                    rem_old = 16 - (4 + 2*(k+1))
                    newc = min(16, n)
                    a(f's_waitcnt lgkmcnt({min(15, rem_old + newc)})')
                a(f'v_mfma_f32_16x16x32_bf16 {vr(ACC(k,i),4)}, {vr(WF(b,k),4)}, {vr(XF(b,i),4)}, {vr(ACC(k,i),4)}')
                if n < 16: a(R[n])
                n += 1
    a(f'''
    s_add_u32 s{s_it}, s{s_it}, 1
    s_cmp_lt_u32 s{s_it}, {NST}
    s_cbranch_scc1 {L}_loop
    ''')
    P.stamp(5)
    RS = lambda i: 8 + 4*i; MR = lambda i: 10 + 4*i
    CS = lambda k: 40 + 4*k
    a('s_waitcnt lgkmcnt(0)')
    for i in range(4):
        a(f'ds_read_b32 v{RS(i)}, v{aRS} offset:{STAT + i*64}')
        a(f'ds_read_b32 v{MR(i)}, v{aRS} offset:{STAT + 512 + i*64}')
    for k in range(6):
        mat, s = divmod(k, 3)
        a(f'ds_read_b128 {vr(CS(k),4)}, v{aCS} offset:{STAT + 1024 + mat*384 + s*64}')
    a('s_waitcnt lgkmcnt(0)')
    C0 = 2*0.7978845608028654*1.4426950408889634
    C1 = C0*0.044715
    a(f's_mov_b32 s34, {fbits(-C0)}')
    a(f's_mov_b32 s35, {fbits(-C1)}')
    X = 64
    for s in range(3):
        for i in range(4):
            G0 = ACC(s, i); U0 = ACC(3+s, i)
            for h2 in range(2):
                for (A0, k) in ((G0, s), (U0, 3+s)):
                    r = A0 + 2*h2
                    pk(a, 'v_pk_mul_f32', r, vr(r,2), vr(RS(i),2), mods='op_sel_hi:[1,0]')
                    pk(a, 'v_pk_fma_f32', r, vr(MR(i),2), vr(CS(k)+2*h2,2), vr(r,2), mods='op_sel_hi:[0,1,1] neg_lo:[1,0,0] neg_hi:[1,0,0]')
            for r4 in range(4):
                a(f'v_mul_f32 v{X+r4}, v{G0+r4}, v{G0+r4}')
            for r4 in range(4):
                a(f'v_mov_b32 v{X+4+r4}, s34') if False else None
                a(f'v_fma_f32 v{X+r4}, v{X+r4}, s35, v{T+8}')
            for r4 in range(4):
                a(f'v_mul_f32 v{X+r4}, v{X+r4}, v{G0+r4}')
            for r4 in range(4):
                a(f'v_exp_f32 v{X+r4}, v{X+r4}')
            for r4 in range(4):
                a(f'v_add_f32 v{X+r4}, 1.0, v{X+r4}')
            for r4 in range(4):
                a(f'v_rcp_f32 v{X+r4}, v{X+r4}')
            for r4 in range(4):
                a(f'v_mul_f32 v{G0+r4}, v{G0+r4}, v{U0+r4}')
            for r4 in range(4):
                a(f'v_mul_f32 v{G0+r4}, v{G0+r4}, v{X+r4}')
            a(f'v_cvt_pk_bf16_f32 v{G0}, v{G0}, v{G0+1}')
            a(f'v_cvt_pk_bf16_f32 v{G0+1}, v{G0+2}, v{G0+3}')
            a(f's_add_u32 s36, s{s_o+s}, {i*48*1024}')
            a(f'buffer_store_dwordx2 {vr(G0,2)}, v{EAo}, s[{sO}:{sO+3}], s36 offen')
    P.finish()
    a.label(f'{L}_end')
    rt_end(a, prof)
    a('s_endpgm')
    idx = next(i for i, x in enumerate(a.ins) if x.text.startswith('s_mov_b32 s35, ' + fbits(-C1)))
    from asmlib import Ins
    a.ins.insert(idx + 1, Ins(f'v_mov_b32 v{T+8}, s34'))
    a.fix_hazards()
    bad = a.check_loop(f'{L}_loop', f's_cbranch_scc1 {L}_loop')
    assert not bad, bad
    return kernel_wrap(name, a.text(), vgpr=200, sgpr=100), 163840
```

```python
import sys
sys.path.insert(0, 'gen')
import k1, k2b as k2, k35, k4
NAME = 'sequential_preLN__mha_block__geglu_ffn__prompt'
def build(prof='', exp=''):
    parts = []; launches = []
    t, l = k1.gen_k1(prof=('k1' in prof)); parts.append(t); launches.append(('k1_kernel', 512, l))
    t, l = k2.gen_k2(prof=('k2' in prof), exp=exp or 'unr4'); parts.append(t); launches.append(('k2_kernel', 576, l))
    t, l = k35.gen_n640('k3_kernel', 'wo', prof=('k3' in prof)); parts.append(t); launches.append(('k3_kernel', 512, l))
    t, l = k4.gen_k4(prof=('k4' in prof)); parts.append(t); launches.append(('k4_kernel', 512, l))
    t, l = k35.gen_n640('k5_kernel', 'wd', prof=('k5' in prof)); parts.append(t); launches.append(('k5_kernel', 512, l))
    hdr = open(f'cdna_kernels/{NAME}.s.ref').read().split('; Override')[0]
    hdr += ''.join(f'; @launch kernel={k} grid=(256,1,1) block=({b},1,1) lds={l}\n' for k, b, l in launches)
    return hdr + '.amdgcn_target "amdgcn-amd-amdhsa--gfx950"\n' + '\n'.join(parts), launches
if __name__ == '__main__':
    t, launches = build()
    open('full.s', 'w').write(t)
    open(f'cdna_kernels/{NAME}.s', 'w').write(t)
    import json; json.dump(launches, open('launches.json', 'w'))
    if len(sys.argv) > 1:
        open('full_prof.s', 'w').write(build(sys.argv[1])[0])
    for e in sys.argv[2:]:
        open(f'e_{e}.s', 'w').write(build(sys.argv[1], exp=e)[0])
```

```python
from asmlib import Asm
S=2048; D=640; H=32; DH=20; F=1536
WS_Q = 0
WS_K = WS_Q + 32*81920
WS_V = WS_K + 32*81920
WS_O = WS_V + 32*81920
WS_H = WS_O + S*D*2
WS_ACT = WS_H + S*D*2
WS_ST = WS_ACT + S*F*2
WS_RS1 = WS_ST + S*16*2*4
WS_MR1 = WS_RS1 + S*4
WS_CS1 = WS_MR1 + S*4
WS_CS2 = WS_CS1 + 2048*4
WS_END = WS_CS2 + 5*3072*4
WS_FLAG = (WS_END + 4095) // 4096 * 4096
WS_EPOCH = WS_FLAG + 512*128
WS_WT3 = WS_EPOCH + 4096
WS_WT4 = WS_WT3 + 8*5*20480
WS_WT5 = WS_WT4 + 16*10*24576
WS_RP = WS_WT5 + 8*12*20480
WS_CP = WS_RP + 10*2048*8
WS_ALL = WS_CP + 10*2048*4
EPOCH_INC = 0x9E3779B1
import struct
def fbits(x): return '0x%08x' % struct.unpack('<I', struct.pack('<f', x))[0]
class Prof:
    def __init__(self, a, on, L): self.a = a; self.on = on; self.L = L
    def stamp(self, i):
        if self.on: self.a(f's_memtime s[{64+2*i}:{65+2*i}]')
    def finish(self, wave_sel=0):
        if not self.on: return
        a = self.a
        self.stamp(6)
        a('s_waitcnt vmcnt(0)')
        self.stamp(7)
        a(f'''
        s_load_dwordx2 s[4:5], s[0:1], 64
        s_waitcnt lgkmcnt(0)
        s_add_u32 s4, s4, {RT['poff']}
        s_addc_u32 s5, s5, 0
        v_cmp_eq_u32 vcc, {wave_sel*64}, v0
        s_and_saveexec_b64 s[10:11], vcc
        s_lshl_b32 s3, s2, 6
        v_mov_b32 v2, s3
        ''')
        for i in range(16 if RT.get('fine') else 8):
            a(f's_sub_u32 s3, s{64+2*i}, s64')
            a(f'v_mov_b32 v3, s3')
            a(f'global_store_dword v2, v3, s[4:5] offset:{4*i}')
RT = {'off': 16384, 'poff': 4096}
def rt_begin(a, on):
    if on and not RT.get('fine'): a('s_memrealtime s[84:85]')
def rt_end(a, on):
    if not on or RT.get('fine'): return
    a(f'''
    s_waitcnt vmcnt(0)
    s_memrealtime s[86:87]
    s_load_dwordx2 s[88:89], s[0:1], 64
    s_mov_b64 exec, -1
    v_lshrrev_b32 v2, 6, v0
    v_and_b32 v3, 63, v0
    s_mul_i32 s90, s2, 128
    v_lshl_add_u32 v2, v2, 3, s90
    v_add_u32 v2, {RT['off']}, v2
    v_cmp_eq_u32 vcc, 0, v3
    s_and_saveexec_b64 s[92:93], vcc
    s_waitcnt lgkmcnt(0)
    v_mov_b32 v4, s84
    v_mov_b32 v5, s86
    global_store_dwordx2 v2, v[4:5], s[88:89]
    ''')
def pk(a, op, d, x, y, z=None, mods=''):
    if z is None: a(f'{op} {vr(d,2)}, {x}, {y} {mods}')
    else: a(f'{op} {vr(d,2)}, {x}, {y}, {z} {mods}')

KA = dict(x=0, wqkv=8, wo=16, bx=24, wg=32, wu=40, wd=48, out=56, dbg=64, ws=72)

def vr(base, n): return f'v[{base}:{base+n-1}]'

class Vm:
    def __init__(self, a): self.a = a; self.q = []
    def issue(self, tag): self.q.append(tag)
    def need(self, tag):
        idx = [i for i, t in enumerate(self.q) if t == tag]
        if not idx: return None
        n = len(self.q) - 1 - idx[-1]
        self.q = self.q[idx[-1] + 1:]
        return n
    def wait(self, tag):
        n = self.need(tag)
        if n is not None: self.a(f's_waitcnt vmcnt({n})')
    def wait_all(self):
        self.q = []; self.a('s_waitcnt vmcnt(0)')

def srd(a, sreg, base_lo, base_hi, off, size):
    if off:
        a(f's_add_u32 s{sreg}, s{base_lo}, {off}')
        a(f's_addc_u32 s{sreg+1}, s{base_hi}, 0')
    else:
        a(f's_mov_b32 s{sreg}, s{base_lo}')
        a(f's_mov_b32 s{sreg+1}, s{base_hi}')
    a(f's_mov_b32 s{sreg+2}, {size}')
    a(f's_mov_b32 s{sreg+3}, 0x00020000')

def kernel_wrap(name, body, vgpr, sgpr=102, accum=None):
    if accum is None: accum = (vgpr + 3) // 4 * 4
    return f'''.text
.globl {name}
.p2align 8
.type {name},@function
{name}:
{body}
.section .rodata,"a"
.p2align 6
.amdhsa_kernel {name}
  .amdhsa_next_free_vgpr {vgpr}
  .amdhsa_next_free_sgpr {sgpr}
  .amdhsa_accum_offset {accum}
  .amdhsa_group_segment_fixed_size 0
  .amdhsa_kernarg_size 80
  .amdhsa_user_sgpr_count 2
  .amdhsa_user_sgpr_kernarg_segment_ptr 1
  .amdhsa_system_sgpr_workgroup_id_x 1
.end_amdhsa_kernel
'''

def prefetch(a, vlane, segs, s_idx, n_wg, n_waves, s_w, vt, st, vdst):
    for (sr, nrows, lpr, stride, s_base) in segs:
        total = nrows * lpr
        per = -(-total // (n_wg * n_waves * 64))
        a(f's_mul_i32 s{st}, s{s_idx}, {n_waves}')
        a(f's_add_u32 s{st}, s{st}, s{s_w}')
        a(f's_mul_i32 s{st}, s{st}, {per*64}')
        for j in range(per):
            a(f'v_add_u32 v{vt}, s{st}, v{vlane}')
            if j: a(f'v_add_u32 v{vt}, {64*j}, v{vt}')
            if stride == lpr * 128:
                a(f'v_lshlrev_b32 v{vt+1}, 7, v{vt}')
            else:
                magic = (1 << 20) // lpr + 1
                a(f's_mov_b32 s{st+1}, {magic}')
                a(f'v_mul_lo_u32 v{vt+1}, v{vt}, s{st+1}')
                a(f'v_lshrrev_b32 v{vt+1}, 20, v{vt+1}')
                a(f'v_mul_u32_u24 v{vt+2}, {lpr}, v{vt+1}')
                a(f'v_sub_u32 v{vt+2}, v{vt}, v{vt+2}')
                a(f'v_mul_u32_u24 v{vt+1}, {stride}, v{vt+1}')
                a(f'v_lshl_add_u32 v{vt+1}, v{vt+2}, 7, v{vt+1}')
            a(f'v_cmp_gt_u32 vcc, {total}, v{vt}')
            a(f'v_mov_b32 v{vt+2}, 0x7f000000')
            a(f'v_cndmask_b32 v{vt+1}, v{vt+2}, v{vt+1}, vcc')
            a(f'buffer_load_dword v{vdst}, v{vt+1}, s[{sr}:{sr+3}], s{s_base} offen')
```

```python
from common import *
import math
QSCALE = math.log2(math.e) / math.sqrt(20.0)

def gen_k1(name='k1_kernel', prof=False, exp=''):
    a = Asm()
    L = name
    P = Prof(a, prof, L)
    NST = 10
    sX, sW, sO = 12, 16, 20
    s_mt, s_nt, s_w, s_wm, s_wn = 24, 25, 26, 27, 28
    s_m0A, s_m0B, s_offA, s_offB = 29, 30, 31, 32
    s_ks = 33
    s_scale = 52
    s_t0, s_t1 = 53, 54
    s_it = 55
    s_ep = 58
    sS = 60
    sF = 44
    sP = 48
    vlane = 1
    voffA = [16, 17, 18, 19]; voffB = [20, 21, 22, 23]
    aB = [28, 29]
    XF = lambda b, i: 36 + b * 8 + i * 4
    WF = lambda b, j: 52 + b * 8 + j * 4
    ACC = lambda p, q: 68 + (p * 2 + q) * 16
    EA = 140; EL = 148; TB = 160
    STAT = 131072
    P.stamp(0); rt_begin(a, prof)
    a(f'''
    s_cmp_ge_u32 s2, 240
    s_cbranch_scc1 {L}_end
    s_load_dwordx4 s[4:7], s[0:1], 0
    s_load_dwordx2 s[10:11], s[0:1], 72
    v_and_b32 v{vlane}, 63, v0
    v_lshrrev_b32 v2, 6, v0
    v_readfirstlane_b32 s{s_w}, v2
    s_and_b32 s35, s2, 7             ; x8
    s_lshr_b32 s36, s2, 3            ; i 0..29
    s_lshr_b32 s37, s35, 2
    s_mul_i32 s37, s37, 30
    s_add_u32 s37, s37, s36          ; t 0..59
    s_lshr_b32 s{s_nt}, s37, 2
    s_and_b32 s{s_mt}, s37, 3
    s_and_b32 s35, s35, 3
    s_lshl_b32 s35, s35, 2
    s_add_u32 s{s_mt}, s{s_mt}, s35
    s_add_u32 s{s_ks}, s{s_mt}, s{s_nt}      ; rho = (mt+nt) % 10   (max 29)
    s_cmp_ge_u32 s{s_ks}, 20
    s_cselect_b32 s34, 20, 0
    s_sub_u32 s{s_ks}, s{s_ks}, s34
    s_cmp_ge_u32 s{s_ks}, 10
    s_cselect_b32 s34, 10, 0
    s_sub_u32 s{s_ks}, s{s_ks}, s34
    s_cmp_lt_u32 s{s_w}, 4
    s_cbranch_scc1 {L}_comp
    ''')
    a(f'''
    s_sub_u32 s{s_w}, s{s_w}, 4
    v_lshrrev_b32 v3, 4, v{vlane}    ; lane>>4
    v_and_b32 v4, 7, v{vlane}
    v_xor_b32 v5, v4, v3
    v_xor_b32 v6, 4, v5
    v_lshrrev_b32 v2, 3, v{vlane}
    s_lshl_b32 s{s_m0A}, s{s_w}, 12
    s_add_u32 s{s_m0B}, s{s_m0A}, 65536
    s_lshl_b32 s34, s{s_mt}, 7
    s_lshl_b32 s35, s{s_w}, 5
    s_add_u32 s34, s34, s35
    v_add_u32 v2, s34, v2            ; row (i=0)
    s_movk_i32 s35, 1280
    v_mul_lo_u32 v2, v2, s35         ; row*1280
    v_lshl_add_u32 v5, v5, 4, v2
    v_lshl_add_u32 v6, v6, 4, v2
    ''')
    for i in range(4):
        a(f'v_add_u32 v{voffA[i]}, {i*(10240-1024)}, v{5 if i%2==0 else 6}')
    a(f'''
    s_lshl_b32 s34, s{s_w}, 4
    v_add_u32 v2, s34, v3            ; krow (i=0)
    s_movk_i32 s35, 3840
    v_mul_lo_u32 v2, v2, s35
    v_and_b32 v4, 15, v{vlane}
    v_lshlrev_b32 v5, 2, v3
    v_xor_b32 v4, v4, v5
    v_lshl_add_u32 v2, v4, 4, v2
    s_lshl_b32 s34, s{s_nt}, 8
    v_add_u32 v2, s34, v2
    ''')
    for i in range(4):
        a(f'v_add_u32 v{voffB[i]}, {i*(4*3840-1024)}, v2')
    a('s_waitcnt lgkmcnt(0)')
    srd(a, sX, 4, 5, 0, S*D*2)
    srd(a, sW, 6, 7, 0, D*1920*2)
    gray = [0, 1, 3, 2]
    def loader(role):
        R = f'{L}_{role}'
        vm = Vm(a)
        def dma_stage(pos):
            slot = gray[pos % 4]
            a(f's_lshl_b32 s{s_offA}, s{s_ks}, 7')
            a(f's_mul_i32 s{s_offB}, s{s_ks}, {64*3840}')
            a(f's_add_u32 m0, s{s_m0A}, {slot*16384}')
            a(f's_add_u32 s{s_ks}, s{s_ks}, 1')
            for i in range(4):
                a(f'buffer_load_dwordx4 v{voffA[i]}, s[{sX}:{sX+3}], s{s_offA} offen offset:{i*1024} lds'); vm.issue(pos)
            a(f's_add_u32 m0, s{s_m0B}, {slot*16384}')
            a(f's_cmp_eq_u32 s{s_ks}, 10')
            a(f's_cselect_b32 s{s_ks}, 0, s{s_ks}')
            for i in range(4):
                a(f'buffer_load_dwordx4 v{voffB[i]}, s[{sW}:{sW+3}], s{s_offB} offen offset:{i*1024} lds'); vm.issue(pos)
        dma_stage(0); dma_stage(1)
        if role in ('A0', 'F'):
            srd(a, sF, 10, 11, WS_FLAG, 512*128 + 4096)
            a(f'''
            s_add_u32 s34, s10, {WS_EPOCH}
            s_addc_u32 s35, s11, 0
            s_load_dword s{s_ep}, s[34:35], 0
            ''')
        if role == 'A0':
            srd(a, sP, 10, 11, WS_RP, 10*2048*12)
            a(f'''
            v_subrev_u32 v8, 10, v{vlane}
            s_lshl_b32 s34, s{s_mt}, 4
            v_add_u32 v9, s34, v{vlane}
            v_lshlrev_b32 v10, 4, v8
            v_add_u32 v10, s{s_nt}, v10
            v_cmp_gt_u32 vcc, 10, v{vlane}
            v_cndmask_b32 v9, v10, v9, vcc
            v_cmp_gt_u32 vcc, 20, v{vlane}
            s_lshl_b32 s34, s{s_mt}, 4
            v_mov_b32 v10, s34
            v_cndmask_b32 v9, v10, v9, vcc
            v_lshlrev_b32 v30, 7, v9
            v_lshlrev_b32 v31, 4, v{vlane}
            s_lshl_b32 s34, s{s_mt}, 10
            v_add_u32 v31, s34, v31
            v_lshlrev_b32 v32, 3, v{vlane}
            s_lshl_b32 s34, s{s_nt}, 9
            s_add_u32 s34, s34, {10*2048*8}
            v_add_u32 v32, s34, v32
            v_lshlrev_b32 v33, 3, v{vlane}
            v_add_u32 v33, {STAT}, v33
            ''')
        for st in range(NST):
            vm.wait(st)
            if st == 9 and role == 'A0':
                a(f'''
                s_barrier
                s_waitcnt vmcnt(0)
                ''')
                for k in range(1, 10):
                    pk(a, 'v_pk_add_f32', 64, vr(64,2), vr(64+4*k,2))
                    pk(a, 'v_pk_add_f32', 66, vr(66,2), vr(66+4*k,2))
                    pk(a, 'v_pk_add_f32', 104, vr(104,2), vr(104+2*k,2))
                for (sv, qv) in ((64, 65), (66, 67)):
                    a(f'''
                    v_mul_f32 v{sv}, {fbits(1.0/640)}, v{sv}
                    v_mul_f32 v{qv}, {fbits(1.0/640)}, v{qv}
                    v_fma_f32 v{qv}, -v{sv}, v{sv}, v{qv}
                    v_max_f32 v{qv}, 0, v{qv}
                    v_add_f32 v{qv}, {fbits(1e-5)}, v{qv}
                    v_rsq_f32 v{qv}, v{qv}
                    v_mul_f32 v{sv}, v{sv}, v{qv}
                    ''')
                a(f'''
                v_mov_b32 v68, v65
                v_mov_b32 v69, v67
                v_mov_b32 v70, v64
                v_mov_b32 v71, v66
                ds_write_b64 v33, v[68:69]
                ds_write_b64 v33, v[70:71] offset:512
                ds_write_b64 v33, v[104:105] offset:1024
                s_cmp_lg_u32 s2, 0
                s_cbranch_scc1 {R}_noep
                v_mov_b32 v20, 0
                v_mov_b32 v21, s34
                s_mov_b32 s35, {512*128}
                v_cmp_eq_u32 vcc, 0, v{vlane}
                s_and_saveexec_b64 s[42:43], vcc
                buffer_store_dword v21, v20, s[{sF}:{sF+3}], s35 offen sc1
                s_mov_b64 exec, s[42:43]
                {R}_noep:
                s_waitcnt lgkmcnt(0)
                s_barrier
                s_branch {L}_end
                ''')
                return
            a('s_barrier')
            if st == 3 and role == 'F':
                a(f'''
                s_waitcnt lgkmcnt(0)
                s_add_u32 s34, s{s_ep}, {EPOCH_INC}
                v_mov_b32 v8, 0
                v_mov_b32 v9, s34
                s_lshl_b32 s35, s{s_mt}, 4
                s_add_u32 s35, s35, s{s_nt}
                s_lshl_b32 s35, s35, 7
                v_cmp_eq_u32 vcc, 0, v{vlane}
                s_and_saveexec_b64 s[42:43], vcc
                buffer_store_dword v9, v8, s[{sF}:{sF+3}], s35 offen sc1
                s_mov_b64 exec, s[42:43]
                ''')
                vm.issue('flag')
            if st == 0: dma_stage(2); dma_stage(3)
            elif st + 3 < NST: dma_stage(st + 3)
            if st == 6 and role == 'A0':
                a(f'buffer_load_dword v13, v30, s[{sF}:{sF+3}], 0 offen sc1'); vm.issue('flag')
            if st == 8 and role == 'A0':
                vm.wait('flag')
                a(f'''
                s_waitcnt lgkmcnt(0)
                s_add_u32 s34, s{s_ep}, {EPOCH_INC}
                {R}_poll:
                v_cmp_ne_u32 vcc, s34, v13
                s_cbranch_vccz {R}_pollok
                s_sleep 1
                buffer_load_dword v13, v30, s[{sF}:{sF+3}], 0 offen sc1
                s_waitcnt vmcnt(0)
                s_branch {R}_poll
                {R}_pollok:
                ''')
                vm.q = []
                for k in range(10):
                    a(f's_mov_b32 s35, {k*2048*8}')
                    a(f'buffer_load_dwordx4 {vr(64+4*k,4)}, v31, s[{sP}:{sP+3}], s35 offen sc1')
                    a(f's_mov_b32 s36, {k*2048*4}')
                    a(f'buffer_load_dwordx2 {vr(104+2*k,2)}, v32, s[{sP}:{sP+3}], s36 offen sc1')
        if role == 'A1':
            sG = 44; vcol = 61
            srd(a, sS, 10, 11, WS_RS1, WS_END - WS_RS1)
            a(f'''
            s_barrier
            s_mov_b32 s40, 0xffff0000
            s_load_dwordx4 s[36:39], s[0:1], 32
            s_mov_b32 s34, s2                      ; j 0..239
            s_mul_i32 s35, s34, 1366
            s_lshr_b32 s35, s35, 16                ; part = j / 48
            s_mul_i32 s33, s35, 48
            s_sub_u32 s33, s34, s33                ; slab = j % 48
            s_cmp_ge_u32 s33, 24
            s_cselect_b32 s41, 24, 0
            s_sub_u32 s41, s33, s41
            s_lshl_b32 s41, s41, 7
            v_and_b32 v8, 7, v{vlane}
            v_lshrrev_b32 v9, 3, v{vlane}
            s_lshl_b32 s42, s35, 7
            v_add_u32 v9, s42, v9
            v_mul_u32_u24 v9, 3072, v9
            v_lshl_add_u32 v9, v8, 4, v9
            v_add_u32 v{vcol}, s41, v9
            s_mul_i32 s57, s35, {3072*4}
            s_lshl_b32 s41, s33, 8
            s_add_u32 s57, s57, s41
            s_add_u32 s57, s57, {16384+8192}
            s_waitcnt lgkmcnt(0)
            s_cmp_ge_u32 s33, 24
            s_cselect_b32 s36, s38, s36
            s_cselect_b32 s37, s39, s37
            ''')
            srd(a, sG, 36, 37, 0, D*F*2)
            for i in range(16):
                a(f's_mov_b32 s34, {i*8*3072}')
                a(f'buffer_load_dwordx4 {vr(64+4*i,4)}, v{vcol}, s[{sG}:{sG+3}], s34 offen')
            for j in range(8): a(f'v_mov_b32 v{24+j}, 0')
            for i in range(16):
                a(f's_waitcnt vmcnt({15-i})')
                for j in range(4):
                    d = 64 + 4*i + j
                    a(f'v_lshlrev_b32 v10, 16, v{d}')
                    a(f'v_and_b32 v11, s40, v{d}')
                    pk(a, 'v_pk_add_f32', 24+2*j, vr(24+2*j,2), vr(10,2))
            for j in range(8):
                a(f'v_add_f32_dpp v{24+j}, v{24+j}, v{24+j} row_ror:8 row_mask:0xf bank_mask:0xf')
            for j in range(8): a(f'v_mov_b32 v{40+j}, v{24+j}')
            for j in range(8): a(f'v_permlane16_swap_b32 v{40+j}, v{24+j}')
            for j in range(8): a(f'v_add_f32 v{24+j}, v{24+j}, v{40+j}')
            for j in range(8): a(f'v_mov_b32 v{40+j}, v{24+j}')
            for j in range(8): a(f'v_permlane32_swap_b32 v{40+j}, v{24+j}')
            for j in range(8): a(f'v_add_f32 v{24+j}, v{24+j}, v{40+j}')
            a(f'''
            v_cmp_gt_u32 vcc, 8, v{vlane}
            s_and_saveexec_b64 s[42:43], vcc
            v_lshlrev_b32 v10, 5, v{vlane}
            buffer_store_dwordx4 {vr(24,4)}, v10, s[{sS}:{sS+3}], s57 offen
            buffer_store_dwordx4 {vr(28,4)}, v10, s[{sS}:{sS+3}], s57 offen offset:16
            ''')
        a(f's_branch {L}_end')
    a(f'''
    s_cmp_eq_u32 s{s_w}, 1
    s_cbranch_scc1 {L}_roleA1
    s_cmp_eq_u32 s{s_w}, 2
    s_cbranch_scc1 {L}_roleF
    s_cmp_eq_u32 s{s_w}, 3
    s_cbranch_scc1 {L}_roleN
    ''')
    loader('A0')
    a.label(f'{L}_roleA1'); loader('A1')
    a.label(f'{L}_roleF'); loader('F')
    a.label(f'{L}_roleN'); loader('N')
    a.label(f'{L}_comp')
    a(f'''
    s_lshr_b32 s{s_wm}, s{s_w}, 1
    s_and_b32 s{s_wn}, s{s_w}, 1
    v_and_b32 v2, 31, v{vlane}       ; r
    v_lshrrev_b32 v3, 5, v{vlane}    ; hh
    s_lshl_b32 s36, s{s_wm}, 6       ; m base
    s_lshl_b32 s38, s{s_wn}, 6       ; n base
    v_add_u32 v4, s36, v2
    v_lshlrev_b32 v8, 2, v4
    v_add_u32 v{EL}, {STAT}, v8
    s_lshl_b32 s34, s{s_mt}, 7
    v_add_u32 v9, s34, v4
    v_lshlrev_b32 v{EL+4}, 3, v9
    s_lshl_b32 s34, s{s_ks}, 14
    v_add_u32 v{EL+4}, s34, v{EL+4}
    v_lshlrev_b32 v4, 7, v4
    v_bfe_u32 v5, v2, 1, 3           ; (r>>1)&7
    v_add_u32 v10, s38, v2
    v_lshlrev_b32 v12, 2, v10
    v_add_u32 v{EL+1}, {STAT+1024}, v12
    s_lshl_b32 s34, s{s_nt}, 9
    s_lshl_b32 s35, s{s_ks}, 13
    s_add_u32 s34, s34, s35
    s_add_u32 s34, s34, {10*2048*8}
    v_add_u32 v{EL+5}, s34, v12
    ''')
    aA1 = [132 + t for t in range(4)]
    for t in range(4):
        a(f'''
        v_add_u32 v6, {2*t}, v3
        v_xor_b32 v6, v6, v5
        v_lshl_add_u32 v{aA1[t]}, v6, 4, v4
        ''')
    a(f'''
    v_bfe_u32 v13, v{vlane}, 2, 2    ; rr
    v_and_b32 v4, 3, v{vlane}        ; cq
    v_bfe_u32 v5, v{vlane}, 4, 1     ; nhalf
    v_lshl_add_u32 v6, v3, 3, v13    ; 8hh+rr
    v_lshlrev_b32 v6, 8, v6
    v_add_u32 v6, 65536, v6
    v_and_b32 v7, 1, v4
    v_lshl_add_u32 v6, v7, 3, v6
    v_lshrrev_b32 v7, 1, v4
    v_lshl_add_u32 v7, v5, 1, v7
    v_lshl_add_u32 v6, v7, 4, v6
    s_lshl_b32 s34, s{s_wn}, 1
    s_add_u32 s35, s34, 1
    v_xor_b32 v7, s34, v13
    v_lshl_add_u32 v{aB[0]}, v7, 6, v6
    v_xor_b32 v7, s35, v13
    v_lshl_add_u32 v{aB[1]}, v7, 6, v6
    s_lshl_b32 s42, s{s_mt}, 2
    s_lshl_b32 s43, s{s_wm}, 1
    s_add_u32 s42, s42, s43
    s_mul_i32 s{s_t0}, s42, 1280
    s_add_u32 s{s_t1}, s{s_t0}, 1280
    s_mov_b32 s47, 81920
    s_mov_b32 s40, 0xffff0000
    s_cmp_lt_u32 s{s_nt}, 5
    s_cselect_b32 s{s_scale}, {fbits(QSCALE)}, 1.0
    s_mov_b32 s{s_it}, 0
    s_waitcnt lgkmcnt(0)
    ''')
    srd(a, sO, 10, 11, WS_Q, 3*32*81920)
    srd(a, sP, 10, 11, WS_RP, 10*2048*12)
    for r in range(64): a(f'v_mov_b32 v{68+r}, 0')
    SX = [TB, TB+4]; SQ = [TB+2, TB+6]; SW = [TB+8, TB+10]; TT = TB + 12
    for r in range(12): a(f'v_mov_b32 v{TB+r}, 0')
    a(f'''
    s_cmp_ge_u32 s{s_nt}, 10
    s_cbranch_scc1 {L}_v
    ''')
    def rd(t, b):
        o = []
        for i in range(2):
            o.append(f'ds_read_b128 {vr(XF(b,i),4)}, v{aA1[t]} offset:{i*4096}')
            for e in range(2):
                o.append(f'ds_read_b64_tr_b16 {vr(WF(b,i)+2*e,2)}, v{aB[i]} offset:{t*4096 + e*1024}')
        return o
    def stat_ops(b):
        o = []
        n = 0
        for i in range(2):
            for r in range(4):
                t0 = TT + 2*(n % 4); n += 1
                d = XF(b, i) + r
                o += [f'v_lshlrev_b32 v{t0}, 16, v{d}', f'v_and_b32 v{t0+1}, s40, v{d}',
                      f'v_pk_add_f32 {vr(SX[i],2)}, {vr(SX[i],2)}, {vr(t0,2)}',
                      f'v_pk_fma_f32 {vr(SQ[i],2)}, {vr(t0,2)}, {vr(t0,2)}, {vr(SQ[i],2)}']
            for r in range(4):
                t0 = TT + 2*(n % 4); n += 1
                d = WF(b, i) + r
                o += [f'v_lshlrev_b32 v{t0}, 16, v{d}', f'v_and_b32 v{t0+1}, s40, v{d}',
                      f'v_pk_add_f32 {vr(SW[i],2)}, {vr(SW[i],2)}, {vr(t0,2)}']
        return o
    def stage(V, gx, with_stats=False, vmw=False, stampi=None):
        for t in range(4):
            b = t & 1
            def MF(p, q):
                if V == 'qk': return f'v_mfma_f32_32x32x16_bf16 {vr(ACC(p,q),16)}, {vr(WF(b,p),4)}, {vr(XF(b,q),4)}, {vr(ACC(p,q),16)}'
                return f'v_mfma_f32_32x32x16_bf16 {vr(ACC(q,p),16)}, {vr(XF(b,q),4)}, {vr(WF(b,p),4)}, {vr(ACC(q,p),16)}'
            so = stat_ops(b) if with_stats else []
            q4 = len(so) // 4
            if t == 3:
                a('s_waitcnt lgkmcnt(0)' if not vmw else 's_waitcnt vmcnt(0) lgkmcnt(0)')
                a('s_barrier')
                if stampi is not None: P.stamp(stampi)
                a(MF(0, 0))
                for tt in range(4): a(f'v_xor_b32 v{aA1[tt]}, {gx}, v{aA1[tt]}')
                for j in range(2): a(f'v_xor_b32 v{aB[j]}, {gx}, v{aB[j]}')
                R = rd(0, b ^ 1)
                for o in R[:3]: a(o)
                for o in so[:q4]: a(o)
                a(MF(0, 1))
                for o in R[3:]: a(o)
                for o in so[q4:2*q4]: a(o)
                a(MF(1, 0))
                for o in so[2*q4:3*q4]: a(o)
                a(MF(1, 1))
                for o in so[3*q4:]: a(o)
            else:
                R = rd(t + 1, b ^ 1)
                if with_stats:
                    a('s_waitcnt lgkmcnt(0)')
                    a(MF(0, 0))
                    for o in R[:3]: a(o)
                    for o in so[:q4]: a(o)
                    a(MF(0, 1))
                    for o in R[3:]: a(o)
                    for o in so[q4:2*q4]: a(o)
                    a(MF(1, 0))
                    for o in so[2*q4:3*q4]: a(o)
                    a(MF(1, 1))
                    for o in so[3*q4:]: a(o)
                else:
                    a('s_waitcnt lgkmcnt(3)')
                    a(MF(0, 0))
                    for o in R[:3]: a(o)
                    a('s_waitcnt lgkmcnt(5)')
                    a(MF(0, 1))
                    for o in R[3:]: a(o)
                    a('s_waitcnt lgkmcnt(6)')
                    a(MF(1, 0)); a(MF(1, 1))
    def stat_store():
        for i in range(2):
            a(f'v_add_f32 v{SX[i]}, v{SX[i]}, v{SX[i]+1}')
            a(f'v_add_f32 v{SX[i]+1}, v{SQ[i]}, v{SQ[i]+1}')
            a(f'v_add_f32 v{SW[i]}, v{SW[i]}, v{SW[i]+1}')
        regs = [SX[0], SX[0]+1, SX[1], SX[1]+1, SW[0], SW[1]]
        for n, r in enumerate(regs): a(f'v_mov_b32 v{TT+n}, v{r}')
        for n, r in enumerate(regs): a(f'v_permlane32_swap_b32 v{TT+n}, v{r}')
        for n, r in enumerate(regs): a(f'v_add_f32 v{r}, v{r}, v{TT+n}')
        a(f'''
        v_cmp_gt_u32 vcc, 32, v{vlane}
        s_and_saveexec_b64 s[42:43], vcc
        buffer_store_dwordx2 {vr(SX[0],2)}, v{EL+4}, s[{sP}:{sP+3}], 0 offen sc1
        buffer_store_dwordx2 {vr(SX[1],2)}, v{EL+4}, s[{sP}:{sP+3}], 0 offen offset:256 sc1
        buffer_store_dword v{SW[0]}, v{EL+5}, s[{sP}:{sP+3}], 0 offen sc1
        buffer_store_dword v{SW[1]}, v{EL+5}, s[{sP}:{sP+3}], 0 offen offset:128 sc1
        s_mov_b64 exec, s[42:43]
        ''')
    fine = RT.get('fine')
    def mainloop(V):
        P.stamp(3)
        a('s_barrier')
        P.stamp(4)
        for o in rd(0, 0): a(o)
        stage(V, 0x4000, with_stats=True, stampi=8 if fine else None)
        stat_store()
        stage(V, 0x8000, stampi=9 if fine else None)
        stage(V, 0x4000, vmw=True, stampi=10 if fine else None)
        a.label(f'{L}_{V}_loop')
        stage(V, 0x8000)
        stage(V, 0x4000)
        a(f'''
        s_add_u32 s{s_it}, s{s_it}, 1
        s_cmp_lt_u32 s{s_it}, 3
        s_cbranch_scc1 {L}_{V}_loop
        ''')
        if fine: P.stamp(11)
        stage(V, 0x8000, stampi=12 if fine else None)
        P.stamp(5)
    a(f'''
    v_lshlrev_b32 v6, 4, v3           ; 4hh*4
    s_lshl_b32 s34, s38, 2
    v_add_u32 v7, s34, v6
    v_add_u32 v{EL+2}, {STAT+1024}, v7
    s_cmp_ge_u32 s{s_nt}, 5
    s_cselect_b32 s40, 1, 0
    s_mul_i32 s41, s40, 5
    s_sub_u32 s41, s{s_nt}, s41      ; nt5
    s_mul_i32 s40, s40, {32*81920}
    s_add_u32 s{s_t0}, s{s_t0}, s40
    s_add_u32 s{s_t1}, s{s_t1}, s40
    s_lshl_b32 s44, s41, 5
    s_lshr_b32 s45, s38, 2
    s_add_u32 s45, s45, s44
    s_add_u32 s46, s45, 8
    v_lshlrev_b32 v9, 4, v2          ; r*16
    v_lshlrev_b32 v10, 3, v2         ; r*8
    v_add_u32 v10, 1024, v10
    s_mov_b32 s40, 0xffff0000
    ''')
    for p in range(2):
        for a4 in range(4):
            a(f'''
            v_add_u32 v11, s{45+p}, v3
            v_add_u32 v11, {2*a4}, v11           ; qd
            v_mul_u32_u24 v12, 205, v11
            v_lshrrev_b32 v12, 10, v12           ; head
            v_mul_u32_u24 v13, 5, v12
            v_sub_u32 v13, v11, v13              ; dq
            v_lshrrev_b32 v14, 1, v13
            v_lshl_add_u32 v14, v14, 9, v9       ; (dq>>1)*512 + r*16
            v_and_b32 v15, 1, v13
            v_lshl_add_u32 v14, v15, 3, v14
            v_cmp_eq_u32 vcc, 4, v13
            v_cndmask_b32 v14, v14, v10, vcc
            v_mul_lo_u32 v12, v12, s47
            v_add_u32 v{EA+p*4+a4}, v14, v12
            ''')
    mainloop('qk')
    RS = [36, 38]; MR = [40, 42]
    CSB = TB
    a(f'''
    s_waitcnt lgkmcnt(0)
    ds_read_b32 v{RS[0]}, v{EL}
    ds_read_b32 v{MR[0]}, v{EL} offset:512
    ds_read_b32 v{RS[1]}, v{EL} offset:128
    ds_read_b32 v{MR[1]}, v{EL} offset:640
    ''')
    for p in range(2):
        for a4 in range(4):
            a(f'ds_read_b128 {vr(CSB+(p*4+a4)*4,4)}, v{EL+2} offset:{p*128 + a4*32}')
    a('s_waitcnt lgkmcnt(8)')
    for q in range(2):
        a(f'v_mul_f32 v{RS[q]}, s{s_scale}, v{RS[q]}')
        a(f'v_mul_f32 v{MR[q]}, s{s_scale}, v{MR[q]}')
    a('s_waitcnt lgkmcnt(0)')
    for p in range(2):
        for a4 in range(4):
            for q in range(2):
                A0 = ACC(p, q) + a4*4
                C0 = CSB + (p*4+a4)*4
                for h2 in range(2):
                    pk(a, 'v_pk_mul_f32', A0+2*h2, vr(A0+2*h2,2), vr(RS[q],2), mods='op_sel_hi:[1,0]')
                    pk(a, 'v_pk_fma_f32', A0+2*h2, vr(MR[q],2), vr(C0+2*h2,2), vr(A0+2*h2,2), mods='op_sel_hi:[0,1,1] neg_lo:[1,0,0] neg_hi:[1,0,0]')
                a(f'v_cvt_pk_bf16_f32 v{A0}, v{A0}, v{A0+1}')
                a(f'v_cvt_pk_bf16_f32 v{A0+1}, v{A0+2}, v{A0+3}')
                a(f'buffer_store_dwordx2 {vr(A0,2)}, v{EA+p*4+a4}, s[{sO}:{sO+3}], s{[s_t0,s_t1][q]} offen')
    a(f's_branch {L}_fin')
    a.label(f'{L}_v')
    a(f'''
    s_lshl_b32 s36, s36, 2
    v_lshlrev_b32 v8, 4, v3
    v_add_u32 v9, s36, v8
    v_add_u32 v{EL+2}, {STAT}, v9
    s_sub_u32 s41, s{s_nt}, 10
    s_lshl_b32 s41, s41, 7
    s_add_u32 s{s_t0}, s{s_t0}, {2*32*81920}
    s_add_u32 s{s_t1}, s{s_t1}, {2*32*81920}
    v_mul_u32_u24 v8, 320, v3       ; hh*320
    ''')
    for q in range(2):
        a(f'''
        v_add_u32 v12, s41, v10
        v_add_u32 v12, {32*q}, v12
        v_mul_u32_u24 v13, 3277, v12
        v_lshrrev_b32 v13, 16, v13          ; head
        v_mul_u32_u24 v14, 20, v13
        v_sub_u32 v14, v12, v14             ; d
        v_mul_lo_u32 v13, v13, s47
        v_lshl_add_u32 v14, v14, 4, v8
        v_add_u32 v{EA+q}, v14, v13
        ''')
    mainloop('v')
    RSB = TB; MRB = TB + 32
    CSV = [36, 38]
    a(f'''
    s_waitcnt lgkmcnt(0)
    ds_read_b32 v{CSV[0]}, v{EL+1}
    ds_read_b32 v{CSV[1]}, v{EL+1} offset:128
    ''')
    for p in range(2):
        for a4 in range(4):
            a(f'ds_read_b128 {vr(RSB+(p*4+a4)*4,4)}, v{EL+2} offset:{p*128 + a4*32}')
            a(f'ds_read_b128 {vr(MRB+(p*4+a4)*4,4)}, v{EL+2} offset:{512 + p*128 + a4*32}')
    a('s_waitcnt lgkmcnt(0)')
    for p in range(2):
        for q in range(2):
            for mf in range(2):
                A0 = ACC(p, q) + mf*8
                for h2 in range(4):
                    a4 = mf*2 + h2//2
                    o = (p*4+a4)*4 + (h2 & 1)*2
                    r = A0 + h2*2
                    pk(a, 'v_pk_mul_f32', r, vr(r,2), vr(RSB+o,2))
                    pk(a, 'v_pk_fma_f32', r, vr(MRB+o,2), vr(CSV[q],2), vr(r,2), mods='op_sel_hi:[1,0,1] neg_lo:[1,0,0] neg_hi:[1,0,0]')
                for k in range(4):
                    a(f'v_cvt_pk_bf16_f32 v{A0+k}, v{A0+2*k}, v{A0+2*k+1}')
                a(f'buffer_store_dwordx4 {vr(A0,4)}, v{EA+q}, s[{sO}:{sO+3}], s{[s_t0,s_t1][p]} offen offset:{mf*640}')
    a.label(f'{L}_fin')
    P.finish()
    a.label(f'{L}_end')
    rt_end(a, prof)
    a('s_endpgm')
    a.fix_hazards()
    for V in ('qk', 'v'):
        bad = a.check_loop(f'{L}_{V}_loop', f's_cbranch_scc1 {L}_{V}_loop')
        assert not bad, bad
    return kernel_wrap(name, a.text(), vgpr=224, sgpr=100), 131072 + 2048
```

```python
from common import *

def gen_k2(name='k2_kernel', prof=False, exp=''):
    a = Asm(); L = name
    P = Prof(a, prof, L)
    NW = 8
    sQ, sO = 12, 16
    s_w, s_head, s_qb = 24, 25, 26
    s_it = 27; s_vmask = 28
    s_t = 30
    vlane = 1
    aK1, aK2, aV = 2, 3, 4
    EA = [5, 6, 7]
    Q1 = 8; Q2 = 12
    K1 = [16, 24]; K2 = [20, 28]
    V1 = [32, 40]; V2 = [36, 44]
    S_ = [48, 64]; PP = [80, 88]; O_ = 96
    T = 112
    P.stamp(0); rt_begin(a, prof)
    a(f'''
    s_cmp_ge_u32 s2, 256
    s_cbranch_scc1 {L}_end
    s_load_dwordx2 s[8:9], s[0:1], 72
    v_and_b32 v{vlane}, 63, v0
    v_lshrrev_b32 v2, 6, v0
    v_readfirstlane_b32 s{s_w}, v2
    s_and_b32 s34, s2, 7
    s_lshl_b32 s34, s34, 2
    s_bfe_u32 s35, s2, 0x20003          ; (s2>>3)&3
    s_add_u32 s{s_head}, s34, s35
    s_lshr_b32 s{s_qb}, s2, 5
    s_mul_i32 s36, s{s_head}, 81920
    s_waitcnt lgkmcnt(0)
    ''')
    srd(a, sQ, 8, 9, WS_Q, 3*32*81920)
    a(f'''
    s_cmp_lt_u32 s{s_w}, {NW}
    s_cbranch_scc1 {L}_comp
    ''')
    vm = Vm(a)
    a(f'''
    v_lshlrev_b32 v2, 4, v{vlane}
    s_add_u32 s37, s36, {WS_K - WS_Q}
    s_add_u32 s38, s36, {WS_V - WS_Q}
    ''')
    def dma_chunk(c):
        for (sreg, lbase) in ((37, 0), (38, 81920)):
            for grp in range(3):
                n = 4 if grp < 2 else 2
                off = c*10240 + grp*4096
                a(f's_mov_b32 m0, {lbase + off}')
                a(f's_add_u32 s39, s{sreg}, {off}')
                for i in range(n):
                    a(f'buffer_load_dwordx4 v2, s[{sQ}:{sQ+3}], s39 offen offset:{i*1024} lds'); vm.issue(c)
    for c in range(3): dma_chunk(c)
    def retile_setup():
        a(f'''
        s_load_dwordx2 s[4:5], s[0:1], 16
        s_load_dwordx4 s[60:63], s[0:1], 32
        s_load_dwordx2 s[6:7], s[0:1], 48
        s_waitcnt lgkmcnt(0)
        ''')
        srd(a, 40, 4, 5, 0, 640*640*2)
        srd(a, 52, 6, 7, 0, 1536*640*2)
        srd(a, 56, 8, 9, WS_WT3, WS_RP - WS_WT3)
        a(f'''
        s_lshr_b32 s34, s2, 4            ; ft
        s_bfe_u32 s35, s2, 0x20002       ; sub
        s_and_b32 s33, s2, 3             ; sg
        s_cmp_lt_u32 s35, 2
        s_cselect_b32 s60, s60, s62
        s_cselect_b32 s61, s61, s63
        ''')
        srd(a, 44, 60, 61, 0, 640*1536*2)
        a(f'''
        s_and_b32 s39, s35, 1
        s_mul_i32 s39, s39, 96
        s_mul_i32 s37, s34, 192
        s_add_u32 s39, s39, s37
        ''')
        for i in range(6):
            a(f'''
            v_add_u32 v3, {64*i}, v{vlane}
            v_mul_u32_u24 v4, 10923, v3
            v_lshrrev_b32 v4, 16, v4
            v_mul_u32_u24 v5, 6, v4
            v_sub_u32 v5, v3, v5
            v_mul_u32_u24 v4, 3072, v4
            v_lshl_add_u32 v4, v5, 4, v4
            v_add_u32 v{8+i}, s39, v4
            ''')
        a(f'''
        s_mul_i32 s37, s34, {10*24576}
        s_mul_i32 s38, s35, 6144
        s_add_u32 s37, s37, s38
        s_add_u32 s37, s37, {WS_WT4 - WS_WT3}
        ''')
        a(f'''
        s_and_b32 s64, s2, 7             ; ct
        s_lshr_b32 s65, s2, 3            ; g
        s_and_b32 s66, s65, 1            ; mh
        s_bfe_u32 s67, s65, 0x10001      ; kh
        s_lshr_b32 s68, s65, 2           ; sg2
        s_mul_i32 s69, s66, 320
        s_mul_i32 s70, s64, 160
        ''')
        for i in range(5):
            a(f'''
            v_add_u32 v3, s69, v{vlane}
            v_add_u32 v3, {64*i}, v3
            v_mul_u32_u24 v4, 6554, v3
            v_lshrrev_b32 v4, 16, v4
            v_mul_u32_u24 v5, 10, v4
            v_sub_u32 v5, v3, v5
            v_mul_u32_u24 v4, 1280, v4
            v_lshl_add_u32 v4, v5, 4, v4
            v_add_u32 v{16+i}, s70, v4
            ''')
    def retile_k4(n):
        a(f'''
        s_add_u32 s71, s33, {4*n}
        s_cmp_ge_u32 s71, 10
        s_cbranch_scc1 {L}_rt4_{n}
        s_mul_i32 s72, s71, {64*3072}
        s_mul_i32 s73, s71, 24576
        s_add_u32 s73, s73, s37
        ''')
        for i in range(6): a(f'buffer_load_dwordx4 {vr(32+4*i,4)}, v{8+i}, s[44:47], s72 offen')
        a('s_waitcnt vmcnt(0)')
        for i in range(6):
            a(f'buffer_store_dwordx4 {vr(32+4*i,4)}, v2, s[56:59], s73 offen offset:{(i%4)*1024}')
            if i == 3: a('s_add_u32 s73, s73, 4096')
        a.label(f'{L}_rt4_{n}')
    def retile_n640(kind, n):
        K = 640 if kind == 3 else 1536
        NS_ = K // 128
        sr = 40 if kind == 3 else 52
        base = (WS_WT3 if kind == 3 else WS_WT5) - WS_WT3
        a(f'''
        s_add_u32 s71, s68, {8*n}
        s_cmp_ge_u32 s71, {NS_}
        s_cbranch_scc1 {L}_rt{kind}_{n}
        s_lshl_b32 s72, s71, 6
        s_mul_i32 s74, s67, {K//2}
        s_add_u32 s72, s72, s74
        s_mul_i32 s72, s72, 1280
        s_mul_i32 s73, s64, {NS_}
        s_add_u32 s73, s73, s71
        s_mul_i32 s73, s73, 20480
        s_mul_i32 s74, s67, 10240
        s_add_u32 s73, s73, s74
        s_mul_i32 s74, s66, 5120
        s_add_u32 s73, s73, s74
        s_add_u32 s73, s73, {base}
        ''')
        for i in range(5): a(f'buffer_load_dwordx4 {vr(64+4*i,4)}, v{16+i}, s[{sr}:{sr+3}], s72 offen')
        a('s_waitcnt vmcnt(0)')
        for i in range(5):
            a(f'buffer_store_dwordx4 {vr(64+4*i,4)}, v2, s[56:59], s73 offen offset:{(i%4)*1024}')
            if i == 3: a('s_add_u32 s73, s73, 4096')
        a.label(f'{L}_rt{kind}_{n}')
    jobs = {4: [retile_setup], 5: [lambda: retile_n640(3, 0), lambda: retile_k4(0)], 6: [lambda: retile_k4(1), lambda: retile_n640(5, 0)],
            7: [lambda: retile_k4(2), lambda: retile_n640(5, 1)]}
    for c in range(8):
        vm.wait(c)
        a('s_barrier')
        if c + 3 < 8: dma_chunk(c + 3)
        if 'nort' not in exp:
            for jb in jobs.get(c, []): jb()
            if c >= 5: vm.q = []
    rt_end(a, prof); a('s_endpgm')
    a.label(f'{L}_comp')
    srd(a, sO, 8, 9, WS_O, S*D*2)
    a(f'''
    s_lshl_b32 s34, s{s_qb}, 3
    s_add_u32 s34, s34, s{s_w}
    s_mul_i32 s35, s34, 1280
    s_add_u32 s35, s35, s36
    v_lshlrev_b32 v{aK1}, 4, v{vlane}
    v_and_b32 v{T}, 31, v{vlane}        ; r
    v_lshrrev_b32 v{T+1}, 5, v{vlane}   ; hh
    v_lshlrev_b32 v{aK2}, 3, v{T}
    v_add_u32 v{aK2}, 1024, v{aK2}
    buffer_load_dwordx4 {vr(Q1,4)}, v{aK1}, s[{sQ}:{sQ+3}], s35 offen
    buffer_load_dwordx2 {vr(Q2,2)}, v{aK2}, s[{sQ}:{sQ+3}], s35 offen
    v_mul_u32_u24 v{aV}, 320, v{T+1}
    v_lshl_add_u32 v{aV}, v{T}, 4, v{aV}
    v_add_u32 v{aV}, 81920, v{aV}
    v_cmp_gt_u32 s[{s_vmask}:{s_vmask+1}], 20, v{T}
    v_cmp_eq_u32 vcc, 20, v{T}
    v_mov_b32 v{T+2}, 0
    v_mov_b32 v{T+3}, 0x3f803f80
    v_cndmask_b32 v{T+4}, v{T+2}, v{T+3}, vcc
    v_cmp_eq_u32 vcc, 24, v{T}
    v_cndmask_b32 v{T+4}, v{T+4}, v{T+3}, vcc
    ''')
    for b in range(2):
        for r in range(4):
            a(f'v_mov_b32 v{V1[b]+r}, v{T+4}')
            a(f'v_mov_b32 v{V2[b]+r}, v{T+4}')
    a(f'''
    v_cmp_eq_u32 vcc, 0, v{T+1}
    v_mov_b32 v{T+3}, 0x00003f80
    v_cndmask_b32 v{T+5}, v{T+2}, v{T+3}, vcc
    ''')
    for b in range(2):
        a(f'v_mov_b32 v{K2[b]+2}, v{T+5}')
        a(f'v_mov_b32 v{K2[b]+3}, 0')
    a(f'v_mov_b32 v{Q2+2}, 0')
    a(f'v_mov_b32 v{Q2+3}, 0')
    for r in range(16): a(f'v_mov_b32 v{O_+r}, 0')
    for r in range(8): a(f'v_mov_b32 v{PP[1]+r}, 0')
    a(f'''
    s_mul_i32 s37, s{s_head}, 5
    v_and_b32 v{T+6}, 15, v{T}          ; q&15
    v_lshrrev_b32 v{T+7}, 4, v{T}       ; r>>4
    v_mul_u32_u24 v{T+7}, 20480, v{T+7}
    v_lshl_add_u32 v{T+7}, v{T+6}, 4, v{T+7}
    s_mul_i32 s{s_t}, s34, 40960
    ''')
    for G in range(3):
        a(f'''
        v_add_u32 v{T+8}, s37, v{T+1}
        v_add_u32 v{T+8}, {2*G}, v{T+8}          ; a
        v_lshrrev_b32 v{T+9}, 3, v{T+8}          ; kb
        v_lshl_add_u32 v{T+10}, v{T+9}, 10, v{T+7}
        v_and_b32 v{T+9}, 3, v{T+8}              ; g
        v_lshl_add_u32 v{T+10}, v{T+9}, 8, v{T+10}
        v_bfe_u32 v{T+9}, v{T+8}, 2, 1           ; e
        v_lshl_add_u32 v{EA[G]}, v{T+9}, 3, v{T+10}
        ''')
    a(f'''
    v_cmp_eq_u32 vcc, 1, v{T+1}
    v_mov_b32 v{T+8}, 0x7f000000
    v_cndmask_b32 v{EA[2]}, v{EA[2]}, v{T+8}, vcc
    s_waitcnt vmcnt(0)
    v_cndmask_b32 v{Q2}, v{Q2}, v{T+2}, vcc
    v_cndmask_b32 v{Q2+1}, v{Q2+1}, v{T+2}, vcc
    ''')
    P.stamp(3)
    a('s_barrier')
    P.stamp(4)
    def QK(sb, kb):
        return [f'v_mfma_f32_32x32x16_bf16 {vr(S_[sb],16)}, {vr(K1[kb],4)}, {vr(Q1,4)}, 0',
                f'v_mfma_f32_32x32x16_bf16 {vr(S_[sb],16)}, {vr(K2[kb],4)}, {vr(Q2,4)}, {vr(S_[sb],16)}']
    def PV(pb, vb):
        return [f'v_mfma_f32_32x32x16_bf16 {vr(O_,16)}, {vr(V1[vb],4)}, {vr(PP[pb],4)}, {vr(O_,16)}',
                f'v_mfma_f32_32x32x16_bf16 {vr(O_,16)}, {vr(V2[vb],4)}, {vr(PP[pb]+4,4)}, {vr(O_,16)}']
    def rdK(kb, off):
        return [f'ds_read_b128 {vr(K1[kb],4)}, v{aK1} offset:{off}', f'ds_read_b64 {vr(K2[kb],2)}, v{aK2} offset:{off}']
    def rdV(vb, off):
        return [f's_mov_b64 exec, s[{s_vmask}:{s_vmask+1}]',
                f'ds_read_b128 {vr(V1[vb],4)}, v{aV} offset:{off}', f'ds_read_b128 {vr(V2[vb],4)}, v{aV} offset:{off+640}',
                's_mov_b64 exec, -1']
    def setm(mreg):
        a(f'''
        v_sub_f32 v{mreg}, 0, v{mreg}
        v_cvt_pk_bf16_f32 v{mreg}, v{mreg}, 0
        v_and_b32 v{mreg}, 0xffff, v{mreg}
        v_cmp_gt_u32 vcc, 32, v{vlane}
        v_cndmask_b32 v{Q2+2}, 0, v{mreg}, vcc
        ''')
    def maxtree(sb, dst, init=False):
        s = S_[sb]
        if init:
            a(f'v_max3_f32 v{dst}, v{s}, v{s+1}, v{s+2}'); rest = list(range(3, 16))
        else: rest = list(range(0, 16))
        while rest:
            if len(rest) >= 2:
                a(f'v_max3_f32 v{dst}, v{dst}, v{s+rest[0]}, v{s+rest[1]}'); rest = rest[2:]
            else:
                a(f'v_max_f32 v{dst}, v{dst}, v{s+rest[0]}'); rest = rest[1:]
    def crosshalf_max(dst, tmp):
        a(f'''
        v_mov_b32 v{tmp}, v{dst}
        v_permlane32_swap_b32 v{tmp}, v{dst}
        v_max_f32 v{dst}, v{dst}, v{tmp}
        ''')
    for o in rdK(0, 0) + rdK(1, 1280): a(o)
    a('s_waitcnt lgkmcnt(2)')
    for o in QK(0, 0): a(o)
    maxtree(0, T, init=True)
    crosshalf_max(T, T+2)
    setm(T)
    for o in QK(0, 0): a(o)
    a(f's_mov_b32 s{s_it}, 0')
    def phase(sb, mf_pv, mf_qk, reads):
        s = S_[sb]; p = PP[sb]
        ev = []
        for i in range(16):
            ev.append(f'v_exp_f32 v{s+i}, v{s+i}')
            if i >= 3 and i % 2 == 1:
                k = (i - 3) // 2
                ev.append(f'v_cvt_pk_bf16_f32 v{p+k}, v{s+2*k}, v{s+2*k+1}')
        ev.append(f'v_cvt_pk_bf16_f32 v{p+7}, v{s+14}, v{s+15}')
        pos = {1: mf_qk[0], 7: mf_qk[1], 13: mf_pv[0], 19: mf_pv[1]}
        rpos = 3
        if 'nomfma' in exp: pos = {}
        if 'noqk' in exp: pos = {13: mf_pv[0], 19: mf_pv[1]}
        if 'nopv' in exp: pos = {1: mf_qk[0], 7: mf_qk[1]}
        if 'noreads' in exp: reads = []
        if 'noexec' in exp: reads = [r for r in reads if not r.startswith('s_mov_b64')]
        if 'nocvt' in exp: ev = [e for e in ev if 'cvt' not in e]
        if 'expsep' in exp: ev = [e.replace(f'v_exp_f32 v', 'v_exp_f32 v1', 1) if False else e for e in ev]
        for i, e in enumerate(ev):
            if i in pos: a(pos[i])
            if i == rpos:
                for o in reads: a(o)
            a(e)
    import re as _re
    mm = _re.search(r'unr(\d+)', exp); UNR = int(mm.group(1)) if mm else 1
    mm = _re.search(r'al(\d+)', exp); AL = int(mm.group(1)) if mm else 0
    mm = _re.search(r'pad(\d+)', exp); PAD = int(mm.group(1)) if mm else 0
    if AL: a(f'.p2align {AL}')
    for i in range(PAD): a('s_nop 0')
    a.label(f'{L}_loop')
    for j in range(UNR):
        if UNR == 1:
            a(f'''
            s_and_b32 s34, s{s_it}, 3
            s_cmp_lg_u32 s34, 3
            s_cbranch_scc1 {L}_nob
            s_barrier
            {L}_nob:
            ''')
        elif UNR == 2:
            if j == 1:
                a(f'''
                s_bitcmp1_b32 s{s_it}, 0
                s_cbranch_scc0 {L}_nob
                s_barrier
                {L}_nob:
                ''')
        elif UNR == 4:
            if j == 3: a('s_barrier')
        a('s_waitcnt lgkmcnt(0)')
        o = j * 2560
        phase(0, PV(1, 1), QK(1, 1), rdK(0, o+2560) + rdV(0, o))
        a('s_waitcnt lgkmcnt(0)')
        phase(1, PV(0, 0), QK(0, 0), rdK(1, o+3840) + rdV(1, o+1280))
    a(f'''
    v_add_u32 v{aK1}, {2560*UNR}, v{aK1}
    v_add_u32 v{aK2}, {2560*UNR}, v{aK2}
    v_add_u32 v{aV}, {2560*UNR}, v{aV}
    s_add_u32 s{s_it}, s{s_it}, 1
    s_cmp_lt_u32 s{s_it}, {32//UNR}
    s_cbranch_scc1 {L}_loop
    s_waitcnt lgkmcnt(0)
    ''')
    for o in PV(1, 1): a(o)
    P.stamp(5)
    a.label(f'{L}_epi')
    a(f'''
    v_cmp_gt_u32 s[34:35], 32, v{vlane}
    v_cndmask_b32 v{T}, v{O_+8}, v{O_+12}, s[34:35]
    v_mov_b32 v{T+5}, {fbits(2.0**30)}
    v_cmp_nle_f32 vcc, v{T}, v{T+5}
    s_cbranch_vccnz {L}_slow
    ''')
    a.label(f'{L}_store')
    a(f'v_rcp_f32 v{T}, v{T}')
    for G in range(3):
        o = O_ + 4*G
        for h2 in range(2):
            pk(a, 'v_pk_mul_f32', o+2*h2, vr(o+2*h2,2), vr(T,2), mods='op_sel_hi:[1,0]')
        a(f'v_cvt_pk_bf16_f32 v{o}, v{o}, v{o+1}')
        a(f'v_cvt_pk_bf16_f32 v{o+1}, v{o+2}, v{o+3}')
        a(f'buffer_store_dwordx2 {vr(o,2)}, v{EA[G]}, s[{sO}:{sO+3}], s{s_t} offen')
    a(f's_branch {L}_fin')
    a.label(f'{L}_slow')
    a(f'''
    v_lshlrev_b32 v{aK1}, 4, v{vlane}
    v_and_b32 v{T+4}, 31, v{vlane}
    v_lshlrev_b32 v{aK2}, 3, v{T+4}
    v_add_u32 v{aK2}, 1024, v{aK2}
    v_mov_b32 v{Q2+2}, 0
    v_mov_b32 v{T}, 0xff800000
    s_mov_b32 s{s_it}, 0
    {L}_sl1:
    ''')
    for o in rdK(0, 0): a(o)
    a('s_waitcnt lgkmcnt(0)')
    for o in QK(0, 0): a(o)
    maxtree(0, T)
    a(f'''
    v_add_u32 v{aK1}, 1280, v{aK1}
    v_add_u32 v{aK2}, 1280, v{aK2}
    s_add_u32 s{s_it}, s{s_it}, 1
    s_cmp_lt_u32 s{s_it}, 64
    s_cbranch_scc1 {L}_sl1
    ''')
    crosshalf_max(T, T+2)
    setm(T)
    a(f'''
    v_lshlrev_b32 v{aK1}, 4, v{vlane}
    v_lshlrev_b32 v{aK2}, 3, v{T+4}
    v_add_u32 v{aK2}, 1024, v{aK2}
    v_lshrrev_b32 v{T+5}, 5, v{vlane}
    v_mul_u32_u24 v{aV}, 320, v{T+5}
    v_lshl_add_u32 v{aV}, v{T+4}, 4, v{aV}
    v_add_u32 v{aV}, 81920, v{aV}
    s_mov_b32 s{s_it}, 0
    ''')
    for r in range(16): a(f'v_mov_b32 v{O_+r}, 0')
    a.label(f'{L}_sl2')
    for o in rdK(0, 0) + rdV(0, 0): a(o)
    a('s_waitcnt lgkmcnt(0)')
    for o in QK(0, 0): a(o)
    for i in range(16): a(f'v_exp_f32 v{S_[0]+i}, v{S_[0]+i}')
    for k in range(8): a(f'v_cvt_pk_bf16_f32 v{PP[0]+k}, v{S_[0]+2*k}, v{S_[0]+2*k+1}')
    for o in PV(0, 0): a(o)
    a(f'''
    v_add_u32 v{aK1}, 1280, v{aK1}
    v_add_u32 v{aK2}, 1280, v{aK2}
    v_add_u32 v{aV}, 1280, v{aV}
    s_add_u32 s{s_it}, s{s_it}, 1
    s_cmp_lt_u32 s{s_it}, 64
    s_cbranch_scc1 {L}_sl2
    s_nop 15
    v_cmp_gt_u32 s[34:35], 32, v{vlane}
    v_cndmask_b32 v{T}, v{O_+8}, v{O_+12}, s[34:35]
    s_branch {L}_store
    ''')
    a.label(f'{L}_fin')
    P.finish()
    a.label(f'{L}_end')
    rt_end(a, prof)
    a('s_endpgm')
    a.fix_hazards()
    for lab in ('loop', 'sl1', 'sl2'):
        bad = a.check_loop(f'{L}_{lab}', f's_cbranch_scc1 {L}_{lab}')
        assert not bad, bad
    return kernel_wrap(name, a.text(), vgpr=128, sgpr=100), 163840
```

```python
from common import *

def gen_n640(name, mode, prof=False, exp=''):
    a = Asm(); L = name
    P = Prof(a, prof, L)
    K = 640 if mode == 'wo' else 1536
    KB = K // 32
    NST = K // 128
    KH = K // 2
    sA, sB, sR, sO, sS = 12, 16, 20, 40, 44
    s_mt, s_ct, s_w, s_mh, s_kh = 24, 25, 26, 27, 28
    s_it, s_dA, s_dB, s_slot = 29, 30, 31, 32
    vlane = 1
    ASL = 16384; BSL = 20480; BBASE = 65536
    EXB = BBASE + ((NST - 2) % 4) * BSL
    P.stamp(0); rt_begin(a, prof)
    a(f'''
    s_cmp_ge_u32 s2, 256
    s_cbranch_scc1 {L}_end
    s_load_dwordx2 s[4:5], s[0:1], {KA['wo'] if mode == 'wo' else KA['wd']}
    s_load_dwordx2 s[6:7], s[0:1], {KA['x'] if mode == 'wo' else KA['out']}
    s_load_dwordx2 s[8:9], s[0:1], 72
    v_and_b32 v{vlane}, 63, v0
    v_lshrrev_b32 v2, 6, v0
    v_readfirstlane_b32 s{s_w}, v2
    s_and_b32 s34, s2, 7             ; x8
    s_lshr_b32 s35, s2, 3            ; i 0..31
    s_and_b32 s{s_ct}, s34, 1
    s_lshl_b32 s{s_ct}, s{s_ct}, 2
    s_and_b32 s36, s35, 3
    s_add_u32 s{s_ct}, s{s_ct}, s36
    s_lshr_b32 s{s_mt}, s34, 1
    s_lshl_b32 s{s_mt}, s{s_mt}, 3
    s_lshr_b32 s36, s35, 2
    s_add_u32 s{s_mt}, s{s_mt}, s36
    s_cmp_lt_u32 s{s_w}, 4
    s_cbranch_scc1 {L}_comp
    ''')
    voffB = [8, 9, 10, 11, 12]; vA = [13, 14]
    a(f'''
    s_sub_u32 s{s_w}, s{s_w}, 4
    s_lshr_b32 s{s_kh}, s{s_w}, 1
    s_and_b32 s{s_mh}, s{s_w}, 1
    s_lshl_b32 s34, s{s_mt}, 2
    s_lshl_b32 s35, s{s_mh}, 1
    s_add_u32 s34, s34, s35
    s_mul_i32 s34, s34, {KB*1024}
    s_mul_i32 s35, s{s_kh}, {KB//2*1024}
    s_add_u32 s34, s34, s35
    v_lshlrev_b32 v2, 4, v{vlane}
    v_add_u32 v{vA[0]}, s34, v2
    v_add_u32 v{vA[1]}, {KB*1024 - 2048}, v{vA[0]}
    s_lshl_b32 s36, s{s_kh}, 13
    s_lshl_b32 s37, s{s_mh}, 12
    s_add_u32 s36, s36, s37              ; m0A base
    s_mul_i32 s37, s{s_kh}, 10240
    s_mul_i32 s33, s{s_mh}, 5120
    s_add_u32 s37, s37, s33
    s_mul_i32 s39, s{s_ct}, {NST*20480}
    s_add_u32 s39, s39, s37
    s_add_u32 s37, s37, {BBASE}          ; m0B base
    ''')
    a('s_waitcnt lgkmcnt(0)')
    srd(a, sA, 8, 9, WS_O if mode == 'wo' else WS_ACT, S*K*2)
    srd(a, sB, 8, 9, WS_WT3 if mode == 'wo' else WS_WT5, 8*NST*20480)
    vm = Vm(a)
    def dma_stage(st):
        slot = st % 4
        a(f's_add_u32 m0, s36, {slot*ASL}')
        a(f's_movk_i32 s34, {st*2048}')
        for i in range(4):
            a(f'buffer_load_dwordx4 v{vA[i//2]}, s[{sA}:{sA+3}], s34 offen offset:{i*1024} lds'); vm.issue(st)
        a(f's_add_u32 m0, s37, {slot*BSL}')
        a(f's_add_u32 s35, s39, {st*20480}')
        for i in range(4):
            a(f'buffer_load_dwordx4 v2, s[{sB}:{sB+3}], s35 offen offset:{i*1024} lds'); vm.issue(st)
        a(f's_add_u32 m0, s37, {slot*BSL + 4096}')
        a(f's_add_u32 s35, s35, 4096')
        a(f'buffer_load_dwordx4 v2, s[{sB}:{sB+3}], s35 offen lds'); vm.issue(st)
    dma_stage(0); dma_stage(1)
    for st in range(NST):
        vm.wait(st)
        a('s_barrier')
        if st == 0:
            for x in (2, 3):
                if x < NST: dma_stage(x)
        elif st + 3 < NST: dma_stage(st + 3)
    rt_end(a, prof); a('s_endpgm')
    a.label(f'{L}_comp')
    aX, aW1, aW2 = 2, 3, 4
    XF = lambda b, i: 8 + b*8 + i*4
    WF = lambda b, s: 24 + b*20 + s*4
    ACC = lambda s, i: 64 + (s*2 + i)*4
    RES = lambda j, i: 104 + (j*2 + i)*2
    EAo = 116; EAr = 117; ESt = 118; aEw = 119; aEr = 120
    T = 124
    a(f'''
    s_lshr_b32 s{s_mh}, s{s_w}, 1
    s_and_b32 s{s_kh}, s{s_w}, 1
    v_lshlrev_b32 v{aX}, 4, v{vlane}
    s_lshl_b32 s34, s{s_kh}, 13
    s_lshl_b32 s35, s{s_mh}, 12
    s_add_u32 s34, s34, s35
    v_add_u32 v{aX}, s34, v{aX}
    v_lshrrev_b32 v{T}, 4, v{vlane}        ; g
    v_bfe_u32 v{T+1}, v{vlane}, 2, 2       ; rr
    v_and_b32 v{T+2}, 3, v{vlane}          ; cq
    v_lshl_add_u32 v{T+3}, v{T}, 2, v{T+1} ; 4g+rr
    v_mul_u32_u24 v{T+3}, 160, v{T+3}
    v_lshl_add_u32 v{T+3}, v{T+2}, 3, v{T+3}
    s_mul_i32 s34, s{s_kh}, {10240 + 96}
    s_add_u32 s34, s34, {BBASE}
    v_add_u32 v{aW1}, s34, v{T+3}
    s_mul_i32 s34, s{s_kh}, {10240 - 64}
    s_add_u32 s34, s34, {BBASE}
    v_add_u32 v{aW2}, s34, v{T+3}
    v_and_b32 v{T+4}, 15, v{vlane}         ; m
    s_lshl_b32 s34, s{s_mt}, 6
    s_lshl_b32 s35, s{s_mh}, 5
    s_add_u32 s34, s34, s35
    v_add_u32 v{T+5}, s34, v{T+4}
    v_mul_u32_u24 v{T+6}, 1280, v{T+5}
    v_lshl_add_u32 v{T+6}, v{T}, 3, v{T+6}
    s_mul_i32 s35, s{s_ct}, 160
    v_add_u32 v{T+6}, s35, v{T+6}
    v_lshlrev_b32 v{T+7}, 4, v{vlane}
    s_lshr_b32 s35, s34, 4
    s_mul_i32 s35, s35, 20480
    v_add_u32 v{T+7}, s35, v{T+7}
    s_mul_i32 s36, s{s_ct}, 5
    s_waitcnt lgkmcnt(0)
    ''')
    if mode == 'wo':
        srd(a, sR, 6, 7, 0, S*D*2)
        srd(a, sO, 8, 9, WS_H, S*D*2)
        srd(a, sS, 8, 9, WS_ST, S*16*8)
        a(f'v_mov_b32 v{EAr}, v{T+6}'); a(f'v_mov_b32 v{EAo}, v{T+7}')
    else:
        srd(a, sR, 8, 9, WS_H, S*D*2)
        srd(a, sO, 6, 7, 0, S*D*2)
        a(f'v_mov_b32 v{EAr}, v{T+7}'); a(f'v_mov_b32 v{EAo}, v{T+6}')
    s_nat = 48; s_fm = 54
    for j in range(3):
        a(f'''
        s_mul_i32 s34, s{s_kh}, 3
        s_add_u32 s34, s34, {j}              ; s
        s_lshl_b32 s{s_nat+j}, s34, 5
        s_add_u32 s34, s34, s36              ; T16
        s_lshr_b32 s35, s34, 1
        s_lshl_b32 s35, s35, 10
        s_and_b32 s34, s34, 1
        s_lshl_b32 s34, s34, 3
        s_add_u32 s{s_fm+j}, s35, s34
        ''')
    s_res = s_nat if mode == 'wo' else s_fm
    s_out = s_fm if mode == 'wo' else s_nat
    for j in range(3):
        for i in range(2):
            a(f's_add_u32 s34, s{s_res+j}, {i*20480}')
            a(f'buffer_load_dwordx2 {vr(RES(j,i),2)}, v{EAr}, s[{sR}:{sR+3}], s34 offen')
    for r in range(40): a(f'v_mov_b32 v{64+r}, 0')
    a(f'''
    s_mul_i32 s34, s{s_mh}, 10240
    s_add_u32 s34, s34, {EXB}
    s_cmp_eq_u32 s{s_kh}, 0
    s_movk_i32 s33, 4096
    s_cselect_b32 s35, {(-2048) & 0xffffffff}, s33
    s_cselect_b32 s33, 4096, 0
    s_add_u32 s35, s35, s34
    s_add_u32 s33, s33, s34
    v_lshlrev_b32 v{T}, 4, v{vlane}
    v_add_u32 v{aEw}, s35, v{T}
    v_add_u32 v{aEr}, s33, v{T}
    v_lshlrev_b32 v{ESt}, 7, v{T+5}
    s_lshl_b32 s34, s{s_ct}, 4
    s_lshl_b32 s35, s{s_kh}, 3
    s_add_u32 s34, s34, s35
    v_add_u32 v{ESt}, s34, v{ESt}
    s_mov_b32 s{s_it}, 0
    s_mov_b32 s{s_slot}, 0
    s_mov_b32 s58, {ASL}
    s_mov_b32 s59, {(-3*ASL) & 0xffffffff}
    s_mov_b32 s60, {BSL}
    s_mov_b32 s61, {(-3*BSL) & 0xffffffff}
    ''')
    def rd(t, b):
        o = []
        for i in range(2):
            o.append(f'ds_read_b128 {vr(XF(b,i),4)}, v{aX} offset:{(i*2+t)*1024}')
        for s in range(5):
            for e in range(2):
                o.append(f'ds_read_b64_tr_b16 {vr(WF(b,s)+2*e,2)}, v{aW1 if s < 2 else aW2} offset:{(32*t+16*e)*160 + s*32}')
        return o
    P.stamp(3)
    a('s_barrier')
    P.stamp(4)
    for o in rd(0, 0): a(o)
    UNR = NST if mode == 'wo' else 2
    if UNR < NST: a.label(f'{L}_loop')
    for u in range(UNR):
      for t in range(2):
        b = t
        if t == 1:
            a('s_waitcnt lgkmcnt(0)')
            last = (UNR == NST and u == NST - 1)
            if UNR == NST:
                if not last: a('s_barrier')
                nxt = (u + 1) % 4
                dA = ASL if nxt else -3*ASL; dB = BSL if nxt else -3*BSL
                a(f'v_add_u32 v{aX}, {dA & 0xffffffff}, v{aX}')
                a(f'v_add_u32 v{aW1}, {dB & 0xffffffff}, v{aW1}')
                a(f'v_add_u32 v{aW2}, {dB & 0xffffffff}, v{aW2}')
            else:
                if u == UNR - 1:
                    a(f'''
                    s_cmp_eq_u32 s{s_it}, {NST//UNR - 1}
                    s_cbranch_scc1 {L}_nob
                    s_barrier
                    {L}_nob:
                    ''')
                    a(f'''
                    s_bitcmp1_b32 s{s_it}, 0
                    s_cselect_b32 s{s_dA}, s59, s58
                    s_cselect_b32 s{s_dB}, s61, s60
                    v_add_u32 v{aX}, s{s_dA}, v{aX}
                    v_add_u32 v{aW1}, s{s_dB}, v{aW1}
                    v_add_u32 v{aW2}, s{s_dB}, v{aW2}
                    ''')
                else:
                    a('s_barrier')
                    a(f'v_add_u32 v{aX}, {ASL}, v{aX}')
                    a(f'v_add_u32 v{aW1}, {BSL}, v{aW1}')
                    a(f'v_add_u32 v{aW2}, {BSL}, v{aW2}')
        R = rd(1, 1) if t == 0 else rd(0, 0)
        n = 0
        for s in range(5):
            for i in range(2):
                if t == 0 and i == 0:
                    a(f's_waitcnt lgkmcnt({8 - 2*s + min(12, 2*n)})')
                a(f'v_mfma_f32_16x16x32_bf16 {vr(ACC(s,i),4)}, {vr(WF(b,s),4)}, {vr(XF(b,i),4)}, {vr(ACC(s,i),4)}')
                for o in R[2*n:2*n+2]: a(o)
                n += 1
    if UNR < NST:
        a(f'''
        s_add_u32 s{s_it}, s{s_it}, 1
        s_cmp_lt_u32 s{s_it}, {NST//UNR}
        s_cbranch_scc1 {L}_loop
        ''')
    P.stamp(5)
    a(f'''
    s_cmp_eq_u32 s{s_kh}, 0
    s_cbranch_scc1 {L}_skipw
    ''')
    for i in range(2): a(f'ds_write_b128 v{aEw}, {vr(ACC(2,i),4)} offset:{i*1024}')
    a.label(f'{L}_skipw')
    for s in (3, 4):
        for i in range(2): a(f'ds_write_b128 v{aEw}, {vr(ACC(s,i),4)} offset:{(s-2)*2048 + i*1024}')
    a('s_waitcnt lgkmcnt(0)')
    a('s_barrier')
    EXR = lambda j, i: 8 + (j*2+i)*4
    for j in range(3):
        for i in range(2): a(f'ds_read_b128 {vr(EXR(j,i),4)}, v{aEr} offset:{j*2048 + i*1024}')
    a('s_waitcnt vmcnt(0) lgkmcnt(0)')
    SUM = [32, 34]; SQ = [36, 38]
    if mode == 'wo':
        for r in range(32, 40): a(f'v_mov_b32 v{r}, 0')
    for j in range(3):
        if j == 2:
            a(f's_cmp_lg_u32 s{s_kh}, 0')
            a(f's_cbranch_scc1 {L}_skip2')
        for i in range(2):
            A0 = ACC(j, i); E0 = EXR(j, i); R0 = RES(j, i)
            pk(a, 'v_pk_add_f32', A0, vr(A0,2), vr(E0,2))
            pk(a, 'v_pk_add_f32', A0+2, vr(A0+2,2), vr(E0+2,2))
            a(f'v_lshlrev_b32 v{E0}, 16, v{R0}')
            a(f'v_and_b32 v{E0+1}, 0xffff0000, v{R0}')
            a(f'v_lshlrev_b32 v{E0+2}, 16, v{R0+1}')
            a(f'v_and_b32 v{E0+3}, 0xffff0000, v{R0+1}')
            pk(a, 'v_pk_add_f32', A0, vr(A0,2), vr(E0,2))
            pk(a, 'v_pk_add_f32', A0+2, vr(A0+2,2), vr(E0+2,2))
            a(f'v_cvt_pk_bf16_f32 v{A0}, v{A0}, v{A0+1}')
            a(f'v_cvt_pk_bf16_f32 v{A0+1}, v{A0+2}, v{A0+3}')
            a(f's_add_u32 s34, s{s_out+j}, {i*20480}')
            a(f'buffer_store_dwordx2 {vr(A0,2)}, v{EAo}, s[{sO}:{sO+3}], s34 offen')
            if mode == 'wo':
                a(f'v_lshlrev_b32 v{E0}, 16, v{A0}')
                a(f'v_and_b32 v{E0+1}, 0xffff0000, v{A0}')
                a(f'v_lshlrev_b32 v{E0+2}, 16, v{A0+1}')
                a(f'v_and_b32 v{E0+3}, 0xffff0000, v{A0+1}')
                pk(a, 'v_pk_add_f32', SUM[i], vr(SUM[i],2), vr(E0,2))
                pk(a, 'v_pk_fma_f32', SQ[i], vr(E0,2), vr(E0,2), vr(SQ[i],2))
                pk(a, 'v_pk_add_f32', SUM[i], vr(SUM[i],2), vr(E0+2,2))
                pk(a, 'v_pk_fma_f32', SQ[i], vr(E0+2,2), vr(E0+2,2), vr(SQ[i],2))
    a.label(f'{L}_skip2')
    if mode == 'wo':
        for i in range(2):
            a(f'v_add_f32 v{40+2*i}, v{SUM[i]}, v{SUM[i]+1}')
            a(f'v_add_f32 v{41+2*i}, v{SQ[i]}, v{SQ[i]+1}')
        for r in range(4): a(f'v_mov_b32 v{44+r}, v{40+r}')
        for r in range(4): a(f'v_permlane16_swap_b32 v{44+r}, v{40+r}')
        for r in range(4): a(f'v_add_f32 v{40+r}, v{40+r}, v{44+r}')
        for r in range(4): a(f'v_mov_b32 v{44+r}, v{40+r}')
        for r in range(4): a(f'v_permlane32_swap_b32 v{44+r}, v{40+r}')
        for r in range(4): a(f'v_add_f32 v{40+r}, v{40+r}, v{44+r}')
        a(f'''
        v_cmp_gt_u32 vcc, 16, v{vlane}
        s_and_saveexec_b64 s[34:35], vcc
        buffer_store_dwordx2 v[40:41], v{ESt}, s[{sS}:{sS+3}], 0 offen
        buffer_store_dwordx2 v[42:43], v{ESt}, s[{sS}:{sS+3}], 0 offen offset:2048
        s_mov_b64 exec, s[34:35]
        ''')
    P.finish()
    a.label(f'{L}_end')
    rt_end(a, prof)
    a('s_endpgm')
    a.fix_hazards()
    if mode != 'wo':
        bad = a.check_loop(f'{L}_loop', f's_cbranch_scc1 {L}_loop')
        assert not bad, bad
    return kernel_wrap(name, a.text(), vgpr=136, sgpr=100), 65536 + 4*20480
```

```python
from common import *

def gen_k4(name='k4_kernel', prof=False, exp=''):
    a = Asm(); L = name
    P = Prof(a, prof, L)
    NST = 10
    sA, sG, sU, sO, sS, sC = 12, 16, 20, 40, 44, 48
    s_mt, s_ft, s_w, s_wm, s_wn = 24, 25, 26, 27, 28
    s_it, s_dA, s_dB, s_slot = 29, 30, 31, 32
    vlane = 1
    ASL = 16384; BSL = 24576; BBASE = 65536
    STAT = ((NST - 2) % 4) * ASL
    P.stamp(0); rt_begin(a, prof)
    a(f'''
    s_cmp_ge_u32 s2, 256
    s_cbranch_scc1 {L}_end
    s_load_dwordx4 s[4:7], s[0:1], 32
    s_load_dwordx2 s[8:9], s[0:1], 72
    v_and_b32 v{vlane}, 63, v0
    v_lshrrev_b32 v2, 6, v0
    v_readfirstlane_b32 s{s_w}, v2
    s_and_b32 s34, s2, 7
    s_lshr_b32 s35, s2, 3
    s_and_b32 s{s_mt}, s34, 1
    s_lshl_b32 s{s_mt}, s{s_mt}, 3
    s_and_b32 s36, s35, 7
    s_add_u32 s{s_mt}, s{s_mt}, s36        ; 0..15
    s_lshr_b32 s{s_ft}, s34, 1
    s_lshl_b32 s{s_ft}, s{s_ft}, 2
    s_lshr_b32 s36, s35, 3
    s_add_u32 s{s_ft}, s{s_ft}, s36        ; 0..15
    s_cmp_lt_u32 s{s_w}, 4
    s_cbranch_scc1 {L}_comp
    ''')
    voffB = [8, 9, 10, 11, 12, 13]; vA = [14, 15]
    a(f'''
    s_sub_u32 s{s_w}, s{s_w}, 4
    s_lshl_b32 s34, s{s_mt}, 3
    s_lshl_b32 s35, s{s_w}, 1
    s_add_u32 s34, s34, s35
    s_mul_i32 s34, s34, 20480
    v_lshlrev_b32 v2, 4, v{vlane}
    v_add_u32 v{vA[0]}, s34, v2
    v_add_u32 v{vA[1]}, {20480 - 2048}, v{vA[0]}
    s_lshl_b32 s36, s{s_w}, 12             ; m0A base
    s_mul_i32 s37, s{s_w}, 6144
    s_mul_i32 s39, s{s_ft}, {10*24576}
    s_add_u32 s39, s39, s37
    s_add_u32 s37, s37, {BBASE}            ; m0B base
    s_waitcnt lgkmcnt(0)
    ''')
    srd(a, sA, 8, 9, WS_H, S*D*2)
    srd(a, sG, 8, 9, WS_WT4, 16*10*24576)
    vm = Vm(a)
    def dma_stage(st):
        if 'k4nodma' in exp and st >= 2: return
        slot = st % 4
        a(f's_add_u32 m0, s36, {slot*ASL}')
        a(f's_movk_i32 s34, {st*2048}')
        for i in range(4):
            a(f'buffer_load_dwordx4 v{vA[i//2]}, s[{sA}:{sA+3}], s34 offen offset:{i*1024} lds'); vm.issue(st)
        a(f's_add_u32 m0, s37, {slot*BSL}')
        a(f's_add_u32 s35, s39, {st*24576}')
        for i in range(4):
            a(f'buffer_load_dwordx4 v2, s[{sG}:{sG+3}], s35 offen offset:{i*1024} lds'); vm.issue(st)
        a(f's_add_u32 m0, s37, {slot*BSL + 4096}')
        a(f's_add_u32 s35, s35, 4096')
        for i in range(4, 6):
            a(f'buffer_load_dwordx4 v2, s[{sG}:{sG+3}], s35 offen offset:{(i-4)*1024} lds'); vm.issue(st)
    dma_stage(0); dma_stage(1)
    srd(a, sS, 8, 9, WS_ST, S*16*8)
    srd(a, sC, 8, 9, WS_CS2, 5*3072*4)
    a(f'''
    s_lshl_b32 s34, s{s_mt}, 7
    s_lshl_b32 s35, s{s_w}, 6
    s_add_u32 s34, s34, s35
    v_add_u32 v16, s34, v{vlane}
    v_lshlrev_b32 v16, 7, v16              ; row*128
    v_cmp_gt_u32 vcc, 24, v{vlane}
    v_lshlrev_b32 v17, 4, v{vlane}
    v_add_u32 v18, {1536*4 - 24*16}, v17
    v_cndmask_b32 v17, v18, v17, vcc
    s_mul_i32 s34, s{s_ft}, 384
    v_add_u32 v17, s34, v17
    v_cmp_gt_u32 vcc, 48, v{vlane}
    v_mov_b32 v18, 0x7f000000
    v_cndmask_b32 v17, v18, v17, vcc
    s_cmp_lt_u32 s{s_w}, 2
    s_cbranch_scc0 {L}_side2
    ''')
    for i in range(8):
        a(f'buffer_load_dwordx4 {vr(32+4*i,4)}, v16, s[{sS}:{sS+3}], 0 offen offset:{16*i}')
    a(f's_branch {L}_side3')
    a.label(f'{L}_side2')
    for i in range(8):
        a(f's_mov_b32 s34, {min(i,4)*3072*4}')
        a(f'buffer_load_dwordx4 {vr(32+4*i,4)}, v17, s[{sC}:{sC+3}], s34 offen')
    a.label(f'{L}_side3')
    for i in range(8): vm.issue('side')
    for st in range(NST):
        vm.wait(st)
        if st == 9:
            a(f'''
            s_waitcnt vmcnt(0)
            s_cmp_lt_u32 s{s_w}, 2
            s_cbranch_scc0 {L}_fin2
            ''')
            for i in range(1, 16):
                pk(a, 'v_pk_add_f32', 32, vr(32,2), vr(32+2*i,2))
            a(f'''
            v_mul_f32 v32, {fbits(1.0/640)}, v32
            v_mul_f32 v33, {fbits(1.0/640)}, v33
            v_fma_f32 v33, -v32, v32, v33
            v_max_f32 v33, 0, v33
            v_add_f32 v33, {fbits(1e-5)}, v33
            v_rsq_f32 v33, v33
            v_mul_f32 v32, v32, v33
            s_lshl_b32 s34, s{s_w}, 8
            v_lshlrev_b32 v16, 2, v{vlane}
            v_add_u32 v16, s34, v16
            s_barrier
            ds_write_b32 v16, v33 offset:{STAT}
            ds_write_b32 v16, v32 offset:{STAT+512}
            s_waitcnt lgkmcnt(0)
            s_barrier
            s_branch {L}_end
            {L}_fin2:
            s_cmp_eq_u32 s{s_w}, 2
            s_cbranch_scc0 {L}_fin3
            ''')
            for i in range(1, 5):
                pk(a, 'v_pk_add_f32', 32, vr(32,2), vr(32+4*i,2))
                pk(a, 'v_pk_add_f32', 34, vr(34,2), vr(34+4*i,2))
            a(f'''
            v_lshlrev_b32 v16, 4, v{vlane}
            v_cmp_gt_u32 vcc, 48, v{vlane}
            s_barrier
            s_and_saveexec_b64 s[34:35], vcc
            ds_write_b128 v16, v[32:35] offset:{STAT+1024}
            s_waitcnt lgkmcnt(0)
            s_mov_b64 exec, s[34:35]
            s_barrier
            s_branch {L}_end
            {L}_fin3:
            ''')
        a('s_barrier')
        if st == 0: dma_stage(2); dma_stage(3)
        elif st + 3 < NST: dma_stage(st + 3)
    rt_end(a, prof); a('s_endpgm')
    a.label(f'{L}_comp')
    aX, aW = 2, 3
    XF = lambda b, i: 8 + b*16 + i*4
    WF = lambda b, k: 40 + b*24 + k*4
    ACC = lambda k, i: 88 + (k*4 + i)*4
    aRS, aCS, EAo = 184, 185, 186
    T = 188
    a(f'''
    s_lshr_b32 s{s_wm}, s{s_w}, 1
    s_and_b32 s{s_wn}, s{s_w}, 1
    v_lshlrev_b32 v{aX}, 4, v{vlane}
    v_mov_b32 v{EAo}, v{aX}
    s_lshl_b32 s34, s{s_wm}, 13            ; (4wm)*2*1024
    v_add_u32 v{aX}, s34, v{aX}
    v_lshrrev_b32 v{T}, 4, v{vlane}        ; g
    v_bfe_u32 v{T+1}, v{vlane}, 2, 2       ; rr
    v_and_b32 v{T+2}, 3, v{vlane}          ; cq
    v_lshl_add_u32 v{T+3}, v{T}, 2, v{T+1}
    v_mul_u32_u24 v{aW}, 96, v{T+3}
    v_lshl_add_u32 v{aW}, v{T+2}, 3, v{aW}
    s_mul_i32 s34, s{s_wn}, 6144
    s_add_u32 s34, s34, {BBASE}
    v_add_u32 v{aW}, s34, v{aW}
    v_and_b32 v{T+4}, 15, v{vlane}         ; m
    s_lshl_b32 s34, s{s_wm}, 6
    v_add_u32 v{T+4}, s34, v{T+4}
    v_lshlrev_b32 v{aRS}, 2, v{T+4}        ; (wm*64 + m)*4  (+ i*64)
    s_mul_i32 s34, s{s_wn}, 192
    v_lshlrev_b32 v{aCS}, 4, v{T}
    v_add_u32 v{aCS}, s34, v{aCS}
    s_waitcnt lgkmcnt(0)
    ''')
    srd(a, sO, 8, 9, WS_ACT, S*F*2)
    s_o = 52
    a(f'''
    s_lshl_b32 s36, s{s_mt}, 3
    s_lshl_b32 s37, s{s_wm}, 2
    s_add_u32 s36, s36, s37
    s_mul_i32 s36, s36, {48*1024}
    s_mul_i32 s37, s{s_ft}, 6
    s_mul_i32 s35, s{s_wn}, 3
    s_add_u32 s37, s37, s35
    ''')
    for s in range(3):
        a(f'''
        s_add_u32 s34, s37, {s}
        s_lshr_b32 s35, s34, 1
        s_lshl_b32 s35, s35, 10
        s_and_b32 s34, s34, 1
        s_lshl_b32 s34, s34, 3
        s_add_u32 s35, s35, s34
        s_add_u32 s{s_o+s}, s35, s36
        ''')
    for r in range(96): a(f'v_mov_b32 v{88+r}, 0')
    a(f'''
    s_mov_b32 s{s_it}, 0
    s_mov_b32 s{s_slot}, 0
    s_mov_b32 s58, {ASL}
    s_mov_b32 s59, {(-3*ASL) & 0xffffffff}
    s_mov_b32 s60, {BSL}
    s_mov_b32 s61, {(-3*BSL) & 0xffffffff}
    ''')
    def rd(t, b):
        o = []
        for i in range(4):
            o.append(f'ds_read_b128 {vr(XF(b,i),4)}, v{aX} offset:{(i*2+t)*1024}')
        for k in range(6):
            mat, s = divmod(k, 3)
            for e in range(2):
                o.append(f'ds_read_b64_tr_b16 {vr(WF(b,k)+2*e,2)}, v{aW} offset:{mat*12288 + (32*t+16*e)*96 + s*32}')
        return o
    P.stamp(3)
    a('s_barrier')
    P.stamp(4)
    for o in rd(0, 0): a(o)
    a.label(f'{L}_loop')
    for u in range(2):
      for t in range(2):
        b = t
        if t == 1:
            a('s_waitcnt lgkmcnt(0)')
            a('s_barrier')
            if u == 0:
                a(f'v_add_u32 v{aX}, {ASL}, v{aX}')
                a(f'v_add_u32 v{aW}, {BSL}, v{aW}')
            else:
                a(f'''
                s_bitcmp1_b32 s{s_it}, 0
                s_cselect_b32 s{s_dA}, s59, s58
                s_cselect_b32 s{s_dB}, s61, s60
                v_add_u32 v{aX}, s{s_dA}, v{aX}
                v_add_u32 v{aW}, s{s_dB}, v{aW}
                ''')
        R = rd(1, 1) if t == 0 else rd(0, 0)
        n = 0
        for k in range(6):
            for i in range(4):
                if t == 0 and i == 0:
                    rem_old = 16 - (4 + 2*(k+1))
                    newc = min(16, n)
                    a(f's_waitcnt lgkmcnt({min(15, rem_old + newc)})')
                if 'k4nomfma' not in exp: a(f'v_mfma_f32_16x16x32_bf16 {vr(ACC(k,i),4)}, {vr(WF(b,k),4)}, {vr(XF(b,i),4)}, {vr(ACC(k,i),4)}')
                if n < 16 and 'k4noreads' not in exp: a(R[n])
                n += 1
    a(f'''
    s_add_u32 s{s_it}, s{s_it}, 1
    s_cmp_lt_u32 s{s_it}, {NST//2}
    s_cbranch_scc1 {L}_loop
    ''')
    P.stamp(5)
    RS = lambda i: 8 + 4*i; MR = lambda i: 10 + 4*i
    CS = lambda k: 40 + 4*k
    a('s_waitcnt lgkmcnt(0)')
    for i in range(4):
        a(f'ds_read_b32 v{RS(i)}, v{aRS} offset:{STAT + i*64}')
        a(f'ds_read_b32 v{MR(i)}, v{aRS} offset:{STAT + 512 + i*64}')
    for k in range(6):
        mat, s = divmod(k, 3)
        a(f'ds_read_b128 {vr(CS(k),4)}, v{aCS} offset:{STAT + 1024 + mat*384 + s*64}')
    a('s_waitcnt lgkmcnt(0)')
    C0 = 2*0.7978845608028654*1.4426950408889634
    C1 = C0*0.044715
    a(f's_mov_b32 s34, {fbits(-C0)}')
    a(f's_mov_b32 s35, {fbits(-C1)}')
    X = 64
    for s in range(3):
        for i in range(4):
            G0 = ACC(s, i); U0 = ACC(3+s, i)
            for h2 in range(2):
                for (A0, k) in ((G0, s), (U0, 3+s)):
                    r = A0 + 2*h2
                    pk(a, 'v_pk_mul_f32', r, vr(r,2), vr(RS(i),2), mods='op_sel_hi:[1,0]')
                    pk(a, 'v_pk_fma_f32', r, vr(MR(i),2), vr(CS(k)+2*h2,2), vr(r,2), mods='op_sel_hi:[0,1,1] neg_lo:[1,0,0] neg_hi:[1,0,0]')
            for r4 in range(4):
                a(f'v_mul_f32 v{X+r4}, v{G0+r4}, v{G0+r4}')
            for r4 in range(4):
                a(f'v_mov_b32 v{X+4+r4}, s34') if False else None
                a(f'v_fma_f32 v{X+r4}, v{X+r4}, s35, v{T+8}')
            for r4 in range(4):
                a(f'v_mul_f32 v{X+r4}, v{X+r4}, v{G0+r4}')
            for r4 in range(4):
                a(f'v_exp_f32 v{X+r4}, v{X+r4}')
            for r4 in range(4):
                a(f'v_add_f32 v{X+r4}, 1.0, v{X+r4}')
            for r4 in range(4):
                a(f'v_rcp_f32 v{X+r4}, v{X+r4}')
            for r4 in range(4):
                a(f'v_mul_f32 v{G0+r4}, v{G0+r4}, v{U0+r4}')
            for r4 in range(4):
                a(f'v_mul_f32 v{G0+r4}, v{G0+r4}, v{X+r4}')
            a(f'v_cvt_pk_bf16_f32 v{G0}, v{G0}, v{G0+1}')
            a(f'v_cvt_pk_bf16_f32 v{G0+1}, v{G0+2}, v{G0+3}')
            a(f's_add_u32 s36, s{s_o+s}, {i*48*1024}')
            a(f'buffer_store_dwordx2 {vr(G0,2)}, v{EAo}, s[{sO}:{sO+3}], s36 offen')
    P.finish()
    a.label(f'{L}_end')
    rt_end(a, prof)
    a('s_endpgm')
    idx = next(i for i, x in enumerate(a.ins) if x.text.startswith('s_mov_b32 s35, ' + fbits(-C1)))
    from asmlib import Ins
    a.ins.insert(idx + 1, Ins(f'v_mov_b32 v{T+8}, s34'))
    a.fix_hazards()
    bad = a.check_loop(f'{L}_loop', f's_cbranch_scc1 {L}_loop')
    assert not bad, bad
    return kernel_wrap(name, a.text(), vgpr=200, sgpr=100), 163840
```

```python
import sys
sys.path.insert(0, 'gen')
import k1, k2b as k2, k35, k4, common
NAME = 'sequential_preLN__mha_block__geglu_ffn__prompt'
def build(prof='', exp=''):
    common.RT['fine'] = 'fine' in exp
    parts = []; launches = []
    def setoff(i): common.RT['off'] = 131072 + i*32768; common.RT['poff'] = 16384*i
    setoff(0)
    t, l = k1.gen_k1(prof=('k1' in prof), exp=exp); parts.append(t); launches.append(('k1_kernel', 512, l))
    setoff(1)
    t, l = k2.gen_k2(prof=('k2' in prof), exp=exp+' unr4'); parts.append(t); launches.append(('k2_kernel', 576, l))
    setoff(2)
    t, l = k35.gen_n640('k3_kernel', 'wo', prof=('k3' in prof), exp=exp); parts.append(t); launches.append(('k3_kernel', 512, l))
    setoff(3)
    t, l = k4.gen_k4(prof=('k4' in prof), exp=exp); parts.append(t); launches.append(('k4_kernel', 512, l))
    setoff(4)
    t, l = k35.gen_n640('k5_kernel', 'wd', prof=('k5' in prof), exp=exp); parts.append(t); launches.append(('k5_kernel', 512, l))
    hdr = open(f'cdna_kernels/{NAME}.s.ref').read().split('; Override')[0]
    hdr += ''.join(f'; @launch kernel={k} grid=(256,1,1) block=({b},1,1) lds={l}\n' for k, b, l in launches)
    return hdr + '.amdgcn_target "amdgcn-amd-amdhsa--gfx950"\n' + '\n'.join(parts), launches
if __name__ == '__main__':
    t, launches = build()
    open('full.s', 'w').write(t)
    open(f'cdna_kernels/{NAME}.s', 'w').write(t)
    import json; json.dump(launches, open('launches.json', 'w'))
    if len(sys.argv) > 1:
        open('full_prof.s', 'w').write(build(sys.argv[1])[0])
    for e in sys.argv[2:]:
        open(f'e_{e}.s', 'w').write(build(sys.argv[1], exp=e)[0])
```

```python
from asmlib import Asm
S=2048; D=640; H=32; DH=20; F=1536
WS_Q = 0
WS_K = WS_Q + 32*81920
WS_V = WS_K + 32*81920
WS_O = WS_V + 32*81920
WS_H = WS_O + S*D*2
WS_ACT = WS_H + S*D*2
WS_ST = WS_ACT + S*F*2
WS_RS1 = WS_ST + S*16*2*4
WS_MR1 = WS_RS1 + S*4
WS_CS1 = WS_MR1 + S*4
WS_CS2 = WS_CS1 + 2048*4
WS_END = WS_CS2 + 5*3072*4
WS_FLAG = (WS_END + 4095) // 4096 * 4096
WS_EPOCH = WS_FLAG + 512*128
WS_WT3 = WS_EPOCH + 4096
WS_WT4 = WS_WT3 + 8*5*20480
WS_WT5 = WS_WT4 + 16*10*24576
WS_RP = WS_WT5 + 8*12*20480
WS_CP = WS_RP + 10*2048*8
WS_FLAG2 = WS_CP + 10*2048*4
WS_ALL = WS_FLAG2 + 4*256*128
EPOCH_INC = 0x9E3779B1
import struct
def fbits(x): return '0x%08x' % struct.unpack('<I', struct.pack('<f', x))[0]
class Prof:
    def __init__(self, a, on, L, base=64, n=8, fin=(6, 7)): self.a = a; self.on = on; self.L = L; self.base = base; self.n = n; self.fin = fin
    def stamp(self, i):
        if self.on: self.a(f's_memtime s[{self.base+2*i}:{self.base+1+2*i}]')
    def finish(self, wave_sel=0):
        if not self.on: return
        a = self.a
        self.stamp(self.fin[0])
        a('s_waitcnt vmcnt(0)')
        self.stamp(self.fin[1])
        a(f'''
        s_load_dwordx2 s[4:5], s[0:1], 64
        s_waitcnt lgkmcnt(0)
        s_add_u32 s4, s4, {RT['poff']}
        s_addc_u32 s5, s5, 0
        v_cmp_eq_u32 vcc, {wave_sel*64}, v0
        s_and_saveexec_b64 s[10:11], vcc
        s_lshl_b32 s3, s2, 6
        v_mov_b32 v2, s3
        ''')
        for i in range(16 if (RT.get('fine') and self.n == 8) else self.n):
            a(f's_sub_u32 s3, s{self.base+2*i}, s{self.base}')
            a(f'v_mov_b32 v3, s3')
            a(f'global_store_dword v2, v3, s[4:5] offset:{4*i}')
RT = {'off': 16384, 'poff': 4096}
def rt_begin(a, on):
    if on and not RT.get('fine'): a('s_memrealtime s[84:85]')
def rt_end(a, on):
    if not on or RT.get('fine'): return
    a(f'''
    s_waitcnt vmcnt(0)
    s_memrealtime s[86:87]
    s_load_dwordx2 s[88:89], s[0:1], 64
    s_mov_b64 exec, -1
    v_lshrrev_b32 v2, 6, v0
    v_and_b32 v3, 63, v0
    s_mul_i32 s90, s2, 128
    v_lshl_add_u32 v2, v2, 3, s90
    v_add_u32 v2, {RT['off']}, v2
    v_cmp_eq_u32 vcc, 0, v3
    s_and_saveexec_b64 s[92:93], vcc
    s_waitcnt lgkmcnt(0)
    v_mov_b32 v4, s84
    v_mov_b32 v5, s86
    global_store_dwordx2 v2, v[4:5], s[88:89]
    ''')
def pk(a, op, d, x, y, z=None, mods=''):
    if z is None: a(f'{op} {vr(d,2)}, {x}, {y} {mods}')
    else: a(f'{op} {vr(d,2)}, {x}, {y}, {z} {mods}')

KA = dict(x=0, wqkv=8, wo=16, bx=24, wg=32, wu=40, wd=48, out=56, dbg=64, ws=72)

def vr(base, n): return f'v[{base}:{base+n-1}]'

class Vm:
    def __init__(self, a): self.a = a; self.q = []
    def issue(self, tag): self.q.append(tag)
    def need(self, tag):
        idx = [i for i, t in enumerate(self.q) if t == tag]
        if not idx: return None
        n = len(self.q) - 1 - idx[-1]
        self.q = self.q[idx[-1] + 1:]
        return n
    def wait(self, tag):
        n = self.need(tag)
        if n is not None: self.a(f's_waitcnt vmcnt({n})')
    def wait_all(self):
        self.q = []; self.a('s_waitcnt vmcnt(0)')

def srd(a, sreg, base_lo, base_hi, off, size):
    if off:
        a(f's_add_u32 s{sreg}, s{base_lo}, {off}')
        a(f's_addc_u32 s{sreg+1}, s{base_hi}, 0')
    else:
        a(f's_mov_b32 s{sreg}, s{base_lo}')
        a(f's_mov_b32 s{sreg+1}, s{base_hi}')
    a(f's_mov_b32 s{sreg+2}, {size}')
    a(f's_mov_b32 s{sreg+3}, 0x00020000')

def kernel_wrap(name, body, vgpr, sgpr=102, accum=None):
    if accum is None: accum = (vgpr + 3) // 4 * 4
    return f'''.text
.globl {name}
.p2align 8
.type {name},@function
{name}:
{body}
.section .rodata,"a"
.p2align 6
.amdhsa_kernel {name}
  .amdhsa_next_free_vgpr {vgpr}
  .amdhsa_next_free_sgpr {sgpr}
  .amdhsa_accum_offset {accum}
  .amdhsa_group_segment_fixed_size 0
  .amdhsa_kernarg_size 80
  .amdhsa_user_sgpr_count 2
  .amdhsa_user_sgpr_kernarg_segment_ptr 1
  .amdhsa_system_sgpr_workgroup_id_x 1
.end_amdhsa_kernel
'''

def prefetch(a, vlane, segs, s_idx, n_wg, n_waves, s_w, vt, st, vdst):
    for (sr, nrows, lpr, stride, s_base) in segs:
        total = nrows * lpr
        per = -(-total // (n_wg * n_waves * 64))
        a(f's_mul_i32 s{st}, s{s_idx}, {n_waves}')
        a(f's_add_u32 s{st}, s{st}, s{s_w}')
        a(f's_mul_i32 s{st}, s{st}, {per*64}')
        for j in range(per):
            a(f'v_add_u32 v{vt}, s{st}, v{vlane}')
            if j: a(f'v_add_u32 v{vt}, {64*j}, v{vt}')
            if stride == lpr * 128:
                a(f'v_lshlrev_b32 v{vt+1}, 7, v{vt}')
            else:
                magic = (1 << 20) // lpr + 1
                a(f's_mov_b32 s{st+1}, {magic}')
                a(f'v_mul_lo_u32 v{vt+1}, v{vt}, s{st+1}')
                a(f'v_lshrrev_b32 v{vt+1}, 20, v{vt+1}')
                a(f'v_mul_u32_u24 v{vt+2}, {lpr}, v{vt+1}')
                a(f'v_sub_u32 v{vt+2}, v{vt}, v{vt+2}')
                a(f'v_mul_u32_u24 v{vt+1}, {stride}, v{vt+1}')
                a(f'v_lshl_add_u32 v{vt+1}, v{vt+2}, 7, v{vt+1}')
            a(f'v_cmp_gt_u32 vcc, {total}, v{vt}')
            a(f'v_mov_b32 v{vt+2}, 0x7f000000')
            a(f'v_cndmask_b32 v{vt+1}, v{vt+2}, v{vt+1}, vcc')
            a(f'buffer_load_dword v{vdst}, v{vt+1}, s[{sr}:{sr+3}], s{s_base} offen')
```

```python
from common import *
import math
QSCALE = math.log2(math.e) / math.sqrt(20.0)

def gen_k1(name='k1_kernel', prof=False, exp=''):
    a = Asm()
    L = name
    P = Prof(a, prof, L)
    NST = 10
    sX, sW, sO = 12, 16, 20
    s_mt, s_nt, s_w, s_wm, s_wn = 24, 25, 26, 27, 28
    s_m0A, s_m0B, s_offA, s_offB = 29, 30, 31, 32
    s_ks = 33
    s_scale = 52
    s_t0, s_t1 = 53, 54
    s_it = 55
    s_ep = 58
    sS = 60
    sF = 44
    sP = 48
    vlane = 1
    voffA = [16, 17, 18, 19]; voffB = [20, 21, 22, 23]
    aB = [28, 29]
    XF = lambda b, i: 36 + b * 8 + i * 4
    WF = lambda b, j: 52 + b * 8 + j * 4
    ACC = lambda p, q: 68 + (p * 2 + q) * 16
    EA = 140; EL = 148; TB = 160
    STAT = 131072
    P.stamp(0); rt_begin(a, prof)
    a(f'''
    s_cmp_ge_u32 s2, 240
    s_cbranch_scc1 {L}_end
    s_load_dwordx4 s[4:7], s[0:1], 0
    s_load_dwordx2 s[10:11], s[0:1], 72
    v_and_b32 v{vlane}, 63, v0
    v_lshrrev_b32 v2, 6, v0
    v_readfirstlane_b32 s{s_w}, v2
    s_and_b32 s35, s2, 7             ; x8
    s_lshr_b32 s36, s2, 3            ; i 0..29
    s_lshr_b32 s37, s35, 2
    s_mul_i32 s37, s37, 30
    s_add_u32 s37, s37, s36          ; t 0..59
    s_lshr_b32 s{s_nt}, s37, 2
    s_and_b32 s{s_mt}, s37, 3
    s_and_b32 s35, s35, 3
    s_lshl_b32 s35, s35, 2
    s_add_u32 s{s_mt}, s{s_mt}, s35
    s_add_u32 s{s_ks}, s{s_mt}, s{s_nt}      ; rho = (mt+nt) % 10   (max 29)
    s_cmp_ge_u32 s{s_ks}, 20
    s_cselect_b32 s34, 20, 0
    s_sub_u32 s{s_ks}, s{s_ks}, s34
    s_cmp_ge_u32 s{s_ks}, 10
    s_cselect_b32 s34, 10, 0
    s_sub_u32 s{s_ks}, s{s_ks}, s34
    s_cmp_lt_u32 s{s_w}, 4
    s_cbranch_scc1 {L}_comp
    ''')
    a(f'''
    s_sub_u32 s{s_w}, s{s_w}, 4
    v_lshrrev_b32 v3, 4, v{vlane}    ; lane>>4
    v_and_b32 v4, 7, v{vlane}
    v_xor_b32 v5, v4, v3
    v_xor_b32 v6, 4, v5
    v_lshrrev_b32 v2, 3, v{vlane}
    s_lshl_b32 s{s_m0A}, s{s_w}, 12
    s_add_u32 s{s_m0B}, s{s_m0A}, 65536
    s_lshl_b32 s34, s{s_mt}, 7
    s_lshl_b32 s35, s{s_w}, 5
    s_add_u32 s34, s34, s35
    v_add_u32 v2, s34, v2            ; row (i=0)
    s_movk_i32 s35, 1280
    v_mul_lo_u32 v2, v2, s35         ; row*1280
    v_lshl_add_u32 v5, v5, 4, v2
    v_lshl_add_u32 v6, v6, 4, v2
    ''')
    for i in range(4):
        a(f'v_add_u32 v{voffA[i]}, {i*(10240-1024)}, v{5 if i%2==0 else 6}')
    a(f'''
    s_lshl_b32 s34, s{s_w}, 4
    v_add_u32 v2, s34, v3            ; krow (i=0)
    s_movk_i32 s35, 3840
    v_mul_lo_u32 v2, v2, s35
    v_and_b32 v4, 15, v{vlane}
    v_lshlrev_b32 v5, 2, v3
    v_xor_b32 v4, v4, v5
    v_lshl_add_u32 v2, v4, 4, v2
    s_lshl_b32 s34, s{s_nt}, 8
    v_add_u32 v2, s34, v2
    ''')
    for i in range(4):
        a(f'v_add_u32 v{voffB[i]}, {i*(4*3840-1024)}, v2')
    a('s_waitcnt lgkmcnt(0)')
    srd(a, sX, 4, 5, 0, S*D*2)
    srd(a, sW, 6, 7, 0, D*1920*2)
    gray = [0, 1, 3, 2]
    def loader(role):
        R = f'{L}_{role}'
        vm = Vm(a)
        def dma_stage(pos):
            slot = gray[pos % 4]
            a(f's_lshl_b32 s{s_offA}, s{s_ks}, 7')
            a(f's_mul_i32 s{s_offB}, s{s_ks}, {64*3840}')
            a(f's_add_u32 m0, s{s_m0A}, {slot*16384}')
            a(f's_add_u32 s{s_ks}, s{s_ks}, 1')
            for i in range(4):
                a(f'buffer_load_dwordx4 v{voffA[i]}, s[{sX}:{sX+3}], s{s_offA} offen offset:{i*1024} lds'); vm.issue(pos)
            a(f's_add_u32 m0, s{s_m0B}, {slot*16384}')
            a(f's_cmp_eq_u32 s{s_ks}, 10')
            a(f's_cselect_b32 s{s_ks}, 0, s{s_ks}')
            for i in range(4):
                a(f'buffer_load_dwordx4 v{voffB[i]}, s[{sW}:{sW+3}], s{s_offB} offen offset:{i*1024} lds'); vm.issue(pos)
        dma_stage(0); dma_stage(1)
        if role in ('A0', 'F'):
            srd(a, sF, 10, 11, WS_FLAG, 512*128 + 4096)
            a(f'''
            s_add_u32 s34, s10, {WS_EPOCH}
            s_addc_u32 s35, s11, 0
            s_load_dword s{s_ep}, s[34:35], 0
            ''')
        if role == 'A0':
            srd(a, sP, 10, 11, WS_RP, 10*2048*12)
            a(f'''
            v_subrev_u32 v8, 10, v{vlane}
            s_lshl_b32 s34, s{s_mt}, 4
            v_add_u32 v9, s34, v{vlane}
            v_lshlrev_b32 v10, 4, v8
            v_add_u32 v10, s{s_nt}, v10
            v_cmp_gt_u32 vcc, 10, v{vlane}
            v_cndmask_b32 v9, v10, v9, vcc
            v_cmp_gt_u32 vcc, 20, v{vlane}
            s_lshl_b32 s34, s{s_mt}, 4
            v_mov_b32 v10, s34
            v_cndmask_b32 v9, v10, v9, vcc
            v_lshlrev_b32 v30, 7, v9
            v_lshlrev_b32 v31, 4, v{vlane}
            s_lshl_b32 s34, s{s_mt}, 10
            v_add_u32 v31, s34, v31
            v_lshlrev_b32 v32, 3, v{vlane}
            s_lshl_b32 s34, s{s_nt}, 9
            s_add_u32 s34, s34, {10*2048*8}
            v_add_u32 v32, s34, v32
            v_lshlrev_b32 v33, 3, v{vlane}
            v_add_u32 v33, {STAT}, v33
            ''')
        for st in range(NST):
            vm.wait(st)
            if st == 9 and role == 'A0':
                a(f'''
                s_barrier
                s_waitcnt vmcnt(0)
                ''')
                for k in range(1, 10):
                    pk(a, 'v_pk_add_f32', 64, vr(64,2), vr(64+4*k,2))
                    pk(a, 'v_pk_add_f32', 66, vr(66,2), vr(66+4*k,2))
                    pk(a, 'v_pk_add_f32', 104, vr(104,2), vr(104+2*k,2))
                for (sv, qv) in ((64, 65), (66, 67)):
                    a(f'''
                    v_mul_f32 v{sv}, {fbits(1.0/640)}, v{sv}
                    v_mul_f32 v{qv}, {fbits(1.0/640)}, v{qv}
                    v_fma_f32 v{qv}, -v{sv}, v{sv}, v{qv}
                    v_max_f32 v{qv}, 0, v{qv}
                    v_add_f32 v{qv}, {fbits(1e-5)}, v{qv}
                    v_rsq_f32 v{qv}, v{qv}
                    v_mul_f32 v{sv}, v{sv}, v{qv}
                    ''')
                a(f'''
                v_mov_b32 v68, v65
                v_mov_b32 v69, v67
                v_mov_b32 v70, v64
                v_mov_b32 v71, v66
                ds_write_b64 v33, v[68:69]
                ds_write_b64 v33, v[70:71] offset:512
                ds_write_b64 v33, v[104:105] offset:1024
                s_cmp_lg_u32 s2, 0
                s_cbranch_scc1 {R}_noep
                v_mov_b32 v20, 0
                v_mov_b32 v21, s34
                s_mov_b32 s35, {512*128}
                v_cmp_eq_u32 vcc, 0, v{vlane}
                s_and_saveexec_b64 s[42:43], vcc
                buffer_store_dword v21, v20, s[{sF}:{sF+3}], s35 offen sc1
                s_mov_b64 exec, s[42:43]
                {R}_noep:
                s_waitcnt lgkmcnt(0)
                s_barrier
                s_branch {L}_end
                ''')
                return
            a('s_barrier')
            if st == 3 and role == 'F':
                a(f'''
                s_waitcnt lgkmcnt(0)
                s_add_u32 s34, s{s_ep}, {EPOCH_INC}
                v_mov_b32 v8, 0
                v_mov_b32 v9, s34
                s_lshl_b32 s35, s{s_mt}, 4
                s_add_u32 s35, s35, s{s_nt}
                s_lshl_b32 s35, s35, 7
                v_cmp_eq_u32 vcc, 0, v{vlane}
                s_and_saveexec_b64 s[42:43], vcc
                buffer_store_dword v9, v8, s[{sF}:{sF+3}], s35 offen sc1
                s_mov_b64 exec, s[42:43]
                ''')
                vm.issue('flag')
            if st == 0: dma_stage(2); dma_stage(3)
            elif st + 3 < NST: dma_stage(st + 3)
            if st == 6 and role == 'A0':
                a(f'buffer_load_dword v13, v30, s[{sF}:{sF+3}], 0 offen sc1'); vm.issue('flag')
            if st == 8 and role == 'A0':
                vm.wait('flag')
                a(f'''
                s_waitcnt lgkmcnt(0)
                s_add_u32 s34, s{s_ep}, {EPOCH_INC}
                s_mov_b32 s38, 0
                {R}_poll:
                v_cmp_ne_u32 vcc, s34, v13
                s_cbranch_vccz {R}_pollok
                s_add_u32 s38, s38, 1
                s_cmp_ge_u32 s38, 100000
                s_cbranch_scc1 {R}_pollok
                s_sleep 1
                buffer_load_dword v13, v30, s[{sF}:{sF+3}], 0 offen sc1
                s_waitcnt vmcnt(0)
                s_branch {R}_poll
                {R}_pollok:
                ''')
                vm.q = []
                for k in range(10):
                    a(f's_mov_b32 s35, {k*2048*8}')
                    a(f'buffer_load_dwordx4 {vr(64+4*k,4)}, v31, s[{sP}:{sP+3}], s35 offen sc1')
                    a(f's_mov_b32 s36, {k*2048*4}')
                    a(f'buffer_load_dwordx2 {vr(104+2*k,2)}, v32, s[{sP}:{sP+3}], s36 offen sc1')
        if role == 'A1':
            sG = 44; vcol = 61
            srd(a, sS, 10, 11, WS_RS1, WS_END - WS_RS1)
            a(f'''
            s_barrier
            s_mov_b32 s40, 0xffff0000
            s_load_dwordx4 s[36:39], s[0:1], 32
            s_mov_b32 s34, s2                      ; j 0..239
            s_mul_i32 s35, s34, 1366
            s_lshr_b32 s35, s35, 16                ; part = j / 48
            s_mul_i32 s33, s35, 48
            s_sub_u32 s33, s34, s33                ; slab = j % 48
            s_cmp_ge_u32 s33, 24
            s_cselect_b32 s41, 24, 0
            s_sub_u32 s41, s33, s41
            s_lshl_b32 s41, s41, 7
            v_and_b32 v8, 7, v{vlane}
            v_lshrrev_b32 v9, 3, v{vlane}
            s_lshl_b32 s42, s35, 7
            v_add_u32 v9, s42, v9
            v_mul_u32_u24 v9, 3072, v9
            v_lshl_add_u32 v9, v8, 4, v9
            v_add_u32 v{vcol}, s41, v9
            s_mul_i32 s57, s35, {3072*4}
            s_lshl_b32 s41, s33, 8
            s_add_u32 s57, s57, s41
            s_add_u32 s57, s57, {16384+8192}
            s_waitcnt lgkmcnt(0)
            s_cmp_ge_u32 s33, 24
            s_cselect_b32 s36, s38, s36
            s_cselect_b32 s37, s39, s37
            ''')
            srd(a, sG, 36, 37, 0, D*F*2)
            for i in range(16):
                a(f's_mov_b32 s34, {i*8*3072}')
                a(f'buffer_load_dwordx4 {vr(64+4*i,4)}, v{vcol}, s[{sG}:{sG+3}], s34 offen')
            for j in range(8): a(f'v_mov_b32 v{24+j}, 0')
            for i in range(16):
                a(f's_waitcnt vmcnt({15-i})')
                for j in range(4):
                    d = 64 + 4*i + j
                    a(f'v_lshlrev_b32 v10, 16, v{d}')
                    a(f'v_and_b32 v11, s40, v{d}')
                    pk(a, 'v_pk_add_f32', 24+2*j, vr(24+2*j,2), vr(10,2))
            for j in range(8):
                a(f'v_add_f32_dpp v{24+j}, v{24+j}, v{24+j} row_ror:8 row_mask:0xf bank_mask:0xf')
            for j in range(8): a(f'v_mov_b32 v{40+j}, v{24+j}')
            for j in range(8): a(f'v_permlane16_swap_b32 v{40+j}, v{24+j}')
            for j in range(8): a(f'v_add_f32 v{24+j}, v{24+j}, v{40+j}')
            for j in range(8): a(f'v_mov_b32 v{40+j}, v{24+j}')
            for j in range(8): a(f'v_permlane32_swap_b32 v{40+j}, v{24+j}')
            for j in range(8): a(f'v_add_f32 v{24+j}, v{24+j}, v{40+j}')
            a(f'''
            v_cmp_gt_u32 vcc, 8, v{vlane}
            s_and_saveexec_b64 s[42:43], vcc
            v_lshlrev_b32 v10, 5, v{vlane}
            buffer_store_dwordx4 {vr(24,4)}, v10, s[{sS}:{sS+3}], s57 offen
            buffer_store_dwordx4 {vr(28,4)}, v10, s[{sS}:{sS+3}], s57 offen offset:16
            ''')
        a(f's_branch {L}_end')
    a(f'''
    s_cmp_eq_u32 s{s_w}, 1
    s_cbranch_scc1 {L}_roleA1
    s_cmp_eq_u32 s{s_w}, 2
    s_cbranch_scc1 {L}_roleF
    s_cmp_eq_u32 s{s_w}, 3
    s_cbranch_scc1 {L}_roleN
    ''')
    loader('A0')
    a.label(f'{L}_roleA1'); loader('A1')
    a.label(f'{L}_roleF'); loader('F')
    a.label(f'{L}_roleN'); loader('N')
    a.label(f'{L}_comp')
    a(f'''
    s_lshr_b32 s{s_wm}, s{s_w}, 1
    s_and_b32 s{s_wn}, s{s_w}, 1
    v_and_b32 v2, 31, v{vlane}       ; r
    v_lshrrev_b32 v3, 5, v{vlane}    ; hh
    s_lshl_b32 s36, s{s_wm}, 6       ; m base
    s_lshl_b32 s38, s{s_wn}, 6       ; n base
    v_add_u32 v4, s36, v2
    v_lshlrev_b32 v8, 2, v4
    v_add_u32 v{EL}, {STAT}, v8
    s_lshl_b32 s34, s{s_mt}, 7
    v_add_u32 v9, s34, v4
    v_lshlrev_b32 v{EL+4}, 3, v9
    s_lshl_b32 s34, s{s_ks}, 14
    v_add_u32 v{EL+4}, s34, v{EL+4}
    v_lshlrev_b32 v4, 7, v4
    v_bfe_u32 v5, v2, 1, 3           ; (r>>1)&7
    v_add_u32 v10, s38, v2
    v_lshlrev_b32 v12, 2, v10
    v_add_u32 v{EL+1}, {STAT+1024}, v12
    s_lshl_b32 s34, s{s_nt}, 9
    s_lshl_b32 s35, s{s_ks}, 13
    s_add_u32 s34, s34, s35
    s_add_u32 s34, s34, {10*2048*8}
    v_add_u32 v{EL+5}, s34, v12
    ''')
    aA1 = [132 + t for t in range(4)]
    for t in range(4):
        a(f'''
        v_add_u32 v6, {2*t}, v3
        v_xor_b32 v6, v6, v5
        v_lshl_add_u32 v{aA1[t]}, v6, 4, v4
        ''')
    a(f'''
    v_bfe_u32 v13, v{vlane}, 2, 2    ; rr
    v_and_b32 v4, 3, v{vlane}        ; cq
    v_bfe_u32 v5, v{vlane}, 4, 1     ; nhalf
    v_lshl_add_u32 v6, v3, 3, v13    ; 8hh+rr
    v_lshlrev_b32 v6, 8, v6
    v_add_u32 v6, 65536, v6
    v_and_b32 v7, 1, v4
    v_lshl_add_u32 v6, v7, 3, v6
    v_lshrrev_b32 v7, 1, v4
    v_lshl_add_u32 v7, v5, 1, v7
    v_lshl_add_u32 v6, v7, 4, v6
    s_lshl_b32 s34, s{s_wn}, 1
    s_add_u32 s35, s34, 1
    v_xor_b32 v7, s34, v13
    v_lshl_add_u32 v{aB[0]}, v7, 6, v6
    v_xor_b32 v7, s35, v13
    v_lshl_add_u32 v{aB[1]}, v7, 6, v6
    s_lshl_b32 s42, s{s_mt}, 2
    s_lshl_b32 s43, s{s_wm}, 1
    s_add_u32 s42, s42, s43
    s_mul_i32 s{s_t0}, s42, 1280
    s_add_u32 s{s_t1}, s{s_t0}, 1280
    s_mov_b32 s47, 81920
    s_mov_b32 s40, 0xffff0000
    s_cmp_lt_u32 s{s_nt}, 5
    s_cselect_b32 s{s_scale}, {fbits(QSCALE)}, 1.0
    s_mov_b32 s{s_it}, 0
    s_waitcnt lgkmcnt(0)
    ''')
    srd(a, sO, 10, 11, WS_Q, 3*32*81920)
    srd(a, sP, 10, 11, WS_RP, 10*2048*12)
    for r in range(64): a(f'v_mov_b32 v{68+r}, 0')
    SX = [TB, TB+4]; SQ = [TB+2, TB+6]; SW = [TB+8, TB+10]; TT = TB + 12
    for r in range(12): a(f'v_mov_b32 v{TB+r}, 0')
    a(f'''
    s_cmp_ge_u32 s{s_nt}, 10
    s_cbranch_scc1 {L}_v
    ''')
    def rd(t, b):
        o = []
        for i in range(2):
            o.append(f'ds_read_b128 {vr(XF(b,i),4)}, v{aA1[t]} offset:{i*4096}')
            for e in range(2):
                o.append(f'ds_read_b64_tr_b16 {vr(WF(b,i)+2*e,2)}, v{aB[i]} offset:{t*4096 + e*1024}')
        return o
    def stat_ops(b):
        o = []
        n = 0
        for i in range(2):
            for r in range(4):
                t0 = TT + 2*(n % 4); n += 1
                d = XF(b, i) + r
                o += [f'v_lshlrev_b32 v{t0}, 16, v{d}', f'v_and_b32 v{t0+1}, s40, v{d}',
                      f'v_pk_add_f32 {vr(SX[i],2)}, {vr(SX[i],2)}, {vr(t0,2)}',
                      f'v_pk_fma_f32 {vr(SQ[i],2)}, {vr(t0,2)}, {vr(t0,2)}, {vr(SQ[i],2)}']
            for r in range(4):
                t0 = TT + 2*(n % 4); n += 1
                d = WF(b, i) + r
                o += [f'v_lshlrev_b32 v{t0}, 16, v{d}', f'v_and_b32 v{t0+1}, s40, v{d}',
                      f'v_pk_add_f32 {vr(SW[i],2)}, {vr(SW[i],2)}, {vr(t0,2)}']
        return o
    def stage(V, gx, with_stats=False, vmw=False, stampi=None):
        for t in range(4):
            b = t & 1
            def MF(p, q):
                if V == 'qk': return f'v_mfma_f32_32x32x16_bf16 {vr(ACC(p,q),16)}, {vr(WF(b,p),4)}, {vr(XF(b,q),4)}, {vr(ACC(p,q),16)}'
                return f'v_mfma_f32_32x32x16_bf16 {vr(ACC(q,p),16)}, {vr(XF(b,q),4)}, {vr(WF(b,p),4)}, {vr(ACC(q,p),16)}'
            so = stat_ops(b) if with_stats else []
            q4 = len(so) // 4
            if t == 3:
                a('s_waitcnt lgkmcnt(0)' if not vmw else 's_waitcnt vmcnt(0) lgkmcnt(0)')
                a('s_barrier')
                if stampi is not None: P.stamp(stampi)
                a(MF(0, 0))
                for tt in range(4): a(f'v_xor_b32 v{aA1[tt]}, {gx}, v{aA1[tt]}')
                for j in range(2): a(f'v_xor_b32 v{aB[j]}, {gx}, v{aB[j]}')
                R = rd(0, b ^ 1)
                for o in R[:3]: a(o)
                for o in so[:q4]: a(o)
                a(MF(0, 1))
                for o in R[3:]: a(o)
                for o in so[q4:2*q4]: a(o)
                a(MF(1, 0))
                for o in so[2*q4:3*q4]: a(o)
                a(MF(1, 1))
                for o in so[3*q4:]: a(o)
            else:
                R = rd(t + 1, b ^ 1)
                if with_stats:
                    a('s_waitcnt lgkmcnt(0)')
                    a(MF(0, 0))
                    for o in R[:3]: a(o)
                    for o in so[:q4]: a(o)
                    a(MF(0, 1))
                    for o in R[3:]: a(o)
                    for o in so[q4:2*q4]: a(o)
                    a(MF(1, 0))
                    for o in so[2*q4:3*q4]: a(o)
                    a(MF(1, 1))
                    for o in so[3*q4:]: a(o)
                else:
                    a('s_waitcnt lgkmcnt(3)')
                    a(MF(0, 0))
                    for o in R[:3]: a(o)
                    a('s_waitcnt lgkmcnt(5)')
                    a(MF(0, 1))
                    for o in R[3:]: a(o)
                    a('s_waitcnt lgkmcnt(6)')
                    a(MF(1, 0)); a(MF(1, 1))
    def stat_store():
        for i in range(2):
            a(f'v_add_f32 v{SX[i]}, v{SX[i]}, v{SX[i]+1}')
            a(f'v_add_f32 v{SX[i]+1}, v{SQ[i]}, v{SQ[i]+1}')
            a(f'v_add_f32 v{SW[i]}, v{SW[i]}, v{SW[i]+1}')
        regs = [SX[0], SX[0]+1, SX[1], SX[1]+1, SW[0], SW[1]]
        for n, r in enumerate(regs): a(f'v_mov_b32 v{TT+n}, v{r}')
        for n, r in enumerate(regs): a(f'v_permlane32_swap_b32 v{TT+n}, v{r}')
        for n, r in enumerate(regs): a(f'v_add_f32 v{r}, v{r}, v{TT+n}')
        a(f'''
        v_cmp_gt_u32 vcc, 32, v{vlane}
        s_and_saveexec_b64 s[42:43], vcc
        buffer_store_dwordx2 {vr(SX[0],2)}, v{EL+4}, s[{sP}:{sP+3}], 0 offen sc1
        buffer_store_dwordx2 {vr(SX[1],2)}, v{EL+4}, s[{sP}:{sP+3}], 0 offen offset:256 sc1
        buffer_store_dword v{SW[0]}, v{EL+5}, s[{sP}:{sP+3}], 0 offen sc1
        buffer_store_dword v{SW[1]}, v{EL+5}, s[{sP}:{sP+3}], 0 offen offset:128 sc1
        s_mov_b64 exec, s[42:43]
        ''')
    fine = RT.get('fine')
    def mainloop(V):
        P.stamp(3)
        a('s_barrier')
        P.stamp(4)
        for o in rd(0, 0): a(o)
        stage(V, 0x4000, with_stats=True, stampi=8 if fine else None)
        stat_store()
        stage(V, 0x8000, stampi=9 if fine else None)
        stage(V, 0x4000, vmw=True, stampi=10 if fine else None)
        a.label(f'{L}_{V}_loop')
        stage(V, 0x8000)
        stage(V, 0x4000)
        a(f'''
        s_add_u32 s{s_it}, s{s_it}, 1
        s_cmp_lt_u32 s{s_it}, 3
        s_cbranch_scc1 {L}_{V}_loop
        ''')
        if fine: P.stamp(11)
        stage(V, 0x8000, stampi=12 if fine else None)
        P.stamp(5)
    a(f'''
    v_lshlrev_b32 v6, 4, v3           ; 4hh*4
    s_lshl_b32 s34, s38, 2
    v_add_u32 v7, s34, v6
    v_add_u32 v{EL+2}, {STAT+1024}, v7
    s_cmp_ge_u32 s{s_nt}, 5
    s_cselect_b32 s40, 1, 0
    s_mul_i32 s41, s40, 5
    s_sub_u32 s41, s{s_nt}, s41      ; nt5
    s_mul_i32 s40, s40, {32*81920}
    s_add_u32 s{s_t0}, s{s_t0}, s40
    s_add_u32 s{s_t1}, s{s_t1}, s40
    s_lshl_b32 s44, s41, 5
    s_lshr_b32 s45, s38, 2
    s_add_u32 s45, s45, s44
    s_add_u32 s46, s45, 8
    v_lshlrev_b32 v9, 4, v2          ; r*16
    v_lshlrev_b32 v10, 3, v2         ; r*8
    v_add_u32 v10, 1024, v10
    s_mov_b32 s40, 0xffff0000
    ''')
    for p in range(2):
        for a4 in range(4):
            a(f'''
            v_add_u32 v11, s{45+p}, v3
            v_add_u32 v11, {2*a4}, v11           ; qd
            v_mul_u32_u24 v12, 205, v11
            v_lshrrev_b32 v12, 10, v12           ; head
            v_mul_u32_u24 v13, 5, v12
            v_sub_u32 v13, v11, v13              ; dq
            v_lshrrev_b32 v14, 1, v13
            v_lshl_add_u32 v14, v14, 9, v9       ; (dq>>1)*512 + r*16
            v_and_b32 v15, 1, v13
            v_lshl_add_u32 v14, v15, 3, v14
            v_cmp_eq_u32 vcc, 4, v13
            v_cndmask_b32 v14, v14, v10, vcc
            v_mul_lo_u32 v12, v12, s47
            v_add_u32 v{EA+p*4+a4}, v14, v12
            ''')
    mainloop('qk')
    RS = [36, 38]; MR = [40, 42]
    CSB = TB
    a(f'''
    s_waitcnt lgkmcnt(0)
    ds_read_b32 v{RS[0]}, v{EL}
    ds_read_b32 v{MR[0]}, v{EL} offset:512
    ds_read_b32 v{RS[1]}, v{EL} offset:128
    ds_read_b32 v{MR[1]}, v{EL} offset:640
    ''')
    for p in range(2):
        for a4 in range(4):
            a(f'ds_read_b128 {vr(CSB+(p*4+a4)*4,4)}, v{EL+2} offset:{p*128 + a4*32}')
    a('s_waitcnt lgkmcnt(8)')
    for q in range(2):
        a(f'v_mul_f32 v{RS[q]}, s{s_scale}, v{RS[q]}')
        a(f'v_mul_f32 v{MR[q]}, s{s_scale}, v{MR[q]}')
    a('s_waitcnt lgkmcnt(0)')
    for p in range(2):
        for a4 in range(4):
            for q in range(2):
                A0 = ACC(p, q) + a4*4
                C0 = CSB + (p*4+a4)*4
                for h2 in range(2):
                    pk(a, 'v_pk_mul_f32', A0+2*h2, vr(A0+2*h2,2), vr(RS[q],2), mods='op_sel_hi:[1,0]')
                    pk(a, 'v_pk_fma_f32', A0+2*h2, vr(MR[q],2), vr(C0+2*h2,2), vr(A0+2*h2,2), mods='op_sel_hi:[0,1,1] neg_lo:[1,0,0] neg_hi:[1,0,0]')
                a(f'v_cvt_pk_bf16_f32 v{A0}, v{A0}, v{A0+1}')
                a(f'v_cvt_pk_bf16_f32 v{A0+1}, v{A0+2}, v{A0+3}')
                a(f'buffer_store_dwordx2 {vr(A0,2)}, v{EA+p*4+a4}, s[{sO}:{sO+3}], s{[s_t0,s_t1][q]} offen')
    a(f's_branch {L}_fin')
    a.label(f'{L}_v')
    a(f'''
    s_lshl_b32 s36, s36, 2
    v_lshlrev_b32 v8, 4, v3
    v_add_u32 v9, s36, v8
    v_add_u32 v{EL+2}, {STAT}, v9
    s_sub_u32 s41, s{s_nt}, 10
    s_lshl_b32 s41, s41, 7
    s_add_u32 s{s_t0}, s{s_t0}, {2*32*81920}
    s_add_u32 s{s_t1}, s{s_t1}, {2*32*81920}
    v_mul_u32_u24 v8, 320, v3       ; hh*320
    ''')
    for q in range(2):
        a(f'''
        v_add_u32 v12, s41, v10
        v_add_u32 v12, {32*q}, v12
        v_mul_u32_u24 v13, 3277, v12
        v_lshrrev_b32 v13, 16, v13          ; head
        v_mul_u32_u24 v14, 20, v13
        v_sub_u32 v14, v12, v14             ; d
        v_mul_lo_u32 v13, v13, s47
        v_lshl_add_u32 v14, v14, 4, v8
        v_add_u32 v{EA+q}, v14, v13
        ''')
    mainloop('v')
    RSB = TB; MRB = TB + 32
    CSV = [36, 38]
    a(f'''
    s_waitcnt lgkmcnt(0)
    ds_read_b32 v{CSV[0]}, v{EL+1}
    ds_read_b32 v{CSV[1]}, v{EL+1} offset:128
    ''')
    for p in range(2):
        for a4 in range(4):
            a(f'ds_read_b128 {vr(RSB+(p*4+a4)*4,4)}, v{EL+2} offset:{p*128 + a4*32}')
            a(f'ds_read_b128 {vr(MRB+(p*4+a4)*4,4)}, v{EL+2} offset:{512 + p*128 + a4*32}')
    a('s_waitcnt lgkmcnt(0)')
    for p in range(2):
        for q in range(2):
            for mf in range(2):
                A0 = ACC(p, q) + mf*8
                for h2 in range(4):
                    a4 = mf*2 + h2//2
                    o = (p*4+a4)*4 + (h2 & 1)*2
                    r = A0 + h2*2
                    pk(a, 'v_pk_mul_f32', r, vr(r,2), vr(RSB+o,2))
                    pk(a, 'v_pk_fma_f32', r, vr(MRB+o,2), vr(CSV[q],2), vr(r,2), mods='op_sel_hi:[1,0,1] neg_lo:[1,0,0] neg_hi:[1,0,0]')
                for k in range(4):
                    a(f'v_cvt_pk_bf16_f32 v{A0+k}, v{A0+2*k}, v{A0+2*k+1}')
                a(f'buffer_store_dwordx4 {vr(A0,4)}, v{EA+q}, s[{sO}:{sO+3}], s{[s_t0,s_t1][p]} offen offset:{mf*640}')
    a.label(f'{L}_fin')
    P.finish()
    a.label(f'{L}_end')
    rt_end(a, prof)
    a('s_endpgm')
    a.fix_hazards()
    for V in ('qk', 'v'):
        bad = a.check_loop(f'{L}_{V}_loop', f's_cbranch_scc1 {L}_{V}_loop')
        assert not bad, bad
    return kernel_wrap(name, a.text(), vgpr=224, sgpr=100), 131072 + 2048
```

```python
from common import *

def gen_k2(name='k2_kernel', prof=False, exp=''):
    a = Asm(); L = name
    P = Prof(a, prof, L)
    NW = 8
    sQ, sO = 12, 16
    s_w, s_head, s_qb = 24, 25, 26
    s_it = 27; s_vmask = 28
    s_t = 30
    vlane = 1
    aK1, aK2, aV = 2, 3, 4
    EA = [5, 6, 7]
    Q1 = 8; Q2 = 12
    K1 = [16, 24]; K2 = [20, 28]
    V1 = [32, 40]; V2 = [36, 44]
    S_ = [48, 64]; PP = [80, 88]; O_ = 96
    T = 112
    P.stamp(0); rt_begin(a, prof)
    a(f'''
    s_cmp_ge_u32 s2, 256
    s_cbranch_scc1 {L}_end
    s_load_dwordx2 s[8:9], s[0:1], 72
    v_and_b32 v{vlane}, 63, v0
    v_lshrrev_b32 v2, 6, v0
    v_readfirstlane_b32 s{s_w}, v2
    s_and_b32 s34, s2, 7
    s_lshl_b32 s34, s34, 2
    s_bfe_u32 s35, s2, 0x20003          ; (s2>>3)&3
    s_add_u32 s{s_head}, s34, s35
    s_lshr_b32 s{s_qb}, s2, 5
    s_mul_i32 s36, s{s_head}, 81920
    s_waitcnt lgkmcnt(0)
    ''')
    srd(a, sQ, 8, 9, WS_Q, 3*32*81920)
    a(f'''
    s_cmp_lt_u32 s{s_w}, {NW}
    s_cbranch_scc1 {L}_comp
    ''')
    vm = Vm(a)
    a(f'''
    v_lshlrev_b32 v2, 4, v{vlane}
    s_add_u32 s37, s36, {WS_K - WS_Q}
    s_add_u32 s38, s36, {WS_V - WS_Q}
    ''')
    def dma_chunk(c):
        for (sreg, lbase) in ((37, 0), (38, 81920)):
            for grp in range(3):
                n = 4 if grp < 2 else 2
                off = c*10240 + grp*4096
                a(f's_mov_b32 m0, {lbase + off}')
                a(f's_add_u32 s39, s{sreg}, {off}')
                for i in range(n):
                    a(f'buffer_load_dwordx4 v2, s[{sQ}:{sQ+3}], s39 offen offset:{i*1024} lds'); vm.issue(c)
    for c in range(3): dma_chunk(c)
    def retile_setup():
        a(f'''
        s_load_dwordx2 s[4:5], s[0:1], 16
        s_load_dwordx4 s[60:63], s[0:1], 32
        s_load_dwordx2 s[6:7], s[0:1], 48
        s_waitcnt lgkmcnt(0)
        ''')
        srd(a, 40, 4, 5, 0, 640*640*2)
        srd(a, 52, 6, 7, 0, 1536*640*2)
        srd(a, 56, 8, 9, WS_WT3, WS_RP - WS_WT3)
        a(f'''
        s_lshr_b32 s34, s2, 4            ; ft
        s_bfe_u32 s35, s2, 0x20002       ; sub
        s_and_b32 s33, s2, 3             ; sg
        s_cmp_lt_u32 s35, 2
        s_cselect_b32 s60, s60, s62
        s_cselect_b32 s61, s61, s63
        ''')
        srd(a, 44, 60, 61, 0, 640*1536*2)
        a(f'''
        s_and_b32 s39, s35, 1
        s_mul_i32 s39, s39, 96
        s_mul_i32 s37, s34, 192
        s_add_u32 s39, s39, s37
        ''')
        for i in range(6):
            a(f'''
            v_add_u32 v3, {64*i}, v{vlane}
            v_mul_u32_u24 v4, 10923, v3
            v_lshrrev_b32 v4, 16, v4
            v_mul_u32_u24 v5, 6, v4
            v_sub_u32 v5, v3, v5
            v_mul_u32_u24 v4, 3072, v4
            v_lshl_add_u32 v4, v5, 4, v4
            v_add_u32 v{8+i}, s39, v4
            ''')
        a(f'''
        s_mul_i32 s37, s34, {10*24576}
        s_mul_i32 s38, s35, 6144
        s_add_u32 s37, s37, s38
        s_add_u32 s37, s37, {WS_WT4 - WS_WT3}
        ''')
        a(f'''
        s_and_b32 s64, s2, 7             ; ct
        s_lshr_b32 s65, s2, 3            ; g
        s_and_b32 s66, s65, 1            ; mh
        s_bfe_u32 s67, s65, 0x10001      ; kh
        s_lshr_b32 s68, s65, 2           ; sg2
        s_mul_i32 s69, s66, 320
        s_mul_i32 s70, s64, 160
        ''')
        for i in range(5):
            a(f'''
            v_add_u32 v3, s69, v{vlane}
            v_add_u32 v3, {64*i}, v3
            v_mul_u32_u24 v4, 6554, v3
            v_lshrrev_b32 v4, 16, v4
            v_mul_u32_u24 v5, 10, v4
            v_sub_u32 v5, v3, v5
            v_mul_u32_u24 v4, 1280, v4
            v_lshl_add_u32 v4, v5, 4, v4
            v_add_u32 v{16+i}, s70, v4
            ''')
    def retile_k4(n):
        a(f'''
        s_add_u32 s71, s33, {4*n}
        s_cmp_ge_u32 s71, 10
        s_cbranch_scc1 {L}_rt4_{n}
        s_mul_i32 s72, s71, {64*3072}
        s_mul_i32 s73, s71, 24576
        s_add_u32 s73, s73, s37
        ''')
        for i in range(6): a(f'buffer_load_dwordx4 {vr(32+4*i,4)}, v{8+i}, s[44:47], s72 offen')
        a('s_waitcnt vmcnt(0)')
        for i in range(6):
            a(f'buffer_store_dwordx4 {vr(32+4*i,4)}, v2, s[56:59], s73 offen offset:{(i%4)*1024} sc1')
            if i == 3: a('s_add_u32 s73, s73, 4096')
        a.label(f'{L}_rt4_{n}')
    def retile_n640(kind, n):
        K = 640 if kind == 3 else 1536
        NS_ = K // 128
        sr = 40 if kind == 3 else 52
        base = (WS_WT3 if kind == 3 else WS_WT5) - WS_WT3
        a(f'''
        s_add_u32 s71, s68, {8*n}
        s_cmp_ge_u32 s71, {NS_}
        s_cbranch_scc1 {L}_rt{kind}_{n}
        s_lshl_b32 s72, s71, 6
        s_mul_i32 s74, s67, {K//2}
        s_add_u32 s72, s72, s74
        s_mul_i32 s72, s72, 1280
        s_mul_i32 s73, s64, {NS_}
        s_add_u32 s73, s73, s71
        s_mul_i32 s73, s73, 20480
        s_mul_i32 s74, s67, 10240
        s_add_u32 s73, s73, s74
        s_mul_i32 s74, s66, 5120
        s_add_u32 s73, s73, s74
        s_add_u32 s73, s73, {base}
        ''')
        for i in range(5): a(f'buffer_load_dwordx4 {vr(64+4*i,4)}, v{16+i}, s[{sr}:{sr+3}], s72 offen')
        a('s_waitcnt vmcnt(0)')
        for i in range(5):
            a(f'buffer_store_dwordx4 {vr(64+4*i,4)}, v2, s[56:59], s73 offen offset:{(i%4)*1024} sc1')
            if i == 3: a('s_add_u32 s73, s73, 4096')
        a.label(f'{L}_rt{kind}_{n}')
    jobs = {4: [retile_setup], 5: [lambda: retile_n640(3, 0), lambda: retile_k4(0)], 6: [lambda: retile_k4(1), lambda: retile_n640(5, 0)],
            7: [lambda: retile_k4(2), lambda: retile_n640(5, 1)]}
    for c in range(8):
        vm.wait(c)
        a('s_barrier')
        if c + 3 < 8: dma_chunk(c + 3)
        if 'nort' not in exp:
            for jb in jobs.get(c, []): jb()
            if c >= 5: vm.q = []
    rt_end(a, prof); a('s_endpgm')
    a.label(f'{L}_comp')
    srd(a, sO, 8, 9, WS_O, S*D*2)
    a(f'''
    s_lshl_b32 s34, s{s_qb}, 3
    s_add_u32 s34, s34, s{s_w}
    s_mul_i32 s35, s34, 1280
    s_add_u32 s35, s35, s36
    v_lshlrev_b32 v{aK1}, 4, v{vlane}
    v_and_b32 v{T}, 31, v{vlane}        ; r
    v_lshrrev_b32 v{T+1}, 5, v{vlane}   ; hh
    v_lshlrev_b32 v{aK2}, 3, v{T}
    v_add_u32 v{aK2}, 1024, v{aK2}
    buffer_load_dwordx4 {vr(Q1,4)}, v{aK1}, s[{sQ}:{sQ+3}], s35 offen
    buffer_load_dwordx2 {vr(Q2,2)}, v{aK2}, s[{sQ}:{sQ+3}], s35 offen
    v_mul_u32_u24 v{aV}, 320, v{T+1}
    v_lshl_add_u32 v{aV}, v{T}, 4, v{aV}
    v_add_u32 v{aV}, 81920, v{aV}
    v_cmp_gt_u32 s[{s_vmask}:{s_vmask+1}], 20, v{T}
    v_cmp_eq_u32 vcc, 20, v{T}
    v_mov_b32 v{T+2}, 0
    v_mov_b32 v{T+3}, 0x3f803f80
    v_cndmask_b32 v{T+4}, v{T+2}, v{T+3}, vcc
    v_cmp_eq_u32 vcc, 24, v{T}
    v_cndmask_b32 v{T+4}, v{T+4}, v{T+3}, vcc
    ''')
    for b in range(2):
        for r in range(4):
            a(f'v_mov_b32 v{V1[b]+r}, v{T+4}')
            a(f'v_mov_b32 v{V2[b]+r}, v{T+4}')
    a(f'''
    v_cmp_eq_u32 vcc, 0, v{T+1}
    v_mov_b32 v{T+3}, 0x00003f80
    v_cndmask_b32 v{T+5}, v{T+2}, v{T+3}, vcc
    ''')
    for b in range(2):
        a(f'v_mov_b32 v{K2[b]+2}, v{T+5}')
        a(f'v_mov_b32 v{K2[b]+3}, 0')
    a(f'v_mov_b32 v{Q2+2}, 0')
    a(f'v_mov_b32 v{Q2+3}, 0')
    for r in range(16): a(f'v_mov_b32 v{O_+r}, 0')
    for r in range(8): a(f'v_mov_b32 v{PP[1]+r}, 0')
    a(f'''
    s_mul_i32 s37, s{s_head}, 5
    v_and_b32 v{T+6}, 15, v{T}          ; q&15
    v_lshrrev_b32 v{T+7}, 4, v{T}       ; r>>4
    v_mul_u32_u24 v{T+7}, 20480, v{T+7}
    v_lshl_add_u32 v{T+7}, v{T+6}, 4, v{T+7}
    s_mul_i32 s{s_t}, s34, 40960
    ''')
    for G in range(3):
        a(f'''
        v_add_u32 v{T+8}, s37, v{T+1}
        v_add_u32 v{T+8}, {2*G}, v{T+8}          ; a
        v_lshrrev_b32 v{T+9}, 3, v{T+8}          ; kb
        v_lshl_add_u32 v{T+10}, v{T+9}, 10, v{T+7}
        v_and_b32 v{T+9}, 3, v{T+8}              ; g
        v_lshl_add_u32 v{T+10}, v{T+9}, 8, v{T+10}
        v_bfe_u32 v{T+9}, v{T+8}, 2, 1           ; e
        v_lshl_add_u32 v{EA[G]}, v{T+9}, 3, v{T+10}
        ''')
    a(f'''
    v_cmp_eq_u32 vcc, 1, v{T+1}
    v_mov_b32 v{T+8}, 0x7f000000
    v_cndmask_b32 v{EA[2]}, v{EA[2]}, v{T+8}, vcc
    s_waitcnt vmcnt(0)
    v_cndmask_b32 v{Q2}, v{Q2}, v{T+2}, vcc
    v_cndmask_b32 v{Q2+1}, v{Q2+1}, v{T+2}, vcc
    ''')
    P.stamp(3)
    a('s_barrier')
    P.stamp(4)
    def QK(sb, kb):
        return [f'v_mfma_f32_32x32x16_bf16 {vr(S_[sb],16)}, {vr(K1[kb],4)}, {vr(Q1,4)}, 0',
                f'v_mfma_f32_32x32x16_bf16 {vr(S_[sb],16)}, {vr(K2[kb],4)}, {vr(Q2,4)}, {vr(S_[sb],16)}']
    def PV(pb, vb):
        return [f'v_mfma_f32_32x32x16_bf16 {vr(O_,16)}, {vr(V1[vb],4)}, {vr(PP[pb],4)}, {vr(O_,16)}',
                f'v_mfma_f32_32x32x16_bf16 {vr(O_,16)}, {vr(V2[vb],4)}, {vr(PP[pb]+4,4)}, {vr(O_,16)}']
    def rdK(kb, off):
        return [f'ds_read_b128 {vr(K1[kb],4)}, v{aK1} offset:{off}', f'ds_read_b64 {vr(K2[kb],2)}, v{aK2} offset:{off}']
    def rdV(vb, off):
        return [f's_mov_b64 exec, s[{s_vmask}:{s_vmask+1}]',
                f'ds_read_b128 {vr(V1[vb],4)}, v{aV} offset:{off}', f'ds_read_b128 {vr(V2[vb],4)}, v{aV} offset:{off+640}',
                's_mov_b64 exec, -1']
    def setm(mreg):
        a(f'''
        v_sub_f32 v{mreg}, 0, v{mreg}
        v_cvt_pk_bf16_f32 v{mreg}, v{mreg}, 0
        v_and_b32 v{mreg}, 0xffff, v{mreg}
        v_cmp_gt_u32 vcc, 32, v{vlane}
        v_cndmask_b32 v{Q2+2}, 0, v{mreg}, vcc
        ''')
    def maxtree(sb, dst, init=False):
        s = S_[sb]
        if init:
            a(f'v_max3_f32 v{dst}, v{s}, v{s+1}, v{s+2}'); rest = list(range(3, 16))
        else: rest = list(range(0, 16))
        while rest:
            if len(rest) >= 2:
                a(f'v_max3_f32 v{dst}, v{dst}, v{s+rest[0]}, v{s+rest[1]}'); rest = rest[2:]
            else:
                a(f'v_max_f32 v{dst}, v{dst}, v{s+rest[0]}'); rest = rest[1:]
    def crosshalf_max(dst, tmp):
        a(f'''
        v_mov_b32 v{tmp}, v{dst}
        v_permlane32_swap_b32 v{tmp}, v{dst}
        v_max_f32 v{dst}, v{dst}, v{tmp}
        ''')
    for o in rdK(0, 0) + rdK(1, 1280): a(o)
    a('s_waitcnt lgkmcnt(2)')
    for o in QK(0, 0): a(o)
    maxtree(0, T, init=True)
    crosshalf_max(T, T+2)
    setm(T)
    for o in QK(0, 0): a(o)
    a(f's_mov_b32 s{s_it}, 0')
    def phase(sb, mf_pv, mf_qk, reads):
        s = S_[sb]; p = PP[sb]
        ev = []
        for i in range(16):
            ev.append(f'v_exp_f32 v{s+i}, v{s+i}')
            if i >= 3 and i % 2 == 1:
                k = (i - 3) // 2
                ev.append(f'v_cvt_pk_bf16_f32 v{p+k}, v{s+2*k}, v{s+2*k+1}')
        ev.append(f'v_cvt_pk_bf16_f32 v{p+7}, v{s+14}, v{s+15}')
        pos = {1: mf_qk[0], 7: mf_qk[1], 13: mf_pv[0], 19: mf_pv[1]}
        rpos = 3
        if 'nomfma' in exp: pos = {}
        if 'noqk' in exp: pos = {13: mf_pv[0], 19: mf_pv[1]}
        if 'nopv' in exp: pos = {1: mf_qk[0], 7: mf_qk[1]}
        if 'noreads' in exp: reads = []
        if 'noexec' in exp: reads = [r for r in reads if not r.startswith('s_mov_b64')]
        if 'nocvt' in exp: ev = [e for e in ev if 'cvt' not in e]
        if 'expsep' in exp: ev = [e.replace(f'v_exp_f32 v', 'v_exp_f32 v1', 1) if False else e for e in ev]
        for i, e in enumerate(ev):
            if i in pos: a(pos[i])
            if i == rpos:
                for o in reads: a(o)
            a(e)
    import re as _re
    mm = _re.search(r'unr(\d+)', exp); UNR = int(mm.group(1)) if mm else 1
    mm = _re.search(r'al(\d+)', exp); AL = int(mm.group(1)) if mm else 0
    mm = _re.search(r'pad(\d+)', exp); PAD = int(mm.group(1)) if mm else 0
    if AL: a(f'.p2align {AL}')
    for i in range(PAD): a('s_nop 0')
    a.label(f'{L}_loop')
    for j in range(UNR):
        if UNR == 1:
            a(f'''
            s_and_b32 s34, s{s_it}, 3
            s_cmp_lg_u32 s34, 3
            s_cbranch_scc1 {L}_nob
            s_barrier
            {L}_nob:
            ''')
        elif UNR == 2:
            if j == 1:
                a(f'''
                s_bitcmp1_b32 s{s_it}, 0
                s_cbranch_scc0 {L}_nob
                s_barrier
                {L}_nob:
                ''')
        elif UNR >= 4:
            if j % 4 == 3: a('s_barrier')
        a('s_waitcnt lgkmcnt(0)')
        o = j * 2560
        phase(0, PV(1, 1), QK(1, 1), rdK(0, o+2560) + rdV(0, o))
        a('s_waitcnt lgkmcnt(0)')
        phase(1, PV(0, 0), QK(0, 0), rdK(1, o+3840) + rdV(1, o+1280))
    if UNR == 32: pass
    a(f'''
    v_add_u32 v{aK1}, {2560*UNR}, v{aK1}
    v_add_u32 v{aK2}, {2560*UNR}, v{aK2}
    v_add_u32 v{aV}, {2560*UNR}, v{aV}
    s_add_u32 s{s_it}, s{s_it}, 1
    s_cmp_lt_u32 s{s_it}, {32//UNR}
    s_cbranch_scc1 {L}_loop
    s_waitcnt lgkmcnt(0)
    ''')
    for o in PV(1, 1): a(o)
    P.stamp(5)
    a.label(f'{L}_epi')
    a(f'''
    v_cmp_gt_u32 s[34:35], 32, v{vlane}
    v_cndmask_b32 v{T}, v{O_+8}, v{O_+12}, s[34:35]
    v_mov_b32 v{T+5}, {fbits(2.0**30)}
    v_cmp_nle_f32 vcc, v{T}, v{T+5}
    s_cbranch_vccnz {L}_slow
    ''')
    a.label(f'{L}_store')
    a(f'v_rcp_f32 v{T}, v{T}')
    for G in range(3):
        o = O_ + 4*G
        for h2 in range(2):
            pk(a, 'v_pk_mul_f32', o+2*h2, vr(o+2*h2,2), vr(T,2), mods='op_sel_hi:[1,0]')
        a(f'v_cvt_pk_bf16_f32 v{o}, v{o}, v{o+1}')
        a(f'v_cvt_pk_bf16_f32 v{o+1}, v{o+2}, v{o+3}')
        a(f'buffer_store_dwordx2 {vr(o,2)}, v{EA[G]}, s[{sO}:{sO+3}], s{s_t} offen')
    a(f's_branch {L}_fin')
    a.label(f'{L}_slow')
    a(f'''
    v_lshlrev_b32 v{aK1}, 4, v{vlane}
    v_and_b32 v{T+4}, 31, v{vlane}
    v_lshlrev_b32 v{aK2}, 3, v{T+4}
    v_add_u32 v{aK2}, 1024, v{aK2}
    v_mov_b32 v{Q2+2}, 0
    v_mov_b32 v{T}, 0xff800000
    s_mov_b32 s{s_it}, 0
    {L}_sl1:
    ''')
    for o in rdK(0, 0): a(o)
    a('s_waitcnt lgkmcnt(0)')
    for o in QK(0, 0): a(o)
    maxtree(0, T)
    a(f'''
    v_add_u32 v{aK1}, 1280, v{aK1}
    v_add_u32 v{aK2}, 1280, v{aK2}
    s_add_u32 s{s_it}, s{s_it}, 1
    s_cmp_lt_u32 s{s_it}, 64
    s_cbranch_scc1 {L}_sl1
    ''')
    crosshalf_max(T, T+2)
    setm(T)
    a(f'''
    v_lshlrev_b32 v{aK1}, 4, v{vlane}
    v_lshlrev_b32 v{aK2}, 3, v{T+4}
    v_add_u32 v{aK2}, 1024, v{aK2}
    v_lshrrev_b32 v{T+5}, 5, v{vlane}
    v_mul_u32_u24 v{aV}, 320, v{T+5}
    v_lshl_add_u32 v{aV}, v{T+4}, 4, v{aV}
    v_add_u32 v{aV}, 81920, v{aV}
    s_mov_b32 s{s_it}, 0
    ''')
    for r in range(16): a(f'v_mov_b32 v{O_+r}, 0')
    a.label(f'{L}_sl2')
    for o in rdK(0, 0) + rdV(0, 0): a(o)
    a('s_waitcnt lgkmcnt(0)')
    for o in QK(0, 0): a(o)
    for i in range(16): a(f'v_exp_f32 v{S_[0]+i}, v{S_[0]+i}')
    for k in range(8): a(f'v_cvt_pk_bf16_f32 v{PP[0]+k}, v{S_[0]+2*k}, v{S_[0]+2*k+1}')
    for o in PV(0, 0): a(o)
    a(f'''
    v_add_u32 v{aK1}, 1280, v{aK1}
    v_add_u32 v{aK2}, 1280, v{aK2}
    v_add_u32 v{aV}, 1280, v{aV}
    s_add_u32 s{s_it}, s{s_it}, 1
    s_cmp_lt_u32 s{s_it}, 64
    s_cbranch_scc1 {L}_sl2
    s_nop 15
    v_cmp_gt_u32 s[34:35], 32, v{vlane}
    v_cndmask_b32 v{T}, v{O_+8}, v{O_+12}, s[34:35]
    s_branch {L}_store
    ''')
    a.label(f'{L}_fin')
    P.finish()
    a.label(f'{L}_end')
    rt_end(a, prof)
    a('s_endpgm')
    a.fix_hazards()
    for lab in ('loop', 'sl1', 'sl2'):
        bad = a.check_loop(f'{L}_{lab}', f's_cbranch_scc1 {L}_{lab}')
        assert not bad, bad
    return kernel_wrap(name, a.text(), vgpr=128, sgpr=100), 163840
```

```python
from common import *

def gen_k4(name='k4_kernel', prof=False, exp=''):
    a = Asm(); L = name
    P = Prof(a, prof, L)
    NST = 10
    sA, sG, sU, sO, sS, sC = 12, 16, 20, 40, 44, 48
    s_mt, s_ft, s_w, s_wm, s_wn = 24, 25, 26, 27, 28
    s_it, s_dA, s_dB, s_slot = 29, 30, 31, 32
    vlane = 1
    ASL = 16384; BSL = 24576; BBASE = 65536
    STAT = ((NST - 2) % 4) * ASL
    P.stamp(0); rt_begin(a, prof)
    a(f'''
    s_cmp_ge_u32 s2, 256
    s_cbranch_scc1 {L}_end
    s_load_dwordx4 s[4:7], s[0:1], 32
    s_load_dwordx2 s[8:9], s[0:1], 72
    v_and_b32 v{vlane}, 63, v0
    v_lshrrev_b32 v2, 6, v0
    v_readfirstlane_b32 s{s_w}, v2
    s_and_b32 s34, s2, 7
    s_lshr_b32 s35, s2, 3
    s_and_b32 s{s_mt}, s34, 1
    s_lshl_b32 s{s_mt}, s{s_mt}, 3
    s_and_b32 s36, s35, 7
    s_add_u32 s{s_mt}, s{s_mt}, s36        ; 0..15
    s_lshr_b32 s{s_ft}, s34, 1
    s_lshl_b32 s{s_ft}, s{s_ft}, 2
    s_lshr_b32 s36, s35, 3
    s_add_u32 s{s_ft}, s{s_ft}, s36        ; 0..15
    s_cmp_lt_u32 s{s_w}, 4
    s_cbranch_scc1 {L}_comp
    ''')
    voffB = [8, 9, 10, 11, 12, 13]; vA = [14, 15]
    a(f'''
    s_sub_u32 s{s_w}, s{s_w}, 4
    s_lshl_b32 s34, s{s_mt}, 3
    s_lshl_b32 s35, s{s_w}, 1
    s_add_u32 s34, s34, s35
    s_mul_i32 s34, s34, 20480
    v_lshlrev_b32 v2, 4, v{vlane}
    v_add_u32 v{vA[0]}, s34, v2
    v_add_u32 v{vA[1]}, {20480 - 2048}, v{vA[0]}
    s_lshl_b32 s36, s{s_w}, 12             ; m0A base
    s_mul_i32 s37, s{s_w}, 6144
    s_mul_i32 s39, s{s_ft}, {10*24576}
    s_add_u32 s39, s39, s37
    s_add_u32 s37, s37, {BBASE}            ; m0B base
    s_waitcnt lgkmcnt(0)
    ''')
    srd(a, sA, 8, 9, WS_H, S*D*2)
    srd(a, sG, 8, 9, WS_WT4, 16*10*24576)
    vm = Vm(a)
    def dma_stage(st):
        if 'k4nodma' in exp and st >= 2: return
        slot = st % 4
        a(f's_add_u32 m0, s36, {slot*ASL}')
        a(f's_movk_i32 s34, {st*2048}')
        for i in range(4):
            a(f'buffer_load_dwordx4 v{vA[i//2]}, s[{sA}:{sA+3}], s34 offen offset:{i*1024} lds'); vm.issue(st)
        a(f's_add_u32 m0, s37, {slot*BSL}')
        a(f's_add_u32 s35, s39, {st*24576}')
        for i in range(4):
            a(f'buffer_load_dwordx4 v2, s[{sG}:{sG+3}], s35 offen offset:{i*1024} lds'); vm.issue(st)
        a(f's_add_u32 m0, s37, {slot*BSL + 4096}')
        a(f's_add_u32 s35, s35, 4096')
        for i in range(4, 6):
            a(f'buffer_load_dwordx4 v2, s[{sG}:{sG+3}], s35 offen offset:{(i-4)*1024} lds'); vm.issue(st)
    dma_stage(0); dma_stage(1)
    srd(a, sS, 8, 9, WS_ST, S*16*8)
    srd(a, sC, 8, 9, WS_CS2, 5*3072*4)
    a(f'''
    s_lshl_b32 s34, s{s_mt}, 7
    s_lshl_b32 s35, s{s_w}, 6
    s_add_u32 s34, s34, s35
    v_add_u32 v16, s34, v{vlane}
    v_lshlrev_b32 v16, 7, v16              ; row*128
    v_cmp_gt_u32 vcc, 24, v{vlane}
    v_lshlrev_b32 v17, 4, v{vlane}
    v_add_u32 v18, {1536*4 - 24*16}, v17
    v_cndmask_b32 v17, v18, v17, vcc
    s_mul_i32 s34, s{s_ft}, 384
    v_add_u32 v17, s34, v17
    v_cmp_gt_u32 vcc, 48, v{vlane}
    v_mov_b32 v18, 0x7f000000
    v_cndmask_b32 v17, v18, v17, vcc
    s_cmp_lt_u32 s{s_w}, 2
    s_cbranch_scc0 {L}_side2
    ''')
    for i in range(8):
        a(f'buffer_load_dwordx4 {vr(32+4*i,4)}, v16, s[{sS}:{sS+3}], 0 offen offset:{16*i}')
    a(f's_branch {L}_side3')
    a.label(f'{L}_side2')
    for i in range(8):
        a(f's_mov_b32 s34, {min(i,4)*3072*4}')
        a(f'buffer_load_dwordx4 {vr(32+4*i,4)}, v17, s[{sC}:{sC+3}], s34 offen')
    a.label(f'{L}_side3')
    for i in range(8): vm.issue('side')
    for st in range(NST):
        vm.wait(st)
        if st == 9:
            a(f'''
            s_waitcnt vmcnt(0)
            s_cmp_lt_u32 s{s_w}, 2
            s_cbranch_scc0 {L}_fin2
            ''')
            for i in range(1, 16):
                pk(a, 'v_pk_add_f32', 32, vr(32,2), vr(32+2*i,2))
            a(f'''
            v_mul_f32 v32, {fbits(1.0/640)}, v32
            v_mul_f32 v33, {fbits(1.0/640)}, v33
            v_fma_f32 v33, -v32, v32, v33
            v_max_f32 v33, 0, v33
            v_add_f32 v33, {fbits(1e-5)}, v33
            v_rsq_f32 v33, v33
            v_mul_f32 v32, v32, v33
            s_lshl_b32 s34, s{s_w}, 8
            v_lshlrev_b32 v16, 2, v{vlane}
            v_add_u32 v16, s34, v16
            s_barrier
            ds_write_b32 v16, v33 offset:{STAT}
            ds_write_b32 v16, v32 offset:{STAT+512}
            s_waitcnt lgkmcnt(0)
            s_barrier
            s_branch {L}_end
            {L}_fin2:
            s_cmp_eq_u32 s{s_w}, 2
            s_cbranch_scc0 {L}_fin3
            ''')
            for i in range(1, 5):
                pk(a, 'v_pk_add_f32', 32, vr(32,2), vr(32+4*i,2))
                pk(a, 'v_pk_add_f32', 34, vr(34,2), vr(34+4*i,2))
            a(f'''
            v_lshlrev_b32 v16, 4, v{vlane}
            v_cmp_gt_u32 vcc, 48, v{vlane}
            s_barrier
            s_and_saveexec_b64 s[34:35], vcc
            ds_write_b128 v16, v[32:35] offset:{STAT+1024}
            s_waitcnt lgkmcnt(0)
            s_mov_b64 exec, s[34:35]
            s_barrier
            s_branch {L}_end
            {L}_fin3:
            ''')
        a('s_barrier')
        if st == 0: dma_stage(2); dma_stage(3)
        elif st + 3 < NST: dma_stage(st + 3)
    rt_end(a, prof); a('s_endpgm')
    a.label(f'{L}_comp')
    aX, aW = 2, 3
    XF = lambda b, i: 8 + b*16 + i*4
    WF = lambda b, k: 40 + b*24 + k*4
    ACC = lambda k, i: 88 + (k*4 + i)*4
    aRS, aCS, EAo = 184, 185, 186
    T = 188
    a(f'''
    s_lshr_b32 s{s_wm}, s{s_w}, 1
    s_and_b32 s{s_wn}, s{s_w}, 1
    v_lshlrev_b32 v{aX}, 4, v{vlane}
    v_mov_b32 v{EAo}, v{aX}
    s_lshl_b32 s34, s{s_wm}, 13            ; (4wm)*2*1024
    v_add_u32 v{aX}, s34, v{aX}
    v_lshrrev_b32 v{T}, 4, v{vlane}        ; g
    v_bfe_u32 v{T+1}, v{vlane}, 2, 2       ; rr
    v_and_b32 v{T+2}, 3, v{vlane}          ; cq
    v_lshl_add_u32 v{T+3}, v{T}, 2, v{T+1}
    v_mul_u32_u24 v{aW}, 96, v{T+3}
    v_lshl_add_u32 v{aW}, v{T+2}, 3, v{aW}
    s_mul_i32 s34, s{s_wn}, 6144
    s_add_u32 s34, s34, {BBASE}
    v_add_u32 v{aW}, s34, v{aW}
    v_and_b32 v{T+4}, 15, v{vlane}         ; m
    s_lshl_b32 s34, s{s_wm}, 6
    v_add_u32 v{T+4}, s34, v{T+4}
    v_lshlrev_b32 v{aRS}, 2, v{T+4}        ; (wm*64 + m)*4  (+ i*64)
    s_mul_i32 s34, s{s_wn}, 192
    v_lshlrev_b32 v{aCS}, 4, v{T}
    v_add_u32 v{aCS}, s34, v{aCS}
    s_waitcnt lgkmcnt(0)
    ''')
    srd(a, sO, 8, 9, WS_ACT, S*F*2)
    s_o = 52
    a(f'''
    s_lshl_b32 s36, s{s_mt}, 3
    s_lshl_b32 s37, s{s_wm}, 2
    s_add_u32 s36, s36, s37
    s_mul_i32 s36, s36, {48*1024}
    s_mul_i32 s37, s{s_ft}, 6
    s_mul_i32 s35, s{s_wn}, 3
    s_add_u32 s37, s37, s35
    ''')
    for s in range(3):
        a(f'''
        s_add_u32 s34, s37, {s}
        s_lshr_b32 s35, s34, 1
        s_lshl_b32 s35, s35, 10
        s_and_b32 s34, s34, 1
        s_lshl_b32 s34, s34, 3
        s_add_u32 s35, s35, s34
        s_add_u32 s{s_o+s}, s35, s36
        ''')
    for r in range(96): a(f'v_mov_b32 v{88+r}, 0')
    a(f'''
    s_mov_b32 s{s_it}, 0
    s_mov_b32 s{s_slot}, 0
    s_mov_b32 s58, {ASL}
    s_mov_b32 s59, {(-3*ASL) & 0xffffffff}
    s_mov_b32 s60, {BSL}
    s_mov_b32 s61, {(-3*BSL) & 0xffffffff}
    ''')
    def rd(t, b):
        o = []
        for i in range(4):
            o.append(f'ds_read_b128 {vr(XF(b,i),4)}, v{aX} offset:{(i*2+t)*1024}')
        for k in range(6):
            mat, s = divmod(k, 3)
            for e in range(2):
                o.append(f'ds_read_b64_tr_b16 {vr(WF(b,k)+2*e,2)}, v{aW} offset:{mat*12288 + (32*t+16*e)*96 + s*32}')
        return o
    P.stamp(3)
    a('s_barrier')
    P.stamp(4)
    for o in rd(0, 0): a(o)
    a.label(f'{L}_loop')
    for u in range(2):
      for t in range(2):
        b = t
        if t == 1:
            a('s_waitcnt lgkmcnt(0)')
            a('s_barrier')
            if u == 0:
                a(f'v_add_u32 v{aX}, {ASL}, v{aX}')
                a(f'v_add_u32 v{aW}, {BSL}, v{aW}')
            else:
                a(f'''
                s_bitcmp1_b32 s{s_it}, 0
                s_cselect_b32 s{s_dA}, s59, s58
                s_cselect_b32 s{s_dB}, s61, s60
                v_add_u32 v{aX}, s{s_dA}, v{aX}
                v_add_u32 v{aW}, s{s_dB}, v{aW}
                ''')
        R = rd(1, 1) if t == 0 else rd(0, 0)
        n = 0
        for k in range(6):
            for i in range(4):
                if t == 0 and i == 0:
                    rem_old = 16 - (4 + 2*(k+1))
                    newc = min(16, n)
                    a(f's_waitcnt lgkmcnt({min(15, rem_old + newc)})')
                if 'k4nomfma' not in exp: a(f'v_mfma_f32_16x16x32_bf16 {vr(ACC(k,i),4)}, {vr(WF(b,k),4)}, {vr(XF(b,i),4)}, {vr(ACC(k,i),4)}')
                if n < 16 and 'k4noreads' not in exp: a(R[n])
                n += 1
    a(f'''
    s_add_u32 s{s_it}, s{s_it}, 1
    s_cmp_lt_u32 s{s_it}, {NST//2}
    s_cbranch_scc1 {L}_loop
    ''')
    P.stamp(5)
    RS = lambda i: 8 + 4*i; MR = lambda i: 10 + 4*i
    CS = lambda k: 40 + 4*k
    a('s_waitcnt lgkmcnt(0)')
    for i in range(4):
        a(f'ds_read_b32 v{RS(i)}, v{aRS} offset:{STAT + i*64}')
        a(f'ds_read_b32 v{MR(i)}, v{aRS} offset:{STAT + 512 + i*64}')
    for k in range(6):
        mat, s = divmod(k, 3)
        a(f'ds_read_b128 {vr(CS(k),4)}, v{aCS} offset:{STAT + 1024 + mat*384 + s*64}')
    a('s_waitcnt lgkmcnt(0)')
    C0 = 2*0.7978845608028654*1.4426950408889634
    C1 = C0*0.044715
    a(f's_mov_b32 s34, {fbits(-C0)}')
    a(f's_mov_b32 s35, {fbits(-C1)}')
    X = 64
    for s in range(3):
        for i in range(4):
            G0 = ACC(s, i); U0 = ACC(3+s, i)
            for h2 in range(2):
                for (A0, k) in ((G0, s), (U0, 3+s)):
                    r = A0 + 2*h2
                    pk(a, 'v_pk_mul_f32', r, vr(r,2), vr(RS(i),2), mods='op_sel_hi:[1,0]')
                    pk(a, 'v_pk_fma_f32', r, vr(MR(i),2), vr(CS(k)+2*h2,2), vr(r,2), mods='op_sel_hi:[0,1,1] neg_lo:[1,0,0] neg_hi:[1,0,0]')
            XX = X + 4*((s*4+i) % 4)
            for h2 in range(2):
                pk(a, 'v_pk_mul_f32', XX+2*h2, vr(G0+2*h2,2), vr(G0+2*h2,2))
            for h2 in range(2):
                pk(a, 'v_pk_fma_f32', XX+2*h2, vr(XX+2*h2,2), vr(T+10,2), vr(T+8,2))
            for h2 in range(2):
                pk(a, 'v_pk_mul_f32', XX+2*h2, vr(XX+2*h2,2), vr(G0+2*h2,2))
            for r4 in range(4):
                a(f'v_exp_f32 v{XX+r4}, v{XX+r4}')
            for h2 in range(2):
                pk(a, 'v_pk_mul_f32', G0+2*h2, vr(G0+2*h2,2), vr(U0+2*h2,2))
            for h2 in range(2):
                pk(a, 'v_pk_add_f32', XX+2*h2, vr(XX+2*h2,2), vr(T+12,2))
            for r4 in range(4):
                a(f'v_rcp_f32 v{XX+r4}, v{XX+r4}')
            for h2 in range(2):
                pk(a, 'v_pk_mul_f32', G0+2*h2, vr(G0+2*h2,2), vr(XX+2*h2,2))
            a(f'v_cvt_pk_bf16_f32 v{G0}, v{G0}, v{G0+1}')
            a(f'v_cvt_pk_bf16_f32 v{G0+1}, v{G0+2}, v{G0+3}')
            a(f's_add_u32 s36, s{s_o+s}, {i*48*1024}')
            a(f'buffer_store_dwordx2 {vr(G0,2)}, v{EAo}, s[{sO}:{sO+3}], s36 offen')
    P.finish()
    a.label(f'{L}_end')
    rt_end(a, prof)
    a('s_endpgm')
    idx = next(i for i, x in enumerate(a.ins) if x.text.startswith('s_mov_b32 s35, ' + fbits(-C1)))
    from asmlib import Ins
    a.ins.insert(idx + 1, Ins(f'v_mov_b32 v{T+8}, s34'))
    a.ins.insert(idx + 2, Ins(f'v_mov_b32 v{T+9}, s34'))
    a.ins.insert(idx + 3, Ins(f'v_mov_b32 v{T+10}, s35'))
    a.ins.insert(idx + 4, Ins(f'v_mov_b32 v{T+11}, s35'))
    a.ins.insert(idx + 5, Ins(f'v_mov_b32 v{T+12}, 1.0'))
    a.ins.insert(idx + 6, Ins(f'v_mov_b32 v{T+13}, 1.0'))
    a.fix_hazards()
    bad = a.check_loop(f'{L}_loop', f's_cbranch_scc1 {L}_loop')
    assert not bad, bad
    return kernel_wrap(name, a.text(), vgpr=208, sgpr=100), 163840
```

```python
from common import *

def gen_m2(name='m2_kernel', prof=False, exp=''):
    a = Asm(); L = name
    P = Prof(a, prof, L, base=72, n=15, fin=(13, 14))
    vlane = 1
    s_w, s_ep, s_x8, s_hs, s_qb, s_ct = 22, 23, 24, 25, 26, 27
    sFL = 28
    WSL, WSH = 20, 21
    def set_flag(arr, phase_c):
        a(f'''
        s_add_u32 s34, s{s_ep}, {(EPOCH_INC * phase_c) & 0xffffffff}
        v_mov_b32 v2, s34
        s_lshl_b32 s35, s2, 7
        s_add_u32 s35, s35, {arr*256*128}
        v_mov_b32 v3, s35
        v_cmp_eq_u32 vcc, 0, v{vlane}
        s_and_saveexec_b64 s[36:37], vcc
        buffer_store_dword v2, v3, s[{sFL}:{sFL+3}], 0 offen sc1
        s_mov_b64 exec, s[36:37]
        ''')
    uid = [0]
    def poll(vaddrs, phase_c):
        uid[0] += 1; u = uid[0]
        a(f's_add_u32 s34, s{s_ep}, {(EPOCH_INC * phase_c) & 0xffffffff}')
        a('s_mov_b32 s38, 0')
        a.label(f'{L}_poll{u}')
        for i, v in enumerate(vaddrs):
            a(f'buffer_load_dword v{4+i}, v{v}, s[{sFL}:{sFL+3}], 0 offen sc1')
        a('s_waitcnt vmcnt(0)')
        for i in range(len(vaddrs)):
            a(f'v_cmp_ne_u32 vcc, s34, v{4+i}' if i == 0 else f'v_cmp_ne_u32 s[36:37], s34, v{4+i}')
            if i: a('s_or_b64 vcc, vcc, s[36:37]')
        a(f'''
        s_cbranch_vccz {L}_pollok{u}
        s_add_u32 s38, s38, 1
        s_cmp_ge_u32 s38, 100000
        s_cbranch_scc1 {L}_pollok{u}
        s_sleep 1
        s_branch {L}_poll{u}
        {L}_pollok{u}:
        ''')
    P.stamp(0)
    a(f'''
    s_cmp_ge_u32 s2, 256
    s_cbranch_scc1 {L}_end
    s_load_dwordx16 s[4:19], s[0:1], 0
    s_load_dwordx2 s[20:21], s[0:1], 72
    v_and_b32 v{vlane}, 63, v0
    v_lshrrev_b32 v2, 6, v0
    v_readfirstlane_b32 s{s_w}, v2
    s_and_b32 s{s_x8}, s2, 7
    s_bfe_u32 s{s_hs}, s2, 0x20003
    s_lshr_b32 s{s_qb}, s2, 5
    s_lshr_b32 s{s_ct}, s{s_x8}, 2
    s_lshl_b32 s{s_ct}, s{s_ct}, 2
    s_add_u32 s{s_ct}, s{s_ct}, s{s_hs}
    s_waitcnt lgkmcnt(0)
    s_add_u32 s34, s{WSL}, {WS_EPOCH}
    s_addc_u32 s35, s{WSH}, 0
    s_load_dword s{s_ep}, s[34:35], 0
    ''')
    srd(a, sFL, WSL, WSH, WS_FLAG2, 4*256*128)
    a(f'''
    s_cmp_lt_u32 s{s_w}, 4
    s_cbranch_scc1 {L}_comp
    s_sub_u32 s{s_w}, s{s_w}, 4
    ''')
    sQ = 40
    srd(a, sQ, WSL, WSH, WS_Q, 3*32*81920)
    a(f'''
    v_lshlrev_b32 v2, 4, v{vlane}
    s_lshl_b32 s34, s{s_x8}, 2
    s_add_u32 s34, s34, s{s_hs}          ; head
    s_mul_i32 s36, s34, 81920
    s_cmp_lg_u32 s{s_w}, 0
    s_cbranch_scc1 {L}_p2idle
    s_add_u32 s37, s36, {WS_K - WS_Q}
    s_add_u32 s38, s36, {WS_V - WS_Q}
    ''')
    vm = Vm(a)
    def dma_chunk(c):
        for (sreg, lbase) in ((37, 0), (38, 81920)):
            for grp in range(3):
                n = 4 if grp < 2 else 2
                off = c*10240 + grp*4096
                a(f's_mov_b32 m0, {lbase + off}')
                a(f's_add_u32 s39, s{sreg}, {off}')
                for i in range(n):
                    a(f'buffer_load_dwordx4 v2, s[{sQ}:{sQ+3}], s39 offen offset:{i*1024} lds'); vm.issue(c)
    for c in range(3): dma_chunk(c)
    def retile_setup():
        srd(a, 44, 8, 9, 0, 640*640*2)
        srd(a, 52, 16, 17, 0, 1536*640*2)
        srd(a, 56, WSL, WSH, WS_WT3, WS_RP - WS_WT3)
        a(f'''
        s_lshr_b32 s34, s2, 4            ; ft
        s_bfe_u32 s35, s2, 0x20002       ; sub
        s_and_b32 s33, s2, 3             ; sg
        s_cmp_lt_u32 s35, 2
        s_cselect_b32 s60, s12, s14
        s_cselect_b32 s61, s13, s15
        ''')
        srd(a, 48, 60, 61, 0, 640*1536*2)
        a(f'''
        s_and_b32 s63, s35, 1
        s_mul_i32 s63, s63, 96
        s_mul_i32 s62, s34, 192
        s_add_u32 s63, s63, s62
        ''')
        for i in range(6):
            a(f'''
            v_add_u32 v3, {64*i}, v{vlane}
            v_mul_u32_u24 v4, 10923, v3
            v_lshrrev_b32 v4, 16, v4
            v_mul_u32_u24 v5, 6, v4
            v_sub_u32 v5, v3, v5
            v_mul_u32_u24 v4, 3072, v4
            v_lshl_add_u32 v4, v5, 4, v4
            v_add_u32 v{8+i}, s63, v4
            ''')
        a(f'''
        s_mul_i32 s62, s34, {10*24576}
        s_mul_i32 s63, s35, 6144
        s_add_u32 s62, s62, s63
        s_add_u32 s62, s62, {WS_WT4 - WS_WT3}
        s_and_b32 s64, s2, 7             ; ct
        s_lshr_b32 s65, s2, 3            ; g
        s_and_b32 s66, s65, 1            ; mh
        s_bfe_u32 s67, s65, 0x10001      ; kh
        s_lshr_b32 s68, s65, 2           ; sg2
        s_mul_i32 s69, s66, 320
        s_mul_i32 s70, s64, 160
        ''')
        for i in range(5):
            a(f'''
            v_add_u32 v3, s69, v{vlane}
            v_add_u32 v3, {64*i}, v3
            v_mul_u32_u24 v4, 6554, v3
            v_lshrrev_b32 v4, 16, v4
            v_mul_u32_u24 v5, 10, v4
            v_sub_u32 v5, v3, v5
            v_mul_u32_u24 v4, 1280, v4
            v_lshl_add_u32 v4, v5, 4, v4
            v_add_u32 v{16+i}, s70, v4
            ''')
    def retile_k4(n):
        a(f'''
        s_add_u32 s71, s33, {4*n}
        s_cmp_ge_u32 s71, 10
        s_cbranch_scc1 {L}_rt4_{n}
        s_mul_i32 s72, s71, {64*3072}
        s_mul_i32 s73, s71, 24576
        s_add_u32 s73, s73, s62
        ''')
        for i in range(6): a(f'buffer_load_dwordx4 {vr(32+4*i,4)}, v{8+i}, s[48:51], s72 offen')
        a('s_waitcnt vmcnt(0)')
        for i in range(6):
            a(f'buffer_store_dwordx4 {vr(32+4*i,4)}, v2, s[56:59], s73 offen offset:{(i%4)*1024} sc1')
            if i == 3: a('s_add_u32 s73, s73, 4096')
        a.label(f'{L}_rt4_{n}')
    def retile_n640(kind, n):
        K = 640 if kind == 3 else 1536
        NS_ = K // 128
        sr = 44 if kind == 3 else 52
        base = (WS_WT3 if kind == 3 else WS_WT5) - WS_WT3
        a(f'''
        s_add_u32 s71, s68, {8*n}
        s_cmp_ge_u32 s71, {NS_}
        s_cbranch_scc1 {L}_rt{kind}_{n}
        s_lshl_b32 s72, s71, 6
        s_mul_i32 s74, s67, {K//2}
        s_add_u32 s72, s72, s74
        s_mul_i32 s72, s72, 1280
        s_mul_i32 s73, s64, {NS_}
        s_add_u32 s73, s73, s71
        s_mul_i32 s73, s73, 20480
        s_mul_i32 s74, s67, 10240
        s_add_u32 s73, s73, s74
        s_mul_i32 s74, s66, 5120
        s_add_u32 s73, s73, s74
        s_add_u32 s73, s73, {base}
        ''')
        for i in range(5): a(f'buffer_load_dwordx4 {vr(64+4*i,4)}, v{16+i}, s[{sr}:{sr+3}], s72 offen')
        a('s_waitcnt vmcnt(0)')
        for i in range(5):
            a(f'buffer_store_dwordx4 {vr(64+4*i,4)}, v2, s[56:59], s73 offen offset:{(i%4)*1024} sc1')
            if i == 3: a('s_add_u32 s73, s73, 4096')
        a.label(f'{L}_rt{kind}_{n}')
    jobs = {4: [retile_setup], 5: [lambda: retile_n640(3, 0), lambda: retile_k4(0)], 6: [lambda: retile_k4(1), lambda: retile_n640(5, 0)],
            7: [lambda: retile_k4(2), lambda: retile_n640(5, 1)]}
    for c in range(8):
        vm.wait(c)
        a('s_barrier')
        if c + 3 < 8: dma_chunk(c + 3)
        for jb in jobs.get(c, []): jb()
        if c >= 5: vm.q = []
    a('s_waitcnt vmcnt(0) lgkmcnt(0)')
    set_flag(0, 1)
    a(f'''
    v_lshlrev_b32 v8, 7, v{vlane}
    v_add_u32 v9, 8192, v8
    v_add_u32 v10, 16384, v8
    v_add_u32 v11, 24576, v8
    ''')
    poll([8, 9, 10, 11], 1)
    a(f's_branch {L}_p2done')
    a.label(f'{L}_p2idle')
    for c in range(8): a('s_barrier')
    a('s_waitcnt lgkmcnt(0)')
    a.label(f'{L}_p2done')
    a('s_barrier')
    def n640_loader(mode, arr_self, phase_self, poll_setup, phase_dep):
        K = 640 if mode == 'wo' else 1536
        KT = K // 16
        NST = K // 128
        ASL = 16384; BSL = 20480; BBASE = 65536
        sA, sB = 40, 44
        a(f'''
        s_cmp_lg_u32 s{s_w}, 0
        s_cbranch_scc1 {L}_{mode}_nf
        ''')
        set_flag(arr_self, phase_self)
        a.label(f'{L}_{mode}_nf')
        srd(a, sA, WSL, WSH, WS_O if mode == 'wo' else WS_ACT, S*K*2)
        srd(a, sB, WSL, WSH, WS_WT3 if mode == 'wo' else WS_WT5, 8*NST*20480)
        a(f'''
        s_lshr_b32 s50, s{s_w}, 1            ; kh
        s_and_b32 s51, s{s_w}, 1             ; mh
        s_lshl_b32 s34, s{s_qb}, 2
        s_and_b32 s35, s{s_x8}, 3
        s_add_u32 s34, s34, s35              ; m64
        s_lshl_b32 s34, s34, 2
        s_lshl_b32 s35, s51, 1
        s_add_u32 s34, s34, s35              ; mt16
        s_mul_i32 s34, s34, {KT*512}
        s_mul_i32 s35, s50, {KT//2*512}
        s_add_u32 s34, s34, s35
        v_lshlrev_b32 v2, 4, v{vlane}
        v_add_u32 v13, s34, v2
        v_add_u32 v14, {KT*512 - 2048}, v13
        s_lshl_b32 s52, s50, 13
        s_lshl_b32 s53, s51, 12
        s_add_u32 s52, s52, s53              ; m0A base
        s_mul_i32 s53, s50, 10240
        s_mul_i32 s33, s51, 5120
        s_add_u32 s53, s53, s33
        s_mul_i32 s54, s{s_ct}, {NST*20480}
        s_add_u32 s54, s54, s53
        s_add_u32 s53, s53, {BBASE}          ; m0B base
        ''')
        vm = Vm(a)
        def dA(st):
            slot = st % 4
            a(f's_add_u32 m0, s52, {slot*ASL}')
            a(f's_movk_i32 s34, {st*2048}')
            for i in range(4):
                a(f'buffer_load_dwordx4 v{13 + i//2}, s[{sA}:{sA+3}], s34 offen offset:{i*1024} lds'); vm.issue(st)
        def dB(st):
            slot = st % 4
            a(f's_add_u32 m0, s53, {slot*BSL}')
            a(f's_add_u32 s35, s54, {st*20480}')
            for i in range(4):
                a(f'buffer_load_dwordx4 v2, s[{sB}:{sB+3}], s35 offen offset:{i*1024} lds'); vm.issue(('B', st))
            a(f's_add_u32 m0, s53, {slot*BSL + 4096}')
            a(f's_add_u32 s35, s35, 4096')
            a(f'buffer_load_dwordx4 v2, s[{sB}:{sB+3}], s35 offen lds'); vm.issue(('B', st))
        for st in range(4): dB(st)
        a(f'''
        s_cmp_lg_u32 s{s_w}, 0
        s_cbranch_scc1 {L}_{mode}_np
        ''')
        poll_setup()
        a.label(f'{L}_{mode}_np')
        a('s_barrier')
        for st in range(4): dA(st)
        for st in range(NST):
            vm.wait(st)
            a('s_barrier')
            if st >= 1 and st + 3 < NST:
                dB(st + 3); dA(st + 3)
        a('s_barrier')
        a('s_barrier')
    def poll_p3():
        a(f'''
        v_and_b32 v8, 31, v{vlane}
        s_lshl_b32 s35, s{s_qb}, 5
        v_add_u32 v8, s35, v8
        v_lshlrev_b32 v8, 7, v8
        v_add_u32 v8, {1*256*128}, v8
        ''')
        poll([8], 2)
    n640_loader('wo', 1, 2, poll_p3, 2)
    ASL = 16384; BSL = 24576; BBASE = 65536
    STAT4 = 0
    sA, sG, sS, sC = 40, 44, 48, 52
    a(f'''
    s_cmp_lg_u32 s{s_w}, 0
    s_cbranch_scc1 {L}_p4_nf
    ''')
    set_flag(2, 3)
    a.label(f'{L}_p4_nf')
    srd(a, sA, WSL, WSH, WS_H, S*D*2)
    srd(a, sG, WSL, WSH, WS_WT4, 16*10*24576)
    srd(a, sS, WSL, WSH, WS_ST, S*16*8)
    srd(a, sC, WSL, WSH, WS_CS2, 5*3072*4)
    a(f'''
    s_lshl_b32 s56, s{s_qb}, 1
    s_and_b32 s34, s{s_x8}, 1
    s_add_u32 s56, s56, s34              ; mt128
    s_lshr_b32 s57, s{s_x8}, 1
    s_lshl_b32 s57, s57, 2
    s_add_u32 s57, s57, s{s_hs}          ; ft
    s_lshl_b32 s34, s56, 3
    s_lshl_b32 s35, s{s_w}, 1
    s_add_u32 s34, s34, s35              ; mt16
    s_mul_i32 s34, s34, 20480
    v_lshlrev_b32 v2, 4, v{vlane}
    v_add_u32 v14, s34, v2
    v_add_u32 v15, {20480 - 2048}, v14
    s_lshl_b32 s58, s{s_w}, 12           ; m0A base
    s_mul_i32 s59, s{s_w}, 6144
    s_mul_i32 s60, s57, {10*24576}
    s_add_u32 s60, s60, s59
    s_add_u32 s59, s59, {BBASE}          ; m0B base
    ''')
    vm = Vm(a)
    def dA4(st):
        slot = st % 4
        a(f's_add_u32 m0, s58, {slot*ASL}')
        a(f's_movk_i32 s34, {st*2048}')
        for i in range(4):
            a(f'buffer_load_dwordx4 v{14 + i//2}, s[{sA}:{sA+3}], s34 offen offset:{i*1024} lds'); vm.issue(st)
    def dB4(st):
        slot = st % 4
        a(f's_add_u32 m0, s59, {slot*BSL}')
        a(f's_add_u32 s35, s60, {st*24576}')
        for i in range(4):
            a(f'buffer_load_dwordx4 v2, s[{sG}:{sG+3}], s35 offen offset:{i*1024} lds'); vm.issue(('B', st))
        a(f's_add_u32 m0, s59, {slot*BSL + 4096}')
        a(f's_add_u32 s35, s35, 4096')
        for i in range(2):
            a(f'buffer_load_dwordx4 v2, s[{sG}:{sG+3}], s35 offen offset:{i*1024} lds'); vm.issue(('B', st))
    for st in range(4): dB4(st)
    a(f'''
    s_cmp_lg_u32 s{s_w}, 0
    s_cbranch_scc1 {L}_p4_np
    v_bfe_u32 v8, v{vlane}, 2, 2          ; hs'
    v_lshlrev_b32 v8, 3, v8
    v_bfe_u32 v9, v{vlane}, 1, 1
    v_lshl_add_u32 v8, v9, 2, v8
    v_and_b32 v9, 1, v{vlane}
    v_add_u32 v8, v8, v9
    s_lshl_b32 s35, s{s_qb}, 5
    s_and_b32 s34, s{s_x8}, 1
    s_lshl_b32 s34, s34, 1
    s_add_u32 s35, s35, s34
    v_add_u32 v8, s35, v8
    v_lshlrev_b32 v8, 7, v8
    v_add_u32 v8, {2*256*128}, v8
    ''')
    poll([8], 3)
    a.label(f'{L}_p4_np')
    a('s_barrier')
    for st in range(2): dA4(st)
    a(f'''
    s_lshl_b32 s34, s56, 7
    s_lshl_b32 s35, s{s_w}, 6
    s_add_u32 s34, s34, s35
    v_add_u32 v16, s34, v{vlane}
    v_lshlrev_b32 v16, 7, v16
    v_cmp_gt_u32 vcc, 24, v{vlane}
    v_lshlrev_b32 v17, 4, v{vlane}
    v_add_u32 v18, {1536*4 - 24*16}, v17
    v_cndmask_b32 v17, v18, v17, vcc
    s_mul_i32 s34, s57, 384
    v_add_u32 v17, s34, v17
    v_cmp_gt_u32 vcc, 48, v{vlane}
    v_mov_b32 v18, 0x7f000000
    v_cndmask_b32 v17, v18, v17, vcc
    s_cmp_lt_u32 s{s_w}, 2
    s_cbranch_scc0 {L}_side2
    ''')
    for i in range(8):
        a(f'buffer_load_dwordx4 {vr(32+4*i,4)}, v16, s[{sS}:{sS+3}], 0 offen offset:{16*i} sc1')
    a(f's_branch {L}_side3')
    a.label(f'{L}_side2')
    for i in range(8):
        a(f's_mov_b32 s34, {min(i,4)*3072*4}')
        a(f'buffer_load_dwordx4 {vr(32+4*i,4)}, v17, s[{sC}:{sC+3}], s34 offen')
    a.label(f'{L}_side3')
    for i in range(8): vm.issue('side')
    for st in range(2, 4): dA4(st)
    for st in range(10):
        vm.wait(st)
        if st == 9:
            a(f'''
            s_waitcnt vmcnt(0)
            s_cmp_lt_u32 s{s_w}, 2
            s_cbranch_scc0 {L}_fin2
            ''')
            for i in range(1, 16):
                pk(a, 'v_pk_add_f32', 32, vr(32,2), vr(32+2*i,2))
            a(f'''
            v_mul_f32 v32, {fbits(1.0/640)}, v32
            v_mul_f32 v33, {fbits(1.0/640)}, v33
            v_fma_f32 v33, -v32, v32, v33
            v_max_f32 v33, 0, v33
            v_add_f32 v33, {fbits(1e-5)}, v33
            v_rsq_f32 v33, v33
            v_mul_f32 v32, v32, v33
            s_lshl_b32 s34, s{s_w}, 8
            v_lshlrev_b32 v16, 2, v{vlane}
            v_add_u32 v16, s34, v16
            s_barrier
            ds_write_b32 v16, v33 offset:{STAT4}
            ds_write_b32 v16, v32 offset:{STAT4+512}
            s_waitcnt lgkmcnt(0)
            s_branch {L}_fin4
            {L}_fin2:
            s_cmp_eq_u32 s{s_w}, 2
            s_cbranch_scc0 {L}_fin3
            ''')
            for i in range(1, 5):
                pk(a, 'v_pk_add_f32', 32, vr(32,2), vr(32+4*i,2))
                pk(a, 'v_pk_add_f32', 34, vr(34,2), vr(34+4*i,2))
            a(f'''
            v_lshlrev_b32 v16, 4, v{vlane}
            v_cmp_gt_u32 vcc, 48, v{vlane}
            s_barrier
            s_and_saveexec_b64 s[34:35], vcc
            ds_write_b128 v16, v[32:35] offset:{STAT4+1024}
            s_waitcnt lgkmcnt(0)
            s_mov_b64 exec, s[34:35]
            s_branch {L}_fin4
            {L}_fin3:
            s_barrier
            {L}_fin4:
            s_barrier
            ''')
        else:
            a('s_barrier')
            if st >= 1 and st + 3 < 10:
                dB4(st + 3); dA4(st + 3)
    a('s_barrier')
    def poll_p5():
        a(f'''
        v_bfe_u32 v8, v{vlane}, 2, 2          ; hs'
        v_lshlrev_b32 v8, 3, v8
        v_and_b32 v9, 3, v{vlane}
        v_lshl_add_u32 v8, v9, 1, v8          ; + 2*(x8'>>1)
        s_lshl_b32 s35, s{s_qb}, 5
        s_bfe_u32 s34, s{s_x8}, 0x10001       ; (x8>>1)&1
        s_add_u32 s35, s35, s34
        v_add_u32 v8, s35, v8
        v_lshlrev_b32 v8, 7, v8
        v_add_u32 v8, {3*256*128}, v8
        ''')
        poll([8], 4)
    n640_loader('wd', 3, 4, poll_p5, 4)
    a(f's_branch {L}_end')
    a.label(f'{L}_comp')
    if True:
        sQ, sO = 40, 44
        s_it = 48; s_vmask = 50; s_t = [52, 53]
        aK1, aK2, aV = 2, 3, 4
        EA = [5, 6, 7]
        Q1 = [8, 16]; Q2 = [12, 20]
        K1 = [24, 32]; K2 = [28, 36]
        V1 = [40, 48]; V2 = [44, 52]
        S_ = [64, 80]; PP = [96, 104]; O_ = [112, 128]
        T = 144
        srd(a, sQ, WSL, WSH, WS_Q, 3*32*81920)
        srd(a, sO, WSL, WSH, WS_O, S*D*2)
        a(f'''
        s_lshl_b32 s34, s{s_x8}, 2
        s_add_u32 s54, s34, s{s_hs}          ; head
        s_mul_i32 s36, s54, 81920
        s_lshl_b32 s34, s{s_qb}, 3
        s_lshl_b32 s35, s{s_w}, 1
        s_add_u32 s34, s34, s35              ; q tile A
        s_mul_i32 s35, s34, 1280
        s_add_u32 s35, s35, s36
        v_lshlrev_b32 v{aK1}, 4, v{vlane}
        v_and_b32 v{T}, 31, v{vlane}
        v_lshrrev_b32 v{T+1}, 5, v{vlane}
        v_lshlrev_b32 v{aK2}, 3, v{T}
        v_add_u32 v{aK2}, 1024, v{aK2}
        buffer_load_dwordx4 {vr(Q1[0],4)}, v{aK1}, s[{sQ}:{sQ+3}], s35 offen
        buffer_load_dwordx2 {vr(Q2[0],2)}, v{aK2}, s[{sQ}:{sQ+3}], s35 offen
        buffer_load_dwordx4 {vr(Q1[1],4)}, v{aK1}, s[{sQ}:{sQ+3}], s35 offen offset:1280
        buffer_load_dwordx2 {vr(Q2[1],2)}, v{aK2}, s[{sQ}:{sQ+3}], s35 offen offset:1280
        v_mul_u32_u24 v{aV}, 320, v{T+1}
        v_lshl_add_u32 v{aV}, v{T}, 4, v{aV}
        v_add_u32 v{aV}, 81920, v{aV}
        v_cmp_gt_u32 s[{s_vmask}:{s_vmask+1}], 20, v{T}
        v_cmp_eq_u32 vcc, 20, v{T}
        v_mov_b32 v{T+2}, 0
        v_mov_b32 v{T+3}, 0x3f803f80
        v_cndmask_b32 v{T+4}, v{T+2}, v{T+3}, vcc
        v_cmp_eq_u32 vcc, 24, v{T}
        v_cndmask_b32 v{T+4}, v{T+4}, v{T+3}, vcc
        ''')
        for b in range(2):
            for r in range(4):
                a(f'v_mov_b32 v{V1[b]+r}, v{T+4}')
                a(f'v_mov_b32 v{V2[b]+r}, v{T+4}')
        a(f'''
        v_cmp_eq_u32 vcc, 0, v{T+1}
        v_mov_b32 v{T+3}, 0x00003f80
        v_cndmask_b32 v{T+5}, v{T+2}, v{T+3}, vcc
        ''')
        for b in range(2):
            a(f'v_mov_b32 v{K2[b]+2}, v{T+5}')
            a(f'v_mov_b32 v{K2[b]+3}, 0')
            a(f'v_mov_b32 v{Q2[b]+2}, 0')
            a(f'v_mov_b32 v{Q2[b]+3}, 0')
        for q in range(2):
            for r in range(16): a(f'v_mov_b32 v{O_[q]+r}, 0')
        for r in range(8): a(f'v_mov_b32 v{PP[1]+r}, 0')
        a(f'''
        s_mul_i32 s37, s54, 5
        v_and_b32 v{T+6}, 15, v{T}
        v_lshrrev_b32 v{T+7}, 4, v{T}
        v_mul_u32_u24 v{T+7}, 20480, v{T+7}
        v_lshl_add_u32 v{T+7}, v{T+6}, 3, v{T+7}
        s_mul_i32 s{s_t[0]}, s34, 40960
        s_add_u32 s{s_t[1]}, s{s_t[0]}, 40960
        ''')
        for G in range(3):
            a(f'''
            v_add_u32 v{T+8}, s37, v{T+1}
            v_add_u32 v{T+8}, {2*G}, v{T+8}
            v_lshl_add_u32 v{EA[G]}, v{T+8}, 7, v{T+7}      ; a*128 = T16*512 + g*128
            ''')
        a(f'''
        v_cmp_eq_u32 vcc, 1, v{T+1}
        v_mov_b32 v{T+8}, 0x7f000000
        v_cndmask_b32 v{EA[2]}, v{EA[2]}, v{T+8}, vcc
        s_waitcnt vmcnt(0)
        v_cndmask_b32 v{Q2[0]}, v{Q2[0]}, v{T+2}, vcc
        v_cndmask_b32 v{Q2[0]+1}, v{Q2[0]+1}, v{T+2}, vcc
        v_cndmask_b32 v{Q2[1]}, v{Q2[1]}, v{T+2}, vcc
        v_cndmask_b32 v{Q2[1]+1}, v{Q2[1]+1}, v{T+2}, vcc
        ''')
        P.stamp(1)
        a('s_barrier')
        def QK(q, kb):
            return [f'v_mfma_f32_32x32x16_bf16 {vr(S_[q],16)}, {vr(K1[kb],4)}, {vr(Q1[q],4)}, 0',
                    f'v_mfma_f32_32x32x16_bf16 {vr(S_[q],16)}, {vr(K2[kb],4)}, {vr(Q2[q],4)}, {vr(S_[q],16)}']
        def PV(q, vb):
            return [f'v_mfma_f32_32x32x16_bf16 {vr(O_[q],16)}, {vr(V1[vb],4)}, {vr(PP[q],4)}, {vr(O_[q],16)}',
                    f'v_mfma_f32_32x32x16_bf16 {vr(O_[q],16)}, {vr(V2[vb],4)}, {vr(PP[q]+4,4)}, {vr(O_[q],16)}']
        def rdK(kb, off):
            return [f'ds_read_b128 {vr(K1[kb],4)}, v{aK1} offset:{off}', f'ds_read_b64 {vr(K2[kb],2)}, v{aK2} offset:{off}']
        def rdV(vb, off):
            return [f's_mov_b64 exec, s[{s_vmask}:{s_vmask+1}]',
                    f'ds_read_b128 {vr(V1[vb],4)}, v{aV} offset:{off}', f'ds_read_b128 {vr(V2[vb],4)}, v{aV} offset:{off+640}',
                    's_mov_b64 exec, -1']
        def setm(q, mreg):
            a(f'''
            v_sub_f32 v{mreg}, 0, v{mreg}
            v_cvt_pk_bf16_f32 v{mreg}, v{mreg}, 0
            v_and_b32 v{mreg}, 0xffff, v{mreg}
            v_cmp_gt_u32 vcc, 32, v{vlane}
            v_cndmask_b32 v{Q2[q]+2}, 0, v{mreg}, vcc
            ''')
        def maxtree(q, dst, init=False):
            s = S_[q]
            if init:
                a(f'v_max3_f32 v{dst}, v{s}, v{s+1}, v{s+2}'); rest = list(range(3, 16))
            else: rest = list(range(0, 16))
            while rest:
                if len(rest) >= 2:
                    a(f'v_max3_f32 v{dst}, v{dst}, v{s+rest[0]}, v{s+rest[1]}'); rest = rest[2:]
                else:
                    a(f'v_max_f32 v{dst}, v{dst}, v{s+rest[0]}'); rest = rest[1:]
        def crosshalf_max(dst, tmp):
            a(f'''
            v_mov_b32 v{tmp}, v{dst}
            v_permlane32_swap_b32 v{tmp}, v{dst}
            v_max_f32 v{dst}, v{dst}, v{tmp}
            ''')
        for o in rdK(0, 0): a(o)
        a('s_waitcnt lgkmcnt(0)')
        for q in range(2):
            for o in QK(q, 0): a(o)
        for q in range(2): maxtree(q, T+q, init=True)
        for q in range(2):
            crosshalf_max(T+q, T+2+q)
            setm(q, T+q)
        for o in QK(0, 0): a(o)
        a(f's_mov_b32 s{s_it}, 0')
        def phase(q, mf_pv, mf_qk, reads):
            s = S_[q]; p = PP[q]
            ev = []
            for i in range(16):
                ev.append(f'v_exp_f32 v{s+i}, v{s+i}')
                if i >= 3 and i % 2 == 1:
                    k = (i - 3) // 2
                    ev.append(f'v_cvt_pk_bf16_f32 v{p+k}, v{s+2*k}, v{s+2*k+1}')
            ev.append(f'v_cvt_pk_bf16_f32 v{p+7}, v{s+14}, v{s+15}')
            pos = {1: mf_qk[0], 7: mf_qk[1], 13: mf_pv[0], 19: mf_pv[1]}
            for i, e in enumerate(ev):
                if i in pos: a(pos[i])
                if i == 3:
                    for o in reads: a(o)
                a(e)
        UNR = 4
        a.label(f'{L}_loop')
        for j in range(UNR):
            o = j * 2560
            phase(0, PV(1, 1), QK(1, 0), rdK(1, o+1280) + rdV(0, o))
            a('s_waitcnt lgkmcnt(0)')
            phase(1, PV(0, 0), QK(0, 1), [])
            if j == UNR - 1: a('s_barrier')
            phase(0, PV(1, 0), QK(1, 1), rdK(0, o+2560) + rdV(1, o+1280))
            a('s_waitcnt lgkmcnt(0)')
            phase(1, PV(0, 1), QK(0, 0), [])
        a(f'''
        v_add_u32 v{aK1}, {2560*UNR}, v{aK1}
        v_add_u32 v{aK2}, {2560*UNR}, v{aK2}
        v_add_u32 v{aV}, {2560*UNR}, v{aV}
        s_add_u32 s{s_it}, s{s_it}, 1
        s_cmp_lt_u32 s{s_it}, 7
        s_cbranch_scc1 {L}_loop
        ''')
        for j in range(UNR):
            o = j * 2560
            phase(0, PV(1, 1), QK(1, 0), rdK(1, o+1280) + rdV(0, o))
            a('s_waitcnt lgkmcnt(0)')
            phase(1, PV(0, 0), QK(0, 1), [])
            phase(0, PV(1, 0), QK(1, 1), rdK(0, o+2560) + rdV(1, o+1280))
            a('s_waitcnt lgkmcnt(0)')
            phase(1, PV(0, 1), QK(0, 0), [])
        for o in PV(1, 1): a(o)
        P.stamp(2)
        a(f'v_cmp_gt_u32 s[34:35], 32, v{vlane}')
        for q in range(2):
            a(f'v_cndmask_b32 v{T+2*q}, v{O_[q]+8}, v{O_[q]+12}, s[34:35]')
        a(f'''
        v_mov_b32 v{T+5}, {fbits(2.0**30)}
        v_cmp_nle_f32 vcc, v{T}, v{T+5}
        v_cmp_nle_f32 s[36:37], v{T+2}, v{T+5}
        s_or_b64 vcc, vcc, s[36:37]
        s_cbranch_vccnz {L}_slow
        ''')
        a.label(f'{L}_store')
        for q in range(2): a(f'v_rcp_f32 v{T+2*q}, v{T+2*q}')
        for q in range(2):
            for G in range(3):
                o = O_[q] + 4*G
                for h2 in range(2):
                    pk(a, 'v_pk_mul_f32', o+2*h2, vr(o+2*h2,2), vr(T+2*q,2), mods='op_sel_hi:[1,0]')
                a(f'v_cvt_pk_bf16_f32 v{o}, v{o}, v{o+1}')
                a(f'v_cvt_pk_bf16_f32 v{o+1}, v{o+2}, v{o+3}')
                a(f'buffer_store_dwordx2 {vr(o,2)}, v{EA[G]}, s[{sO}:{sO+3}], s{s_t[q]} offen sc1')
        a(f's_branch {L}_p2fin')
        a.label(f'{L}_slow')
        a(f'''
        v_lshlrev_b32 v{aK1}, 4, v{vlane}
        v_and_b32 v{T+4}, 31, v{vlane}
        v_lshlrev_b32 v{aK2}, 3, v{T+4}
        v_add_u32 v{aK2}, 1024, v{aK2}
        v_mov_b32 v{Q2[0]+2}, 0
        v_mov_b32 v{Q2[1]+2}, 0
        v_mov_b32 v{T}, 0xff800000
        v_mov_b32 v{T+1}, 0xff800000
        s_mov_b32 s{s_it}, 0
        {L}_sl1:
        ''')
        for o in rdK(0, 0): a(o)
        a('s_waitcnt lgkmcnt(0)')
        for q in range(2):
            for o in QK(q, 0): a(o)
        for q in range(2): maxtree(q, T+q)
        a(f'''
        v_add_u32 v{aK1}, 1280, v{aK1}
        v_add_u32 v{aK2}, 1280, v{aK2}
        s_add_u32 s{s_it}, s{s_it}, 1
        s_cmp_lt_u32 s{s_it}, 64
        s_cbranch_scc1 {L}_sl1
        ''')
        for q in range(2):
            crosshalf_max(T+q, T+2+q)
            setm(q, T+q)
        a(f'''
        v_lshlrev_b32 v{aK1}, 4, v{vlane}
        v_lshlrev_b32 v{aK2}, 3, v{T+4}
        v_add_u32 v{aK2}, 1024, v{aK2}
        v_lshrrev_b32 v{T+5}, 5, v{vlane}
        v_mul_u32_u24 v{aV}, 320, v{T+5}
        v_lshl_add_u32 v{aV}, v{T+4}, 4, v{aV}
        v_add_u32 v{aV}, 81920, v{aV}
        s_mov_b32 s{s_it}, 0
        ''')
        for q in range(2):
            for r in range(16): a(f'v_mov_b32 v{O_[q]+r}, 0')
        a.label(f'{L}_sl2')
        for o in rdK(0, 0) + rdV(0, 0): a(o)
        a('s_waitcnt lgkmcnt(0)')
        for q in range(2):
            for o in QK(q, 0): a(o)
        for q in range(2):
            for i in range(16): a(f'v_exp_f32 v{S_[q]+i}, v{S_[q]+i}')
            for k in range(8): a(f'v_cvt_pk_bf16_f32 v{PP[q]+k}, v{S_[q]+2*k}, v{S_[q]+2*k+1}')
            for o in PV(q, 0): a(o)
        a(f'''
        v_add_u32 v{aK1}, 1280, v{aK1}
        v_add_u32 v{aK2}, 1280, v{aK2}
        v_add_u32 v{aV}, 1280, v{aV}
        s_add_u32 s{s_it}, s{s_it}, 1
        s_cmp_lt_u32 s{s_it}, 64
        s_cbranch_scc1 {L}_sl2
        s_nop 15
        v_cmp_gt_u32 s[34:35], 32, v{vlane}
        ''')
        for q in range(2):
            a(f'v_cndmask_b32 v{T+2*q}, v{O_[q]+8}, v{O_[q]+12}, s[34:35]')
        a(f's_branch {L}_store')
        a.label(f'{L}_p2fin')
    def n640_compute(mode, stamps):
        K = 640 if mode == 'wo' else 1536
        NST = K // 128
        ASL = 16384; BSL = 20480; BBASE = 65536
        EXB = BBASE + ((NST - 2) % 4) * BSL
        sR, sO, sS = 40, 44, 48
        s_mh, s_kh, s_it, s_dA, s_dB = 52, 53, 54, 55, 56
        aX, aW1, aW2 = 2, 3, 4
        XF = lambda b, i: 8 + b*8 + i*4
        WF = lambda b, s: 24 + b*20 + s*4
        ACC = lambda s, i: 64 + (s*2 + i)*4
        RES = lambda j, i: 104 + (j*2 + i)*2
        EAo = 116; EAr = 117; ESt = 118; aEw = 119; aEr = 120
        T = 124
        M = mode
        a(f'''
        s_lshr_b32 s{s_mh}, s{s_w}, 1
        s_and_b32 s{s_kh}, s{s_w}, 1
        v_lshlrev_b32 v{aX}, 3, v{vlane}
        s_lshl_b32 s34, s{s_kh}, 13
        s_lshl_b32 s35, s{s_mh}, 12
        s_add_u32 s34, s34, s35
        v_add_u32 v{aX}, s34, v{aX}
        v_lshrrev_b32 v{T}, 4, v{vlane}        ; g
        v_bfe_u32 v{T+1}, v{vlane}, 2, 2       ; rr
        v_and_b32 v{T+2}, 3, v{vlane}          ; cq
        v_lshl_add_u32 v{T+3}, v{T}, 2, v{T+1}
        v_mul_u32_u24 v{T+3}, 160, v{T+3}
        v_lshl_add_u32 v{T+3}, v{T+2}, 3, v{T+3}
        s_mul_i32 s34, s{s_kh}, {10240 + 96}
        s_add_u32 s34, s34, {BBASE}
        v_add_u32 v{aW1}, s34, v{T+3}
        s_mul_i32 s34, s{s_kh}, {10240 - 64}
        s_add_u32 s34, s34, {BBASE}
        v_add_u32 v{aW2}, s34, v{T+3}
        v_and_b32 v{T+4}, 15, v{vlane}         ; m
        s_lshl_b32 s34, s{s_qb}, 2
        s_and_b32 s35, s{s_x8}, 3
        s_add_u32 s34, s34, s35                ; m64
        s_lshl_b32 s34, s34, 6
        s_lshl_b32 s35, s{s_mh}, 5
        s_add_u32 s34, s34, s35
        v_add_u32 v{T+5}, s34, v{T+4}
        v_mul_u32_u24 v{T+6}, 1280, v{T+5}
        v_lshl_add_u32 v{T+6}, v{T}, 3, v{T+6}
        s_mul_i32 s35, s{s_ct}, 160
        v_add_u32 v{T+6}, s35, v{T+6}
        v_lshlrev_b32 v{T+7}, 3, v{vlane}
        s_lshr_b32 s35, s34, 4
        s_mul_i32 s35, s35, 20480
        v_add_u32 v{T+7}, s35, v{T+7}
        s_mul_i32 s36, s{s_ct}, 5
        ''')
        if mode == 'wo':
            srd(a, sR, 4, 5, 0, S*D*2)
            srd(a, sO, WSL, WSH, WS_H, S*D*2)
            srd(a, sS, WSL, WSH, WS_ST, S*16*8)
            a(f'v_mov_b32 v{EAr}, v{T+6}'); a(f'v_mov_b32 v{EAo}, v{T+7}')
        else:
            srd(a, sR, WSL, WSH, WS_H, S*D*2)
            srd(a, sO, 18, 19, 0, S*D*2)
            a(f'v_mov_b32 v{EAr}, v{T+7}'); a(f'v_mov_b32 v{EAo}, v{T+6}')
        s_nat = 60; s_fm = 64
        for j in range(3):
            a(f'''
            s_mul_i32 s34, s{s_kh}, 3
            s_add_u32 s34, s34, {j}
            s_lshl_b32 s{s_nat+j}, s34, 5
            s_add_u32 s34, s34, s36
            s_lshl_b32 s{s_fm+j}, s34, 9
            ''')
        s_res = s_nat if mode == 'wo' else s_fm
        s_out = s_fm if mode == 'wo' else s_nat
        a(f'''
        s_mul_i32 s34, s{s_mh}, 10240
        s_add_u32 s34, s34, {EXB}
        s_cmp_eq_u32 s{s_kh}, 0
        s_movk_i32 s33, 4096
        s_cselect_b32 s35, {(-2048) & 0xffffffff}, s33
        s_cselect_b32 s33, 4096, 0
        s_add_u32 s35, s35, s34
        s_add_u32 s33, s33, s34
        v_lshlrev_b32 v{T}, 4, v{vlane}
        v_add_u32 v{aEw}, s35, v{T}
        v_add_u32 v{aEr}, s33, v{T}
        v_lshlrev_b32 v{ESt}, 7, v{T+5}
        s_lshl_b32 s34, s{s_ct}, 4
        s_lshl_b32 s35, s{s_kh}, 3
        s_add_u32 s34, s34, s35
        v_add_u32 v{ESt}, s34, v{ESt}
        s_mov_b32 s{s_it}, 0
        s_mov_b32 s68, {ASL}
        s_mov_b32 s69, {(-3*ASL) & 0xffffffff}
        s_mov_b32 s70, {BSL}
        s_mov_b32 s71, {(-3*BSL) & 0xffffffff}
        ''')
        for r in range(40): a(f'v_mov_b32 v{64+r}, 0')
        a('s_waitcnt vmcnt(0)')
        a('s_barrier')
        if stamps: P.stamp(stamps[0])
        for j in range(3):
            for i in range(2):
                a(f's_add_u32 s34, s{s_res+j}, {i*20480}')
                a(f'buffer_load_dwordx2 {vr(RES(j,i),2)}, v{EAr}, s[{sR}:{sR+3}], s34 offen' + (' sc1' if mode != 'wo' else ''))
        a('s_barrier')
        def rd(t, b):
            o = []
            for i in range(2):
                for e in range(2):
                    o.append(f'ds_read_b64 {vr(XF(b,i)+2*e,2)}, v{aX} offset:{(i*2+t)*1024 + e*512}')
            for s in range(5):
                for e in range(2):
                    o.append(f'ds_read_b64_tr_b16 {vr(WF(b,s)+2*e,2)}, v{aW1 if s < 2 else aW2} offset:{(32*t+16*e)*160 + s*32}')
            return o
        a('s_barrier')
        if stamps: P.stamp(stamps[1])
        for o in rd(0, 0): a(o)
        UNR = NST if mode == 'wo' else 2
        if UNR < NST: a.label(f'{L}_{M}_loop')
        for u in range(UNR):
          for t in range(2):
            b = t
            if t == 1:
                a('s_waitcnt lgkmcnt(0)')
                last = (UNR == NST and u == NST - 1)
                if UNR == NST:
                    if not last: a('s_barrier')
                    nxt = (u + 1) % 4
                    dA = ASL if nxt else -3*ASL; dB = BSL if nxt else -3*BSL
                    a(f'v_add_u32 v{aX}, {dA & 0xffffffff}, v{aX}')
                    a(f'v_add_u32 v{aW1}, {dB & 0xffffffff}, v{aW1}')
                    a(f'v_add_u32 v{aW2}, {dB & 0xffffffff}, v{aW2}')
                else:
                    if u == UNR - 1:
                        a(f'''
                        s_cmp_eq_u32 s{s_it}, {NST//UNR - 1}
                        s_cbranch_scc1 {L}_{M}_nob
                        s_barrier
                        {L}_{M}_nob:
                        s_bitcmp1_b32 s{s_it}, 0
                        s_cselect_b32 s{s_dA}, s69, s68
                        s_cselect_b32 s{s_dB}, s71, s70
                        v_add_u32 v{aX}, s{s_dA}, v{aX}
                        v_add_u32 v{aW1}, s{s_dB}, v{aW1}
                        v_add_u32 v{aW2}, s{s_dB}, v{aW2}
                        ''')
                    else:
                        a('s_barrier')
                        a(f'v_add_u32 v{aX}, {ASL}, v{aX}')
                        a(f'v_add_u32 v{aW1}, {BSL}, v{aW1}')
                        a(f'v_add_u32 v{aW2}, {BSL}, v{aW2}')
            R = rd(1, 1) if t == 0 else rd(0, 0)
            n = 0
            for s in range(5):
                for i in range(2):
                    if t == 0 and i == 0:
                        rem_old = 14 - (4 + 2*(s+1))
                        a(f's_waitcnt lgkmcnt({min(15, rem_old + min(14, 2*n))})')
                    a(f'v_mfma_f32_16x16x32_bf16 {vr(ACC(s,i),4)}, {vr(WF(b,s),4)}, {vr(XF(b,i),4)}, {vr(ACC(s,i),4)}')
                    for o in R[2*n:2*n+2]: a(o)
                    n += 1
        if UNR < NST:
            a(f'''
            s_add_u32 s{s_it}, s{s_it}, 1
            s_cmp_lt_u32 s{s_it}, {NST//UNR}
            s_cbranch_scc1 {L}_{M}_loop
            ''')
        if stamps: P.stamp(stamps[2])
        a(f'''
        s_cmp_eq_u32 s{s_kh}, 0
        s_cbranch_scc1 {L}_{M}_skipw
        ''')
        for i in range(2): a(f'ds_write_b128 v{aEw}, {vr(ACC(2,i),4)} offset:{i*1024}')
        a.label(f'{L}_{M}_skipw')
        for s in (3, 4):
            for i in range(2): a(f'ds_write_b128 v{aEw}, {vr(ACC(s,i),4)} offset:{(s-2)*2048 + i*1024}')
        a('s_waitcnt lgkmcnt(0)')
        a('s_barrier')
        EXR = lambda j, i: 8 + (j*2+i)*4
        for j in range(3):
            for i in range(2): a(f'ds_read_b128 {vr(EXR(j,i),4)}, v{aEr} offset:{j*2048 + i*1024}')
        a('s_waitcnt vmcnt(0) lgkmcnt(0)')
        SUM = [32, 34]; SQ = [36, 38]
        if mode == 'wo':
            for r in range(32, 40): a(f'v_mov_b32 v{r}, 0')
        for j in range(3):
            if j == 2:
                a(f's_cmp_lg_u32 s{s_kh}, 0')
                a(f's_cbranch_scc1 {L}_{M}_skip2')
            for i in range(2):
                A0 = ACC(j, i); E0 = EXR(j, i); R0 = RES(j, i)
                pk(a, 'v_pk_add_f32', A0, vr(A0,2), vr(E0,2))
                pk(a, 'v_pk_add_f32', A0+2, vr(A0+2,2), vr(E0+2,2))
                a(f'v_lshlrev_b32 v{E0}, 16, v{R0}')
                a(f'v_and_b32 v{E0+1}, 0xffff0000, v{R0}')
                a(f'v_lshlrev_b32 v{E0+2}, 16, v{R0+1}')
                a(f'v_and_b32 v{E0+3}, 0xffff0000, v{R0+1}')
                pk(a, 'v_pk_add_f32', A0, vr(A0,2), vr(E0,2))
                pk(a, 'v_pk_add_f32', A0+2, vr(A0+2,2), vr(E0+2,2))
                a(f'v_cvt_pk_bf16_f32 v{A0}, v{A0}, v{A0+1}')
                a(f'v_cvt_pk_bf16_f32 v{A0+1}, v{A0+2}, v{A0+3}')
                a(f's_add_u32 s34, s{s_out+j}, {i*20480}')
                a(f'buffer_store_dwordx2 {vr(A0,2)}, v{EAo}, s[{sO}:{sO+3}], s34 offen' + (' sc1' if mode == 'wo' else ''))
                if mode == 'wo':
                    a(f'v_lshlrev_b32 v{E0}, 16, v{A0}')
                    a(f'v_and_b32 v{E0+1}, 0xffff0000, v{A0}')
                    a(f'v_lshlrev_b32 v{E0+2}, 16, v{A0+1}')
                    a(f'v_and_b32 v{E0+3}, 0xffff0000, v{A0+1}')
                    pk(a, 'v_pk_add_f32', SUM[i], vr(SUM[i],2), vr(E0,2))
                    pk(a, 'v_pk_fma_f32', SQ[i], vr(E0,2), vr(E0,2), vr(SQ[i],2))
                    pk(a, 'v_pk_add_f32', SUM[i], vr(SUM[i],2), vr(E0+2,2))
                    pk(a, 'v_pk_fma_f32', SQ[i], vr(E0+2,2), vr(E0+2,2), vr(SQ[i],2))
        a.label(f'{L}_{M}_skip2')
        if mode == 'wo':
            for i in range(2):
                a(f'v_add_f32 v{40+2*i}, v{SUM[i]}, v{SUM[i]+1}')
                a(f'v_add_f32 v{41+2*i}, v{SQ[i]}, v{SQ[i]+1}')
            for r in range(4): a(f'v_mov_b32 v{44+r}, v{40+r}')
            for r in range(4): a(f'v_permlane16_swap_b32 v{44+r}, v{40+r}')
            for r in range(4): a(f'v_add_f32 v{40+r}, v{40+r}, v{44+r}')
            for r in range(4): a(f'v_mov_b32 v{44+r}, v{40+r}')
            for r in range(4): a(f'v_permlane32_swap_b32 v{44+r}, v{40+r}')
            for r in range(4): a(f'v_add_f32 v{40+r}, v{40+r}, v{44+r}')
            a(f'''
            v_cmp_gt_u32 vcc, 16, v{vlane}
            s_and_saveexec_b64 s[34:35], vcc
            buffer_store_dwordx2 v[40:41], v{ESt}, s[{sS}:{sS+3}], 0 offen sc1
            buffer_store_dwordx2 v[42:43], v{ESt}, s[{sS}:{sS+3}], 0 offen offset:2048 sc1
            s_mov_b64 exec, s[34:35]
            ''')
    n640_compute('wo', [3, 4, 5])
    if True:
        ASL = 16384; BSL = 24576; BBASE = 65536; STAT4 = 0
        sO = 40
        s_wm, s_wn, s_it, s_dA, s_dB = 52, 53, 54, 55, 56
        aX, aW = 2, 3
        XF = lambda b, i: 8 + b*16 + i*4
        WF = lambda b, k: 40 + b*24 + k*4
        ACC = lambda k, i: 88 + (k*4 + i)*4
        aRS, aCS, EAo = 184, 185, 186
        T = 188
        a('s_waitcnt vmcnt(0)')
        a(f'''
        s_lshr_b32 s{s_wm}, s{s_w}, 1
        s_and_b32 s{s_wn}, s{s_w}, 1
        v_lshlrev_b32 v{aX}, 3, v{vlane}
        v_mov_b32 v{EAo}, v{aX}
        s_lshl_b32 s34, s{s_wm}, 13
        v_add_u32 v{aX}, s34, v{aX}
        v_lshrrev_b32 v{T}, 4, v{vlane}
        v_bfe_u32 v{T+1}, v{vlane}, 2, 2
        v_and_b32 v{T+2}, 3, v{vlane}
        v_lshl_add_u32 v{T+3}, v{T}, 2, v{T+1}
        v_mul_u32_u24 v{aW}, 96, v{T+3}
        v_lshl_add_u32 v{aW}, v{T+2}, 3, v{aW}
        s_mul_i32 s34, s{s_wn}, 6144
        s_add_u32 s34, s34, {BBASE}
        v_add_u32 v{aW}, s34, v{aW}
        ''')
        a('s_barrier')
        P.stamp(6)
        a(f'''
        v_and_b32 v{T+4}, 15, v{vlane}
        s_lshl_b32 s34, s{s_wm}, 6
        v_add_u32 v{T+4}, s34, v{T+4}
        v_lshlrev_b32 v{aRS}, 2, v{T+4}
        s_mul_i32 s34, s{s_wn}, 192
        v_lshlrev_b32 v{aCS}, 4, v{T}
        v_add_u32 v{aCS}, s34, v{aCS}
        s_lshl_b32 s57, s{s_qb}, 1
        s_and_b32 s34, s{s_x8}, 1
        s_add_u32 s57, s57, s34
        s_lshr_b32 s58, s{s_x8}, 1
        s_lshl_b32 s58, s58, 2
        s_add_u32 s58, s58, s{s_hs}
        s_lshl_b32 s36, s57, 3
        s_lshl_b32 s37, s{s_wm}, 2
        s_add_u32 s36, s36, s37
        s_mul_i32 s36, s36, {96*512}
        s_mul_i32 s37, s58, 6
        s_mul_i32 s35, s{s_wn}, 3
        s_add_u32 s37, s37, s35
        s_lshl_b32 s37, s37, 9
        s_add_u32 s60, s36, s37
        s_mov_b32 s{s_it}, 0
        s_mov_b32 s68, {ASL}
        s_mov_b32 s69, {(-3*ASL) & 0xffffffff}
        s_mov_b32 s70, {BSL}
        s_mov_b32 s71, {(-3*BSL) & 0xffffffff}
        ''')
        srd(a, sO, WSL, WSH, WS_ACT, S*F*2)
        for r in range(96): a(f'v_mov_b32 v{88+r}, 0')
        a('s_barrier')
        def rd(t, b):
            o = []
            for i in range(4):
                for e in range(2):
                    o.append(f'ds_read_b64 {vr(XF(b,i)+2*e,2)}, v{aX} offset:{(i*2+t)*1024 + e*512}')
            for k in range(6):
                mat, s = divmod(k, 3)
                for e in range(2):
                    o.append(f'ds_read_b64_tr_b16 {vr(WF(b,k)+2*e,2)}, v{aW} offset:{mat*12288 + (32*t+16*e)*96 + s*32}')
            return o
        a('s_barrier')
        P.stamp(7)
        for o in rd(0, 0): a(o)
        a.label(f'{L}_p4_loop')
        for u in range(2):
          for t in range(2):
            b = t
            if t == 1:
                a('s_waitcnt lgkmcnt(0)')
                a('s_barrier')
                if u == 0:
                    a(f'v_add_u32 v{aX}, {ASL}, v{aX}')
                    a(f'v_add_u32 v{aW}, {BSL}, v{aW}')
                else:
                    a(f'''
                    s_bitcmp1_b32 s{s_it}, 0
                    s_cselect_b32 s{s_dA}, s69, s68
                    s_cselect_b32 s{s_dB}, s71, s70
                    v_add_u32 v{aX}, s{s_dA}, v{aX}
                    v_add_u32 v{aW}, s{s_dB}, v{aW}
                    ''')
            R = rd(1, 1) if t == 0 else rd(0, 0)
            R = R[8:10] + R[0:8] + R[10:]
            n = 0
            for k in range(6):
                for i in range(4):
                    if t == 0 and (i == 0 or k == 0):
                        need_old = (2 + 2*(i+1)) if k == 0 else (10 + 2*k)
                        rem_old = 20 - need_old
                        a(f's_waitcnt lgkmcnt({min(15, rem_old + min(20, n))})')
                    a(f'v_mfma_f32_16x16x32_bf16 {vr(ACC(k,i),4)}, {vr(WF(b,k),4)}, {vr(XF(b,i),4)}, {vr(ACC(k,i),4)}')
                    if n < 20: a(R[n])
                    n += 1
        a(f'''
        s_add_u32 s{s_it}, s{s_it}, 1
        s_cmp_lt_u32 s{s_it}, 5
        s_cbranch_scc1 {L}_p4_loop
        ''')
        P.stamp(8)
        RS = lambda i: 8 + 4*i; MR = lambda i: 10 + 4*i
        CS = lambda k: 40 + 4*k
        a('s_waitcnt lgkmcnt(0)')
        for i in range(4):
            a(f'ds_read_b32 v{RS(i)}, v{aRS} offset:{STAT4 + i*64}')
            a(f'ds_read_b32 v{MR(i)}, v{aRS} offset:{STAT4 + 512 + i*64}')
        for k in range(6):
            mat, s = divmod(k, 3)
            a(f'ds_read_b128 {vr(CS(k),4)}, v{aCS} offset:{STAT4 + 1024 + mat*384 + s*64}')
        C0 = 2*0.7978845608028654*1.4426950408889634
        C1 = C0*0.044715
        a(f'''
        v_mov_b32 v{T+8}, {fbits(-C0)}
        v_mov_b32 v{T+9}, {fbits(-C0)}
        v_mov_b32 v{T+10}, {fbits(-C1)}
        v_mov_b32 v{T+11}, {fbits(-C1)}
        v_mov_b32 v{T+12}, 1.0
        v_mov_b32 v{T+13}, 1.0
        s_waitcnt lgkmcnt(0)
        ''')
        X = 64
        for s in range(3):
            for i in range(4):
                G0 = ACC(s, i); U0 = ACC(3+s, i)
                for h2 in range(2):
                    for (A0, k) in ((G0, s), (U0, 3+s)):
                        r = A0 + 2*h2
                        pk(a, 'v_pk_mul_f32', r, vr(r,2), vr(RS(i),2), mods='op_sel_hi:[1,0]')
                        pk(a, 'v_pk_fma_f32', r, vr(MR(i),2), vr(CS(k)+2*h2,2), vr(r,2), mods='op_sel_hi:[0,1,1] neg_lo:[1,0,0] neg_hi:[1,0,0]')
                XX = X + 4*((s*4+i) % 4)
                for h2 in range(2): pk(a, 'v_pk_mul_f32', XX+2*h2, vr(G0+2*h2,2), vr(G0+2*h2,2))
                for h2 in range(2): pk(a, 'v_pk_fma_f32', XX+2*h2, vr(XX+2*h2,2), vr(T+10,2), vr(T+8,2))
                for h2 in range(2): pk(a, 'v_pk_mul_f32', XX+2*h2, vr(XX+2*h2,2), vr(G0+2*h2,2))
                for r4 in range(4): a(f'v_exp_f32 v{XX+r4}, v{XX+r4}')
                for h2 in range(2): pk(a, 'v_pk_mul_f32', G0+2*h2, vr(G0+2*h2,2), vr(U0+2*h2,2))
                for h2 in range(2): pk(a, 'v_pk_add_f32', XX+2*h2, vr(XX+2*h2,2), vr(T+12,2))
                for r4 in range(4): a(f'v_rcp_f32 v{XX+r4}, v{XX+r4}')
                for h2 in range(2): pk(a, 'v_pk_mul_f32', G0+2*h2, vr(G0+2*h2,2), vr(XX+2*h2,2))
                a(f'v_cvt_pk_bf16_f32 v{G0}, v{G0}, v{G0+1}')
                a(f'v_cvt_pk_bf16_f32 v{G0+1}, v{G0+2}, v{G0+3}')
                a(f's_add_u32 s36, s60, {s*512 + i*96*512}')
                a(f'buffer_store_dwordx2 {vr(G0,2)}, v{EAo}, s[{sO}:{sO+3}], s36 offen sc1')
        P.stamp(9)
        a('s_waitcnt vmcnt(0)')
    n640_compute('wd', [10, 11, 12])
    a('s_waitcnt vmcnt(0)')
    a('s_barrier')
    P.finish()
    a.label(f'{L}_end')
    a('s_endpgm')
    a.fix_hazards()
    for lab, br in (('loop', 'loop'), ('sl1', 'sl1'), ('sl2', 'sl2'), ('p4_loop', 'p4_loop'), ('wd_loop', 'wd_loop')):
        bad = a.check_loop(f'{L}_{lab}', f's_cbranch_scc1 {L}_{br}')
        assert not bad, bad
    return kernel_wrap(name, a.text(), vgpr=208, sgpr=102), 163840
```

```python
import sys
sys.path.insert(0, 'gen')
import k1, k2b as k2, k35, k4, m2, m3, common
NAME = 'sequential_preLN__mha_block__geglu_ffn__prompt'
def build(prof='', exp=''):
    common.RT['fine'] = 'fine' in exp
    parts = []; launches = []
    def setoff(i): common.RT['off'] = 131072 + i*32768; common.RT['poff'] = 16384*i
    setoff(0)
    t, l = k1.gen_k1(prof=('k1' in prof), exp=exp); parts.append(t); launches.append(('k1_kernel', 512, l))
    if 'multi' in exp:
        setoff(1)
        t, l = k2.gen_k2(prof=('k2' in prof), exp=exp+('' if 'unr' in exp else ' unr4')); parts.append(t); launches.append(('k2_kernel', 576, l))
        setoff(2)
        t, l = k35.gen_n640('k3_kernel', 'wo', prof=('k3' in prof), exp=exp); parts.append(t); launches.append(('k3_kernel', 512, l))
        setoff(3)
        t, l = k4.gen_k4(prof=('k4' in prof), exp=exp); parts.append(t); launches.append(('k4_kernel', 512, l))
        setoff(4)
        t, l = k35.gen_n640('k5_kernel', 'wd', prof=('k5' in prof), exp=exp); parts.append(t); launches.append(('k5_kernel', 512, l))
    else:
        setoff(1)
        t, l = (m3.gen_m3 if 'xg' in exp.split() else m2.gen_m2)(prof=('m2' in prof), exp=exp); parts.append(t); launches.append(('m2_kernel', 512, l))
    hdr = open(f'cdna_kernels/{NAME}.s.ref').read().split('; Override')[0]
    hdr += ''.join(f'; @launch kernel={k} grid=(256,1,1) block=({b},1,1) lds={l}\n' for k, b, l in launches)
    body = '\n'.join(parts) + '\n.text\ntext_end:\n    s_endpgm\n'
    import re
    if 'wt' in exp.split():
        body = re.sub(r'^(\s*buffer_store_dword\w* .* offen(?: offset:\d+)?)\s*$', r'\1 sc1', body, flags=re.M)
    if 'wtnt' in exp.split():
        body = re.sub(r'^(\s*buffer_store_dword\w* .* offen(?: offset:\d+)?)\s*$', r'\1 sc0 sc1', body, flags=re.M)
    return hdr + '.amdgcn_target "amdgcn-amd-amdhsa--gfx950"\n' + body, launches
if __name__ == '__main__':
    t, launches = build()
    open('full.s', 'w').write(t)
    open(f'cdna_kernels/{NAME}.s', 'w').write(t)
    import json; json.dump(launches, open('launches.json', 'w'))
    if len(sys.argv) > 1:
        open('full_prof.s', 'w').write(build(sys.argv[1])[0])
    for e in sys.argv[2:]:
        open(f'e_{e}.s', 'w').write(build(sys.argv[1], exp=e)[0])
```

```python
from common import *

def gen_m2(name='m2_kernel', prof=False, exp=''):
    a = Asm(); L = name
    P = Prof(a, prof, L, base=72, n=15, fin=(13, 14))
    vlane = 1
    s_w, s_ep, s_x8, s_hs, s_qb, s_ct = 22, 23, 24, 25, 26, 27
    sFL = 28
    WSL, WSH = 20, 21
    def set_flag(arr, phase_c, vt=2):
        a(f'''
        s_add_u32 s34, s{s_ep}, {(EPOCH_INC * phase_c) & 0xffffffff}
        v_mov_b32 v{vt}, s34
        s_lshl_b32 s35, s2, 7
        s_add_u32 s35, s35, {arr*256*128}
        v_mov_b32 v{vt+1}, s35
        v_cmp_eq_u32 vcc, 0, v{vlane}
        s_and_saveexec_b64 s[36:37], vcc
        buffer_store_dword v{vt}, v{vt+1}, s[{sFL}:{sFL+3}], 0 offen sc1
        s_mov_b64 exec, s[36:37]
        ''')
    def lstamp(idx):
        if not prof: return
        a(f'''
        s_memtime s[96:97]
        s_load_dwordx2 s[98:99], s[0:1], 64
        s_waitcnt lgkmcnt(0)
        s_sub_u32 s96, s96, s72
        s_lshl_b32 s97, s2, 6
        s_add_u32 s97, s97, {0x50000 + 4*idx}
        v_mov_b32 v200, s97
        v_mov_b32 v201, s96
        s_cmp_lg_u32 s{s_w}, 0
        s_cbranch_scc1 {L}_ls{idx}
        global_store_dword v200, v201, s[98:99]
        {L}_ls{idx}:
        ''')
    uid = [0]
    def poll(vaddrs, phase_c, vt=4):
        uid[0] += 1; u = uid[0]
        a(f's_add_u32 s34, s{s_ep}, {(EPOCH_INC * phase_c) & 0xffffffff}')
        a('s_mov_b32 s38, 0')
        a.label(f'{L}_poll{u}')
        for i, v in enumerate(vaddrs):
            a(f'buffer_load_dword v{vt+i}, v{v}, s[{sFL}:{sFL+3}], 0 offen sc1')
        a('s_waitcnt vmcnt(0)')
        for i in range(len(vaddrs)):
            a(f'v_cmp_ne_u32 vcc, s34, v{vt+i}' if i == 0 else f'v_cmp_ne_u32 s[36:37], s34, v{vt+i}')
            if i: a('s_or_b64 vcc, vcc, s[36:37]')
        a(f'''
        s_cbranch_vccz {L}_pollok{u}
        s_add_u32 s38, s38, 1
        s_cmp_ge_u32 s38, 100000
        s_cbranch_scc1 {L}_pollok{u}
        s_sleep 1
        s_branch {L}_poll{u}
        {L}_pollok{u}:
        ''')
    P.stamp(0)
    a(f'''
    s_cmp_ge_u32 s2, 256
    s_cbranch_scc1 {L}_end
    s_load_dwordx16 s[4:19], s[0:1], 0
    s_load_dwordx2 s[20:21], s[0:1], 72
    v_and_b32 v{vlane}, 63, v0
    v_lshrrev_b32 v2, 6, v0
    v_readfirstlane_b32 s{s_w}, v2
    s_and_b32 s{s_x8}, s2, 7
    s_bfe_u32 s{s_hs}, s2, 0x20003
    s_lshr_b32 s{s_qb}, s2, 5
    s_lshr_b32 s{s_ct}, s{s_x8}, 2
    s_lshl_b32 s{s_ct}, s{s_ct}, 2
    s_add_u32 s{s_ct}, s{s_ct}, s{s_hs}
    s_waitcnt lgkmcnt(0)
    s_add_u32 s34, s{WSL}, {WS_EPOCH}
    s_addc_u32 s35, s{WSH}, 0
    s_load_dword s{s_ep}, s[34:35], 0
    ''')
    srd(a, sFL, WSL, WSH, WS_FLAG2, 4*256*128)
    sQ, sO = 40, 44
    s_it = 48; s_vmask = 50; s_t = 52
    s_lo = [54, 55, 56]; s_go = [57, 58, 59]; s_ch = 60
    aK1, aK2, aV = 2, 3, 4
    EA = [5, 6, 7]
    Q1 = 8; Q2 = 12
    K1 = [16, 24]; K2 = [20, 28]
    V1 = [32, 40]; V2 = [36, 44]
    S_ = [48, 64]; PP = [80, 88]; O_ = 96
    T = 112
    RD = 128
    RA = 144; FA = 148; FD = 152
    vD = 156
    srd(a, sQ, WSL, WSH, WS_Q, 3*32*81920)
    a(f'''
    s_lshl_b32 s34, s{s_x8}, 2
    s_add_u32 s61, s34, s{s_hs}          ; head
    s_mul_i32 s36, s61, 81920
    v_lshlrev_b32 v{vD}, 4, v{vlane}
    ''')
    for i in range(3):
        a(f'''
        s_add_u32 s34, s{s_w}, {8*i}
        s_lshl_b32 s35, s34, 10
        s_add_u32 s37, s35, {81920 - 10240}
        s_add_u32 s38, s35, {WS_K - WS_Q}
        s_add_u32 s39, s35, {WS_V - WS_Q - 10240}
        s_cmp_lt_u32 s34, 10
        s_cselect_b32 s{s_lo[i]}, s35, s37
        s_cselect_b32 s{s_go[i]}, s38, s39
        s_add_u32 s{s_go[i]}, s{s_go[i]}, s36
        s_cmp_lt_u32 s34, 20
        s_cselect_b32 s{s_lo[i]}, s{s_lo[i]}, 0x28000
        s_cselect_b32 s{s_go[i]}, s{s_go[i]}, 0x70000000
        ''')
    a(f'''
    s_lshl_b32 s34, s{s_qb}, 3
    s_add_u32 s34, s34, s{s_w}
    s_mul_i32 s35, s34, 1280
    s_add_u32 s35, s35, s36
    v_and_b32 v{T}, 31, v{vlane}
    v_lshrrev_b32 v{T+1}, 5, v{vlane}
    v_mov_b32 v{aK1}, v{vD}
    v_lshlrev_b32 v{aK2}, 3, v{T}
    v_add_u32 v{aK2}, 1024, v{aK2}
    buffer_load_dwordx4 {vr(Q1,4)}, v{aK1}, s[{sQ}:{sQ+3}], s35 offen
    buffer_load_dwordx2 {vr(Q2,2)}, v{aK2}, s[{sQ}:{sQ+3}], s35 offen
    s_mov_b32 s{s_ch}, 0
    ''')
    def dma_piece(i):
        return [f's_add_u32 m0, s{s_lo[i]}, s{s_ch}', f's_add_u32 s39, s{s_go[i]}, s{s_ch}',
                f'buffer_load_dwordx4 v{vD}, s[{sQ}:{sQ+3}], s39 offen lds']
    def ch_adv():
        return [f's_add_u32 s{s_ch}, s{s_ch}, 10240', f's_cmp_ge_u32 s{s_ch}, 81920', f's_cselect_b32 s{s_ch}, 0x40000000, s{s_ch}']
    for c in range(3):
        for i in range(3):
            for o in dma_piece(i): a(o)
        for o in ch_adv(): a(o)
    srd(a, sO, WSL, WSH, WS_O, S*D*2)
    a(f'''
    v_mul_u32_u24 v{aV}, 320, v{T+1}
    v_lshl_add_u32 v{aV}, v{T}, 4, v{aV}
    v_add_u32 v{aV}, 81920, v{aV}
    v_cmp_gt_u32 s[{s_vmask}:{s_vmask+1}], 20, v{T}
    v_cmp_eq_u32 vcc, 20, v{T}
    v_mov_b32 v{T+2}, 0
    v_mov_b32 v{T+3}, 0x3f803f80
    v_cndmask_b32 v{T+4}, v{T+2}, v{T+3}, vcc
    v_cmp_eq_u32 vcc, 24, v{T}
    v_cndmask_b32 v{T+4}, v{T+4}, v{T+3}, vcc
    ''')
    for b in range(2):
        for r in range(4):
            a(f'v_mov_b32 v{V1[b]+r}, v{T+4}')
            a(f'v_mov_b32 v{V2[b]+r}, v{T+4}')
    a(f'''
    v_cmp_eq_u32 vcc, 0, v{T+1}
    v_mov_b32 v{T+3}, 0x00003f80
    v_cndmask_b32 v{T+5}, v{T+2}, v{T+3}, vcc
    ''')
    for b in range(2):
        a(f'v_mov_b32 v{K2[b]+2}, v{T+5}')
        a(f'v_mov_b32 v{K2[b]+3}, 0')
    a(f'v_mov_b32 v{Q2+2}, 0')
    a(f'v_mov_b32 v{Q2+3}, 0')
    for r in range(16): a(f'v_mov_b32 v{O_+r}, 0')
    for r in range(8): a(f'v_mov_b32 v{PP[1]+r}, 0')
    a(f'''
    s_mul_i32 s37, s61, 5
    v_and_b32 v{T+6}, 15, v{T}
    v_lshrrev_b32 v{T+7}, 4, v{T}
    v_mul_u32_u24 v{T+7}, 20480, v{T+7}
    v_lshl_add_u32 v{T+7}, v{T+6}, 3, v{T+7}
    s_mul_i32 s{s_t}, s34, 40960
    ''')
    for G in range(3):
        a(f'''
        v_add_u32 v{T+8}, s37, v{T+1}
        v_add_u32 v{T+8}, {2*G}, v{T+8}
        v_lshl_add_u32 v{EA[G]}, v{T+8}, 7, v{T+7}
        ''')
    s_rb = [62, 64, 66, 68]
    s_dst = [32, 33, 49, 53]
    def rt_setup4(k, ug):
        a(f'''
        s_mul_i32 s35, s{ug}, 4370
        s_lshr_b32 s35, s35, 20                ; ft = u/240
        s_mul_i32 s36, s35, 240
        s_sub_u32 s34, s{ug}, s36              ; r
        s_mul_i32 s36, s34, 2731
        s_lshr_b32 s36, s36, 16                ; st = r/24
        s_mul_i32 s37, s36, 24
        s_sub_u32 s34, s34, s37                ; r2
        s_mul_i32 s37, s34, 10923
        s_lshr_b32 s37, s37, 16                ; sub = r2/6
        s_mul_i32 s38, s37, 6
        s_sub_u32 s34, s34, s38                ; i
        s_lshl_b32 s34, s34, 6
        v_add_u32 v{T+8}, s34, v{vlane}
        v_mul_u32_u24 v{T+9}, 10923, v{T+8}
        v_lshrrev_b32 v{T+9}, 16, v{T+9}
        v_mul_u32_u24 v{T+10}, 6, v{T+9}
        v_sub_u32 v{T+10}, v{T+8}, v{T+10}
        v_mul_u32_u24 v{T+9}, 3072, v{T+9}
        v_lshl_add_u32 v{T+9}, v{T+10}, 4, v{T+9}
        s_mul_i32 s36, s36, {64*3072}
        s_mul_i32 s35, s35, 192
        s_add_u32 s36, s36, s35
        s_and_b32 s35, s37, 1
        s_mul_i32 s35, s35, 96
        s_add_u32 s36, s36, s35
        v_add_u32 v{RA+k}, s36, v{T+9}
        s_cmp_lt_u32 s37, 2
        s_cselect_b32 s{s_rb[k]}, s12, s14
        s_cselect_b32 s{s_rb[k]+1}, s13, s15
        s_add_u32 s{s_dst[k]}, s{ug}, 800
        s_lshl_b32 s{s_dst[k]}, s{s_dst[k]}, 10
        s_cmp_lt_u32 s{ug}, 3840
        s_cselect_b32 s{s_dst[k]}, s{s_dst[k]}, 0x70000000
        ''')
    def rt_setupN(k, kind, ug):
        K = 640 if kind == 3 else 1536
        NS_ = K // 128
        per_ct = NS_ * 20
        magic = (1 << 20) // per_ct + 1
        a(f'''
        s_mul_i32 s35, s{ug}, {magic}
        s_lshr_b32 s35, s35, 20                ; ct
        s_mul_i32 s36, s35, {per_ct}
        s_sub_u32 s34, s{ug}, s36              ; r
        s_mul_i32 s36, s34, 3277
        s_lshr_b32 s36, s36, 16                ; st
        s_mul_i32 s37, s36, 20
        s_sub_u32 s34, s34, s37                ; r2
        s_cmp_ge_u32 s34, 10
        s_cselect_b32 s37, 1, 0                ; kh
        s_mul_i32 s38, s37, 10
        s_sub_u32 s34, s34, s38                ; i2
        s_lshl_b32 s34, s34, 6
        v_add_u32 v{T+8}, s34, v{vlane}
        v_mul_u32_u24 v{T+9}, 6554, v{T+8}
        v_lshrrev_b32 v{T+9}, 16, v{T+9}
        v_mul_u32_u24 v{T+10}, 10, v{T+9}
        v_sub_u32 v{T+10}, v{T+8}, v{T+10}
        v_mul_u32_u24 v{T+9}, 1280, v{T+9}
        v_lshl_add_u32 v{T+9}, v{T+10}, 4, v{T+9}
        s_mul_i32 s37, s37, {K//2}
        s_lshl_b32 s36, s36, 6
        s_add_u32 s36, s36, s37
        s_mul_i32 s36, s36, 1280
        s_mul_i32 s35, s35, 160
        s_add_u32 s36, s36, s35
        v_add_u32 v{RA+k}, s36, v{T+9}
        s_add_u32 s{s_dst[k]}, s{ug}, {0 if kind == 3 else 4640}
        s_lshl_b32 s{s_dst[k]}, s{s_dst[k]}, 10
        s_cmp_lt_u32 s{ug}, {800 if kind == 3 else 1920}
        s_cselect_b32 s{s_dst[k]}, s{s_dst[k]}, 0x70000000
        ''')
    a(f'''
    s_lshl_b32 s39, s2, 3
    s_add_u32 s39, s39, s{s_w}              ; gw
    s_add_u32 s31, s39, 2048
    ''') if False else None
    def retile_setup_all():
        a(f'''
        s_lshl_b32 s70, s2, 3
        s_add_u32 s70, s70, s{s_w}              ; gw
        s_add_u32 s71, s70, 2048
        ''')
        rt_setup4(0, 70); rt_setup4(1, 71); rt_setupN(2, 5, 70); rt_setupN(3, 3, 70)
    def retile_loads():
        srcs = [(s_rb[0], s_rb[0]+1, 640*1536*2), (s_rb[1], s_rb[1]+1, 640*1536*2), (16, 17, 1536*640*2), (8, 9, 640*640*2)]
        for k, (lo, hi, sz) in enumerate(srcs):
            a(f'''
            s_mov_b32 s68, s{lo}
            s_mov_b32 s69, s{hi}
            s_mov_b32 s70, {sz}
            s_mov_b32 s71, 0x00020000
            buffer_load_dwordx4 {vr(RD+4*k,4)}, v{RA+k}, s[68:71], 0 offen
            ''')
    def retile_store():
        srd(a, 68, WSL, WSH, WS_WT3, 6560*1024)
        for k in range(4):
            a(f'buffer_store_dwordx4 {vr(RD+4*k,4)}, v{vD}, s[68:71], s{s_dst[k]} offen sc1')
    retile_setup_all()
    a(f'''
    v_lshlrev_b32 v{FA}, 7, v{vlane}
    v_add_u32 v{FA+1}, 8192, v{FA}
    v_add_u32 v{FA+2}, 16384, v{FA}
    v_add_u32 v{FA+3}, 24576, v{FA}
    v_cmp_eq_u32 vcc, 1, v{T+1}
    v_mov_b32 v{T+8}, 0x7f000000
    v_cndmask_b32 v{EA[2]}, v{EA[2]}, v{T+8}, vcc
    s_waitcnt vmcnt(9)
    v_cndmask_b32 v{Q2}, v{Q2}, v{T+2}, vcc
    v_cndmask_b32 v{Q2+1}, v{Q2+1}, v{T+2}, vcc
    s_waitcnt vmcnt(6)
    ''')
    P.stamp(1)
    a('s_barrier')
    def QK(sb, kb):
        return [f'v_mfma_f32_32x32x16_bf16 {vr(S_[sb],16)}, {vr(K1[kb],4)}, {vr(Q1,4)}, 0',
                f'v_mfma_f32_32x32x16_bf16 {vr(S_[sb],16)}, {vr(K2[kb],4)}, {vr(Q2,4)}, {vr(S_[sb],16)}']
    def PV(pb, vb):
        return [f'v_mfma_f32_32x32x16_bf16 {vr(O_,16)}, {vr(V1[vb],4)}, {vr(PP[pb],4)}, {vr(O_,16)}',
                f'v_mfma_f32_32x32x16_bf16 {vr(O_,16)}, {vr(V2[vb],4)}, {vr(PP[pb]+4,4)}, {vr(O_,16)}']
    def rdK(kb, off):
        return [f'ds_read_b128 {vr(K1[kb],4)}, v{aK1} offset:{off}', f'ds_read_b64 {vr(K2[kb],2)}, v{aK2} offset:{off}']
    def rdV(vb, off):
        return [f's_mov_b64 exec, s[{s_vmask}:{s_vmask+1}]',
                f'ds_read_b128 {vr(V1[vb],4)}, v{aV} offset:{off}', f'ds_read_b128 {vr(V2[vb],4)}, v{aV} offset:{off+640}',
                's_mov_b64 exec, -1']
    def setm(mreg):
        a(f'''
        v_sub_f32 v{mreg}, 0, v{mreg}
        v_cvt_pk_bf16_f32 v{mreg}, v{mreg}, 0
        v_and_b32 v{mreg}, 0xffff, v{mreg}
        v_cmp_gt_u32 vcc, 32, v{vlane}
        v_cndmask_b32 v{Q2+2}, 0, v{mreg}, vcc
        ''')
    def maxtree(sb, dst, init=False):
        s = S_[sb]
        if init:
            a(f'v_max3_f32 v{dst}, v{s}, v{s+1}, v{s+2}'); rest = list(range(3, 16))
        else: rest = list(range(0, 16))
        while rest:
            if len(rest) >= 2:
                a(f'v_max3_f32 v{dst}, v{dst}, v{s+rest[0]}, v{s+rest[1]}'); rest = rest[2:]
            else:
                a(f'v_max_f32 v{dst}, v{dst}, v{s+rest[0]}'); rest = rest[1:]
    def crosshalf_max(dst, tmp):
        a(f'''
        v_mov_b32 v{tmp}, v{dst}
        v_permlane32_swap_b32 v{tmp}, v{dst}
        v_max_f32 v{dst}, v{dst}, v{tmp}
        ''')
    for o in rdK(0, 0) + rdK(1, 1280): a(o)
    a('s_waitcnt lgkmcnt(2)')
    for o in QK(0, 0): a(o)
    maxtree(0, T, init=True)
    crosshalf_max(T, T+2)
    setm(T)
    for o in QK(0, 0): a(o)
    puid = [0]
    def phase(sb, mf_pv, mf_qk, reads, extra=()):
        s = S_[sb]; p = PP[sb]
        if 'prio' in exp.split():
            puid[0] += 1; u = puid[0]
            a(f'''
            s_cmp_lt_u32 s{s_w}, 4
            s_cbranch_scc1 {L}_pa{u}
            s_setprio {1 if sb == 0 else 0}
            s_branch {L}_pb{u}
            {L}_pa{u}:
            s_setprio {0 if sb == 0 else 1}
            {L}_pb{u}:
            ''')
        ev = []
        for i in range(16):
            ev.append(f'v_exp_f32 v{s+i}, v{s+i}')
            if i >= 3 and i % 2 == 1:
                k = (i - 3) // 2
                ev.append(f'v_cvt_pk_bf16_f32 v{p+k}, v{s+2*k}, v{s+2*k+1}')
        ev.append(f'v_cvt_pk_bf16_f32 v{p+7}, v{s+14}, v{s+15}')
        pos = {1: mf_qk[0], 7: mf_qk[1], 13: mf_pv[0], 19: mf_pv[1]}
        for i, e in enumerate(ev):
            if i in pos: a(pos[i])
            if i == 3:
                for o in reads: a(o)
            if i == 10:
                for o in extra: a(o)
            a(e)
    vm = Vm(a)
    for c in (1, 2):
        for _ in range(3): vm.issue(('kv', c))
    def adv():
        a(f'''
        v_add_u32 v{aK1}, 10240, v{aK1}
        v_add_u32 v{aK2}, 10240, v{aK2}
        v_add_u32 v{aV}, 10240, v{aV}
        ''')
    issue_at = {(0, 0): 3, (0, 2): 4, (1, 0): 5, (1, 1): 6, (1, 2): 7}
    bar_for = {0: ('kv', 1), 1: ('kv', 2), 2: ('kv', 4), 4: ('kv', 7)}
    for c in range(8):
        for j in range(4):
            ex0 = []; ex1 = []
            if j == 3 and c in bar_for:
                vm.wait(bar_for[c])
                a('s_barrier')
                if c == 4:
                    a(f'''
                    s_cmp_lg_u32 s{s_w}, 0
                    s_cbranch_scc1 {L}_nofw
                    s_waitcnt lgkmcnt(0)
                    ''')
                    set_flag(0, 1, vt=T+8)
                    a.label(f'{L}_nofw')
            if (c, j) in issue_at:
                cc = issue_at[(c, j)]
                ex0 = dma_piece(0) + dma_piece(1); ex1 = dma_piece(2) + ch_adv()
                for _ in range(3): vm.issue(('kv', cc))
            a('s_waitcnt lgkmcnt(0)')
            o = j * 2560
            phase(0, PV(1, 1), QK(1, 1), rdK(0, o+2560) + rdV(0, o), ex0)
            a('s_waitcnt lgkmcnt(0)')
            phase(1, PV(0, 0), QK(0, 0), rdK(1, o+3840) + rdV(1, o+1280), ex1)
            if 'nort' in exp: continue
            if c == 2 and j == 0:
                retile_loads()
                for k in range(4): vm.issue('rtl')
            if c == 3 and j == 1:
                vm.wait('rtl'); retile_store()
                for _ in range(4): vm.issue('rts')
            if c == 4 and j == 2:
                vm.wait('rts')
            if c == 6 and j == 3:
                for i in range(4):
                    a(f'buffer_load_dword v{FD+i}, v{FA+i}, s[{sFL}:{sFL+3}], 0 offen sc1'); vm.issue('fw')
        adv()
    a('s_waitcnt lgkmcnt(0)')
    for o in PV(1, 1): a(o)
    P.stamp(2)
    if prof:
        a(f'''
        s_load_dwordx2 s[62:63], s[0:1], 64
        s_waitcnt lgkmcnt(0)
        s_sub_u32 s34, s76, s72
        s_lshl_b32 s35, s2, 3
        s_add_u32 s35, s35, s{s_w}
        s_lshl_b32 s35, s35, 2
        s_add_u32 s35, s35, 0x40000
        v_mov_b32 v{T+8}, s35
        v_mov_b32 v{T+9}, s34
        global_store_dword v{T+8}, v{T+9}, s[62:63]
        ''')
    a(f'''
    v_cmp_gt_u32 s[34:35], 32, v{vlane}
    v_cndmask_b32 v{T}, v{O_+8}, v{O_+12}, s[34:35]
    v_mov_b32 v{T+5}, {fbits(2.0**30)}
    v_cmp_nle_f32 vcc, v{T}, v{T+5}
    s_cbranch_vccnz {L}_slow
    ''')
    a.label(f'{L}_store')
    a(f'v_rcp_f32 v{T}, v{T}')
    for G in range(3):
        o = O_ + 4*G
        for h2 in range(2):
            pk(a, 'v_pk_mul_f32', o+2*h2, vr(o+2*h2,2), vr(T,2), mods='op_sel_hi:[1,0]')
        a(f'v_cvt_pk_bf16_f32 v{o}, v{o}, v{o+1}')
        a(f'v_cvt_pk_bf16_f32 v{o+1}, v{o+2}, v{o+3}')
        a(f'buffer_store_dwordx2 {vr(o,2)}, v{EA[G]}, s[{sO}:{sO+3}], s{s_t} offen sc1')
    a(f's_branch {L}_p2fin')
    a.label(f'{L}_slow')
    a(f'''
    v_lshlrev_b32 v{aK1}, 4, v{vlane}
    v_and_b32 v{T+4}, 31, v{vlane}
    v_lshlrev_b32 v{aK2}, 3, v{T+4}
    v_add_u32 v{aK2}, 1024, v{aK2}
    v_mov_b32 v{Q2+2}, 0
    v_mov_b32 v{T}, 0xff800000
    s_mov_b32 s{s_it}, 0
    {L}_sl1:
    ''')
    for o in rdK(0, 0): a(o)
    a('s_waitcnt lgkmcnt(0)')
    for o in QK(0, 0): a(o)
    maxtree(0, T)
    a(f'''
    v_add_u32 v{aK1}, 1280, v{aK1}
    v_add_u32 v{aK2}, 1280, v{aK2}
    s_add_u32 s{s_it}, s{s_it}, 1
    s_cmp_lt_u32 s{s_it}, 64
    s_cbranch_scc1 {L}_sl1
    ''')
    crosshalf_max(T, T+2)
    setm(T)
    a(f'''
    v_lshlrev_b32 v{aK1}, 4, v{vlane}
    v_lshlrev_b32 v{aK2}, 3, v{T+4}
    v_add_u32 v{aK2}, 1024, v{aK2}
    v_lshrrev_b32 v{T+5}, 5, v{vlane}
    v_mul_u32_u24 v{aV}, 320, v{T+5}
    v_lshl_add_u32 v{aV}, v{T+4}, 4, v{aV}
    v_add_u32 v{aV}, 81920, v{aV}
    s_mov_b32 s{s_it}, 0
    ''')
    for r in range(16): a(f'v_mov_b32 v{O_+r}, 0')
    a.label(f'{L}_sl2')
    for o in rdK(0, 0) + rdV(0, 0): a(o)
    a('s_waitcnt lgkmcnt(0)')
    for o in QK(0, 0): a(o)
    for i in range(16): a(f'v_exp_f32 v{S_[0]+i}, v{S_[0]+i}')
    for k in range(8): a(f'v_cvt_pk_bf16_f32 v{PP[0]+k}, v{S_[0]+2*k}, v{S_[0]+2*k+1}')
    for o in PV(0, 0): a(o)
    a(f'''
    v_add_u32 v{aK1}, 1280, v{aK1}
    v_add_u32 v{aK2}, 1280, v{aK2}
    v_add_u32 v{aV}, 1280, v{aV}
    s_add_u32 s{s_it}, s{s_it}, 1
    s_cmp_lt_u32 s{s_it}, 64
    s_cbranch_scc1 {L}_sl2
    s_nop 15
    v_cmp_gt_u32 s[34:35], 32, v{vlane}
    v_cndmask_b32 v{T}, v{O_+8}, v{O_+12}, s[34:35]
    s_branch {L}_store
    ''')
    a.label(f'{L}_p2fin')
    a(f'''
    s_waitcnt vmcnt(0) lgkmcnt(0)
    s_add_u32 s34, s{s_ep}, {EPOCH_INC & 0xffffffff}
    v_cmp_ne_u32 vcc, s34, v{FD}
    v_cmp_ne_u32 s[36:37], s34, v{FD+1}
    s_or_b64 vcc, vcc, s[36:37]
    v_cmp_ne_u32 s[36:37], s34, v{FD+2}
    s_or_b64 vcc, vcc, s[36:37]
    v_cmp_ne_u32 s[36:37], s34, v{FD+3}
    s_or_b64 vcc, vcc, s[36:37]
    s_cbranch_vccz {L}_fwok
    ''')
    poll([FA, FA+1, FA+2, FA+3], 1, vt=FD)
    a.label(f'{L}_fwok')
    a('s_setprio 0')
    a(f'''
    s_cmp_lt_u32 s{s_w}, 4
    s_cbranch_scc1 {L}_comp
    s_sub_u32 s{s_w}, s{s_w}, 4
    s_barrier
    ''')
    def n640_loader(mode, arr_self, phase_self, poll_setup, phase_dep):
        K = 640 if mode == 'wo' else 1536
        KT = K // 16
        NST = K // 128
        ASL = 16384; BSL = 20480; BBASE = 65536
        sA, sB = 40, 44
        a(f'''
        s_cmp_lg_u32 s{s_w}, 0
        s_cbranch_scc1 {L}_{mode}_nf
        ''')
        set_flag(arr_self, phase_self, vt=20)
        a.label(f'{L}_{mode}_nf')
        srd(a, sA, WSL, WSH, WS_O if mode == 'wo' else WS_ACT, S*K*2)
        srd(a, sB, WSL, WSH, WS_WT3 if mode == 'wo' else WS_WT5, 8*NST*20480)
        a(f'''
        s_lshr_b32 s50, s{s_w}, 1            ; kh
        s_and_b32 s51, s{s_w}, 1             ; mh
        s_lshl_b32 s34, s{s_qb}, 2
        s_and_b32 s35, s{s_x8}, 3
        s_add_u32 s34, s34, s35              ; m64
        s_lshl_b32 s34, s34, 2
        s_lshl_b32 s35, s51, 1
        s_add_u32 s34, s34, s35              ; mt16
        s_mul_i32 s34, s34, {KT*512}
        s_mul_i32 s35, s50, {KT//2*512}
        s_add_u32 s34, s34, s35
        v_lshlrev_b32 v2, 4, v{vlane}
        v_add_u32 v13, s34, v2
        v_add_u32 v14, {KT*512 - 2048}, v13
        s_lshl_b32 s52, s50, 13
        s_lshl_b32 s53, s51, 12
        s_add_u32 s52, s52, s53              ; m0A base
        s_mul_i32 s53, s50, 10240
        s_mul_i32 s33, s51, 5120
        s_add_u32 s53, s53, s33
        s_mul_i32 s54, s{s_ct}, {NST*20480}
        s_add_u32 s54, s54, s53
        s_add_u32 s53, s53, {BBASE}          ; m0B base
        ''')
        def body(role0):
            vm = Vm(a)
            def dA(st):
                slot = st % 4
                a(f's_add_u32 m0, s52, {slot*ASL}')
                a(f's_movk_i32 s34, {st*2048}')
                for i in range(4):
                    a(f'buffer_load_dwordx4 v{13 + i//2}, s[{sA}:{sA+3}], s34 offen offset:{i*1024} lds'); vm.issue(st)
            def dB(st):
                slot = st % 4
                a(f's_add_u32 m0, s53, {slot*BSL}')
                a(f's_add_u32 s35, s54, {st*20480}')
                for i in range(4):
                    a(f'buffer_load_dwordx4 v2, s[{sB}:{sB+3}], s35 offen offset:{i*1024} lds'); vm.issue(st)
                a(f's_add_u32 m0, s53, {slot*BSL + 4096}')
                a(f's_add_u32 s35, s35, 4096')
                a(f'buffer_load_dwordx4 v2, s[{sB}:{sB+3}], s35 offen lds'); vm.issue(st)
            if role0:
                lstamp(lb + 0)
                poll_setup()
                lstamp(lb + 2)
                a('s_barrier')
                dA(0); dB(0); dA(1); dB(1)
            else:
                for st in range(4): dB(st)
                a('s_barrier')
                dA(0); dA(1)
            for st in range(NST):
                vm.wait(st)
                a('s_barrier')
                if st == 0:
                    if role0: dA(2); dB(2); dA(3); dB(3)
                    else: dA(2); dA(3)
                elif st + 3 < NST:
                    dB(st + 3); dA(st + 3)
            a('s_barrier')
            a('s_barrier')
        lb = 0 if mode == 'wo' else 10
        a(f'''
        s_cmp_lg_u32 s{s_w}, 0
        s_cbranch_scc1 {L}_{mode}_oth
        ''')
        body(True)
        a(f's_branch {L}_{mode}_done')
        a.label(f'{L}_{mode}_oth')
        body(False)
        a.label(f'{L}_{mode}_done')
    def poll_p3():
        a(f'''
        v_and_b32 v8, 31, v{vlane}
        s_lshl_b32 s35, s{s_qb}, 5
        v_add_u32 v8, s35, v8
        v_lshlrev_b32 v8, 7, v8
        v_add_u32 v8, {1*256*128}, v8
        ''')
        poll([8], 2, vt=24)
    n640_loader('wo', 1, 2, poll_p3, 2)
    ASL = 16384; BSL = 24576; BBASE = 65536
    STAT4 = 0
    sA, sG, sS, sC = 40, 44, 48, 52
    a(f'''
    s_cmp_lg_u32 s{s_w}, 0
    s_cbranch_scc1 {L}_p4_nf
    ''')
    set_flag(2, 3, vt=20)
    a.label(f'{L}_p4_nf')
    srd(a, sA, WSL, WSH, WS_H, S*D*2)
    srd(a, sG, WSL, WSH, WS_WT4, 16*10*24576)
    srd(a, sS, WSL, WSH, WS_ST, S*16*8)
    srd(a, sC, WSL, WSH, WS_CS2, 5*3072*4)
    a(f'''
    s_lshl_b32 s56, s{s_qb}, 1
    s_and_b32 s34, s{s_x8}, 1
    s_add_u32 s56, s56, s34              ; mt128
    s_lshr_b32 s57, s{s_x8}, 1
    s_lshl_b32 s57, s57, 2
    s_add_u32 s57, s57, s{s_hs}          ; ft
    s_lshl_b32 s34, s56, 3
    s_lshl_b32 s35, s{s_w}, 1
    s_add_u32 s34, s34, s35              ; mt16
    s_mul_i32 s34, s34, 20480
    v_lshlrev_b32 v2, 4, v{vlane}
    v_add_u32 v14, s34, v2
    v_add_u32 v15, {20480 - 2048}, v14
    s_lshl_b32 s58, s{s_w}, 12           ; m0A base
    s_mul_i32 s59, s{s_w}, 6144
    s_mul_i32 s60, s57, {10*24576}
    s_add_u32 s60, s60, s59
    s_add_u32 s59, s59, {BBASE}          ; m0B base
    ''')
    a(f'''
    s_lshl_b32 s34, s56, 7
    s_lshl_b32 s35, s{s_w}, 6
    s_add_u32 s34, s34, s35
    v_add_u32 v16, s34, v{vlane}
    v_lshlrev_b32 v16, 7, v16
    v_cmp_gt_u32 vcc, 24, v{vlane}
    v_lshlrev_b32 v17, 4, v{vlane}
    v_add_u32 v18, {1536*4 - 24*16}, v17
    v_cndmask_b32 v17, v18, v17, vcc
    s_mul_i32 s34, s57, 384
    v_add_u32 v17, s34, v17
    v_cmp_gt_u32 vcc, 48, v{vlane}
    v_mov_b32 v18, 0x7f000000
    v_cndmask_b32 v17, v18, v17, vcc
    ''')
    def p4body(role):
        vm = Vm(a)
        def dA4(st):
            slot = st % 4
            a(f's_add_u32 m0, s58, {slot*ASL}')
            a(f's_movk_i32 s34, {st*2048}')
            for i in range(4):
                a(f'buffer_load_dwordx4 v{14 + i//2}, s[{sA}:{sA+3}], s34 offen offset:{i*1024} lds'); vm.issue(st)
        def dB4(st):
            slot = st % 4
            a(f's_add_u32 m0, s59, {slot*BSL}')
            a(f's_add_u32 s35, s60, {st*24576}')
            for i in range(4):
                a(f'buffer_load_dwordx4 v2, s[{sG}:{sG+3}], s35 offen offset:{i*1024} lds'); vm.issue(st)
            a(f's_add_u32 m0, s59, {slot*BSL + 4096}')
            a(f's_add_u32 s35, s35, 4096')
            for i in range(2):
                a(f'buffer_load_dwordx4 v2, s[{sG}:{sG+3}], s35 offen offset:{i*1024} lds'); vm.issue(st)
        if role == 0:
            lstamp(5)
            a(f'''
            v_bfe_u32 v8, v{vlane}, 2, 2          ; hs'
            v_lshlrev_b32 v8, 3, v8
            v_bfe_u32 v9, v{vlane}, 1, 1
            v_lshl_add_u32 v8, v9, 2, v8
            v_and_b32 v9, 1, v{vlane}
            v_add_u32 v8, v8, v9
            s_lshl_b32 s35, s{s_qb}, 5
            s_and_b32 s34, s{s_x8}, 1
            s_lshl_b32 s34, s34, 1
            s_add_u32 s35, s35, s34
            v_add_u32 v8, s35, v8
            v_lshlrev_b32 v8, 7, v8
            v_add_u32 v8, {2*256*128}, v8
            ''')
            poll([8], 3, vt=24)
            lstamp(7)
            a('s_barrier')
            dA4(0); dB4(0); dA4(1); dB4(1)
        else:
            if role == 2:
                for i in range(5):
                    a(f's_mov_b32 s34, {i*3072*4}')
                    a(f'buffer_load_dwordx4 {vr(32+4*i,4)}, v17, s[{sC}:{sC+3}], s34 offen'); vm.issue('side')
            for st in range(4): dB4(st)
            a('s_barrier')
            dA4(0); dA4(1)
        for st in range(10):
            vm.wait(st)
            if st == 9:
                a('s_waitcnt vmcnt(0)')
                if role < 2:
                    for i in range(1, 16):
                        pk(a, 'v_pk_add_f32', 32, vr(32,2), vr(32+2*i,2))
                    a(f'''
                    v_mul_f32 v32, {fbits(1.0/640)}, v32
                    v_mul_f32 v33, {fbits(1.0/640)}, v33
                    v_fma_f32 v33, -v32, v32, v33
                    v_max_f32 v33, 0, v33
                    v_add_f32 v33, {fbits(1e-5)}, v33
                    v_rsq_f32 v33, v33
                    v_mul_f32 v32, v32, v33
                    s_lshl_b32 s34, s{s_w}, 8
                    v_lshlrev_b32 v16, 2, v{vlane}
                    v_add_u32 v16, s34, v16
                    s_barrier
                    ds_write_b32 v16, v33 offset:{STAT4}
                    ds_write_b32 v16, v32 offset:{STAT4+512}
                    s_waitcnt lgkmcnt(0)
                    s_barrier
                    ''')
                elif role == 2:
                    for i in range(1, 5):
                        pk(a, 'v_pk_add_f32', 32, vr(32,2), vr(32+4*i,2))
                        pk(a, 'v_pk_add_f32', 34, vr(34,2), vr(34+4*i,2))
                    a(f'''
                    v_lshlrev_b32 v16, 4, v{vlane}
                    v_cmp_gt_u32 vcc, 48, v{vlane}
                    s_barrier
                    s_and_saveexec_b64 s[34:35], vcc
                    ds_write_b128 v16, v[32:35] offset:{STAT4+1024}
                    s_waitcnt lgkmcnt(0)
                    s_mov_b64 exec, s[34:35]
                    s_barrier
                    ''')
                else:
                    a('s_barrier'); a('s_barrier')
            else:
                a('s_barrier')
                if st == 0:
                    if role == 0: dA4(2); dB4(2); dA4(3); dB4(3)
                    else: dA4(2); dA4(3)
                elif st + 3 < 10:
                    dB4(st + 3); dA4(st + 3)
                if st == 2 and role < 2:
                    for i in range(8):
                        a(f'buffer_load_dwordx4 {vr(32+4*i,4)}, v16, s[{sS}:{sS+3}], 0 offen offset:{16*i} sc1'); vm.issue('side')
    for role in range(4):
        if role < 3:
            a(f'''
            s_cmp_lg_u32 s{s_w}, {role}
            s_cbranch_scc1 {L}_p4r{role+1}
            ''')
        p4body(role)
        if role < 3:
            a(f's_branch {L}_p4done')
            a.label(f'{L}_p4r{role+1}')
    a.label(f'{L}_p4done')
    a('s_barrier')
    def poll_p5():
        a(f'''
        v_bfe_u32 v8, v{vlane}, 2, 2          ; hs'
        v_lshlrev_b32 v8, 3, v8
        v_and_b32 v9, 3, v{vlane}
        v_lshl_add_u32 v8, v9, 1, v8          ; + 2*(x8'>>1)
        s_lshl_b32 s35, s{s_qb}, 5
        s_bfe_u32 s34, s{s_x8}, 0x10001       ; (x8>>1)&1
        s_add_u32 s35, s35, s34
        v_add_u32 v8, s35, v8
        v_lshlrev_b32 v8, 7, v8
        v_add_u32 v8, {3*256*128}, v8
        ''')
        poll([8], 4, vt=24)
    n640_loader('wd', 3, 4, poll_p5, 4)
    a(f's_branch {L}_end')
    a.label(f'{L}_comp')
    def n640_compute(mode, stamps):
        K = 640 if mode == 'wo' else 1536
        NST = K // 128
        ASL = 16384; BSL = 20480; BBASE = 65536
        EXB = BBASE + ((NST - 2) % 4) * BSL
        sR, sO, sS = 40, 44, 48
        s_mh, s_kh, s_it, s_dA, s_dB = 52, 53, 54, 55, 56
        aX, aW1, aW2 = 2, 3, 4
        XF = lambda b, i: 8 + b*8 + i*4
        WF = lambda b, s: 24 + b*20 + s*4
        ACC = lambda s, i: 64 + (s*2 + i)*4
        RES = lambda j, i: 104 + (j*2 + i)*2
        EAo = 116; EAr = 117; ESt = 118; aEw = 119; aEr = 120
        T = 124
        M = mode
        a(f'''
        s_lshr_b32 s{s_mh}, s{s_w}, 1
        s_and_b32 s{s_kh}, s{s_w}, 1
        v_lshlrev_b32 v{aX}, 3, v{vlane}
        s_lshl_b32 s34, s{s_kh}, 13
        s_lshl_b32 s35, s{s_mh}, 12
        s_add_u32 s34, s34, s35
        v_add_u32 v{aX}, s34, v{aX}
        v_lshrrev_b32 v{T}, 4, v{vlane}        ; g
        v_bfe_u32 v{T+1}, v{vlane}, 2, 2       ; rr
        v_and_b32 v{T+2}, 3, v{vlane}          ; cq
        v_lshl_add_u32 v{T+3}, v{T}, 2, v{T+1}
        v_mul_u32_u24 v{T+3}, 160, v{T+3}
        v_lshl_add_u32 v{T+3}, v{T+2}, 3, v{T+3}
        s_mul_i32 s34, s{s_kh}, {10240 + 96}
        s_add_u32 s34, s34, {BBASE}
        v_add_u32 v{aW1}, s34, v{T+3}
        s_mul_i32 s34, s{s_kh}, {10240 - 64}
        s_add_u32 s34, s34, {BBASE}
        v_add_u32 v{aW2}, s34, v{T+3}
        v_and_b32 v{T+4}, 15, v{vlane}         ; m
        s_lshl_b32 s34, s{s_qb}, 2
        s_and_b32 s35, s{s_x8}, 3
        s_add_u32 s34, s34, s35                ; m64
        s_lshl_b32 s34, s34, 6
        s_lshl_b32 s35, s{s_mh}, 5
        s_add_u32 s34, s34, s35
        v_add_u32 v{T+5}, s34, v{T+4}
        v_mul_u32_u24 v{T+6}, 1280, v{T+5}
        v_lshl_add_u32 v{T+6}, v{T}, 3, v{T+6}
        s_mul_i32 s35, s{s_ct}, 160
        v_add_u32 v{T+6}, s35, v{T+6}
        v_lshlrev_b32 v{T+7}, 3, v{vlane}
        s_lshr_b32 s35, s34, 4
        s_mul_i32 s35, s35, 20480
        v_add_u32 v{T+7}, s35, v{T+7}
        s_mul_i32 s36, s{s_ct}, 5
        ''')
        if mode == 'wo':
            srd(a, sR, 4, 5, 0, S*D*2)
            srd(a, sO, WSL, WSH, WS_H, S*D*2)
            srd(a, sS, WSL, WSH, WS_ST, S*16*8)
            a(f'v_mov_b32 v{EAr}, v{T+6}'); a(f'v_mov_b32 v{EAo}, v{T+7}')
        else:
            srd(a, sR, WSL, WSH, WS_H, S*D*2)
            srd(a, sO, 18, 19, 0, S*D*2)
            a(f'v_mov_b32 v{EAr}, v{T+7}'); a(f'v_mov_b32 v{EAo}, v{T+6}')
        s_nat = 60; s_fm = 64
        for j in range(3):
            a(f'''
            s_mul_i32 s34, s{s_kh}, 3
            s_add_u32 s34, s34, {j}
            s_lshl_b32 s{s_nat+j}, s34, 5
            s_add_u32 s34, s34, s36
            s_lshl_b32 s{s_fm+j}, s34, 9
            ''')
        s_res = s_nat if mode == 'wo' else s_fm
        s_out = s_fm if mode == 'wo' else s_nat
        a(f'''
        s_mul_i32 s34, s{s_mh}, 10240
        s_add_u32 s34, s34, {EXB}
        s_cmp_eq_u32 s{s_kh}, 0
        s_movk_i32 s33, 4096
        s_cselect_b32 s35, {(-2048) & 0xffffffff}, s33
        s_cselect_b32 s33, 4096, 0
        s_add_u32 s35, s35, s34
        s_add_u32 s33, s33, s34
        v_lshlrev_b32 v{T}, 4, v{vlane}
        v_add_u32 v{aEw}, s35, v{T}
        v_add_u32 v{aEr}, s33, v{T}
        v_lshlrev_b32 v{ESt}, 7, v{T+5}
        s_lshl_b32 s34, s{s_ct}, 4
        s_lshl_b32 s35, s{s_kh}, 3
        s_add_u32 s34, s34, s35
        v_add_u32 v{ESt}, s34, v{ESt}
        s_mov_b32 s{s_it}, 0
        s_mov_b32 s68, {ASL}
        s_mov_b32 s69, {(-3*ASL) & 0xffffffff}
        s_mov_b32 s70, {BSL}
        s_mov_b32 s71, {(-3*BSL) & 0xffffffff}
        ''')
        for r in range(40): a(f'v_mov_b32 v{64+r}, 0')
        a('s_waitcnt vmcnt(0)')
        a('s_barrier')
        if stamps: P.stamp(stamps[0])
        for j in range(3):
            for i in range(2):
                a(f's_add_u32 s34, s{s_res+j}, {i*20480}')
                a(f'buffer_load_dwordx2 {vr(RES(j,i),2)}, v{EAr}, s[{sR}:{sR+3}], s34 offen' + (' sc1' if mode != 'wo' else ''))
        a('s_barrier')
        def rd(t, b):
            o = []
            for i in range(2):
                for e in range(2):
                    o.append(f'ds_read_b64 {vr(XF(b,i)+2*e,2)}, v{aX} offset:{(i*2+t)*1024 + e*512}')
            for s in range(5):
                for e in range(2):
                    o.append(f'ds_read_b64_tr_b16 {vr(WF(b,s)+2*e,2)}, v{aW1 if s < 2 else aW2} offset:{(32*t+16*e)*160 + s*32}')
            return o
        a('s_barrier')
        if stamps: P.stamp(stamps[1])
        for o in rd(0, 0): a(o)
        UNR = NST if mode == 'wo' else 2
        if UNR < NST: a.label(f'{L}_{M}_loop')
        for u in range(UNR):
          for t in range(2):
            b = t
            if t == 1:
                a('s_waitcnt lgkmcnt(0)')
                last = (UNR == NST and u == NST - 1)
                if UNR == NST:
                    if not last: a('s_barrier')
                    nxt = (u + 1) % 4
                    dA = ASL if nxt else -3*ASL; dB = BSL if nxt else -3*BSL
                    a(f'v_add_u32 v{aX}, {dA & 0xffffffff}, v{aX}')
                    a(f'v_add_u32 v{aW1}, {dB & 0xffffffff}, v{aW1}')
                    a(f'v_add_u32 v{aW2}, {dB & 0xffffffff}, v{aW2}')
                else:
                    if u == UNR - 1:
                        a(f'''
                        s_cmp_eq_u32 s{s_it}, {NST//UNR - 1}
                        s_cbranch_scc1 {L}_{M}_nob
                        s_barrier
                        {L}_{M}_nob:
                        s_bitcmp1_b32 s{s_it}, 0
                        s_cselect_b32 s{s_dA}, s69, s68
                        s_cselect_b32 s{s_dB}, s71, s70
                        v_add_u32 v{aX}, s{s_dA}, v{aX}
                        v_add_u32 v{aW1}, s{s_dB}, v{aW1}
                        v_add_u32 v{aW2}, s{s_dB}, v{aW2}
                        ''')
                    else:
                        a('s_barrier')
                        a(f'v_add_u32 v{aX}, {ASL}, v{aX}')
                        a(f'v_add_u32 v{aW1}, {BSL}, v{aW1}')
                        a(f'v_add_u32 v{aW2}, {BSL}, v{aW2}')
            R = rd(1, 1) if t == 0 else rd(0, 0)
            n = 0
            for s in range(5):
                for i in range(2):
                    if t == 0 and i == 0:
                        rem_old = 14 - (4 + 2*(s+1))
                        a(f's_waitcnt lgkmcnt({min(15, rem_old + min(14, 2*n))})')
                    a(f'v_mfma_f32_16x16x32_bf16 {vr(ACC(s,i),4)}, {vr(WF(b,s),4)}, {vr(XF(b,i),4)}, {vr(ACC(s,i),4)}')
                    for o in R[2*n:2*n+2]: a(o)
                    n += 1
        if UNR < NST:
            a(f'''
            s_add_u32 s{s_it}, s{s_it}, 1
            s_cmp_lt_u32 s{s_it}, {NST//UNR}
            s_cbranch_scc1 {L}_{M}_loop
            ''')
        if stamps: P.stamp(stamps[2])
        a(f'''
        s_cmp_eq_u32 s{s_kh}, 0
        s_cbranch_scc1 {L}_{M}_skipw
        ''')
        for i in range(2): a(f'ds_write_b128 v{aEw}, {vr(ACC(2,i),4)} offset:{i*1024}')
        a.label(f'{L}_{M}_skipw')
        for s in (3, 4):
            for i in range(2): a(f'ds_write_b128 v{aEw}, {vr(ACC(s,i),4)} offset:{(s-2)*2048 + i*1024}')
        a('s_waitcnt lgkmcnt(0)')
        a('s_barrier')
        EXR = lambda j, i: 8 + (j*2+i)*4
        for j in range(3):
            for i in range(2): a(f'ds_read_b128 {vr(EXR(j,i),4)}, v{aEr} offset:{j*2048 + i*1024}')
        a('s_waitcnt vmcnt(0) lgkmcnt(0)')
        SUM = [32, 34]; SQ = [36, 38]
        if mode == 'wo':
            for r in range(32, 40): a(f'v_mov_b32 v{r}, 0')
        for j in range(3):
            if j == 2:
                a(f's_cmp_lg_u32 s{s_kh}, 0')
                a(f's_cbranch_scc1 {L}_{M}_skip2')
            for i in range(2):
                A0 = ACC(j, i); E0 = EXR(j, i); R0 = RES(j, i)
                pk(a, 'v_pk_add_f32', A0, vr(A0,2), vr(E0,2))
                pk(a, 'v_pk_add_f32', A0+2, vr(A0+2,2), vr(E0+2,2))
                a(f'v_lshlrev_b32 v{E0}, 16, v{R0}')
                a(f'v_and_b32 v{E0+1}, 0xffff0000, v{R0}')
                a(f'v_lshlrev_b32 v{E0+2}, 16, v{R0+1}')
                a(f'v_and_b32 v{E0+3}, 0xffff0000, v{R0+1}')
                pk(a, 'v_pk_add_f32', A0, vr(A0,2), vr(E0,2))
                pk(a, 'v_pk_add_f32', A0+2, vr(A0+2,2), vr(E0+2,2))
                a(f'v_cvt_pk_bf16_f32 v{A0}, v{A0}, v{A0+1}')
                a(f'v_cvt_pk_bf16_f32 v{A0+1}, v{A0+2}, v{A0+3}')
                a(f's_add_u32 s34, s{s_out+j}, {i*20480}')
                a(f'buffer_store_dwordx2 {vr(A0,2)}, v{EAo}, s[{sO}:{sO+3}], s34 offen' + (' sc1' if mode == 'wo' else ''))
                if mode == 'wo':
                    a(f'v_lshlrev_b32 v{E0}, 16, v{A0}')
                    a(f'v_and_b32 v{E0+1}, 0xffff0000, v{A0}')
                    a(f'v_lshlrev_b32 v{E0+2}, 16, v{A0+1}')
                    a(f'v_and_b32 v{E0+3}, 0xffff0000, v{A0+1}')
                    pk(a, 'v_pk_add_f32', SUM[i], vr(SUM[i],2), vr(E0,2))
                    pk(a, 'v_pk_fma_f32', SQ[i], vr(E0,2), vr(E0,2), vr(SQ[i],2))
                    pk(a, 'v_pk_add_f32', SUM[i], vr(SUM[i],2), vr(E0+2,2))
                    pk(a, 'v_pk_fma_f32', SQ[i], vr(E0+2,2), vr(E0+2,2), vr(SQ[i],2))
        a.label(f'{L}_{M}_skip2')
        if mode == 'wo':
            for i in range(2):
                a(f'v_add_f32 v{40+2*i}, v{SUM[i]}, v{SUM[i]+1}')
                a(f'v_add_f32 v{41+2*i}, v{SQ[i]}, v{SQ[i]+1}')
            for r in range(4): a(f'v_mov_b32 v{44+r}, v{40+r}')
            for r in range(4): a(f'v_permlane16_swap_b32 v{44+r}, v{40+r}')
            for r in range(4): a(f'v_add_f32 v{40+r}, v{40+r}, v{44+r}')
            for r in range(4): a(f'v_mov_b32 v{44+r}, v{40+r}')
            for r in range(4): a(f'v_permlane32_swap_b32 v{44+r}, v{40+r}')
            for r in range(4): a(f'v_add_f32 v{40+r}, v{40+r}, v{44+r}')
            a(f'''
            v_cmp_gt_u32 vcc, 16, v{vlane}
            s_and_saveexec_b64 s[34:35], vcc
            buffer_store_dwordx2 v[40:41], v{ESt}, s[{sS}:{sS+3}], 0 offen sc1
            buffer_store_dwordx2 v[42:43], v{ESt}, s[{sS}:{sS+3}], 0 offen offset:2048 sc1
            s_mov_b64 exec, s[34:35]
            ''')
    n640_compute('wo', [3, 4, 5])
    if True:
        ASL = 16384; BSL = 24576; BBASE = 65536; STAT4 = 0
        sO = 40
        s_wm, s_wn, s_it, s_dA, s_dB = 52, 53, 54, 55, 56
        aX, aW = 2, 3
        XF = lambda b, i: 8 + b*16 + i*4
        WF = lambda b, k: 40 + b*24 + k*4
        ACC = lambda k, i: 88 + (k*4 + i)*4
        aRS, aCS, EAo = 184, 185, 186
        T = 188
        a('s_waitcnt vmcnt(0)')
        a(f'''
        s_lshr_b32 s{s_wm}, s{s_w}, 1
        s_and_b32 s{s_wn}, s{s_w}, 1
        v_lshlrev_b32 v{aX}, 3, v{vlane}
        v_mov_b32 v{EAo}, v{aX}
        s_lshl_b32 s34, s{s_wm}, 13
        v_add_u32 v{aX}, s34, v{aX}
        v_lshrrev_b32 v{T}, 4, v{vlane}
        v_bfe_u32 v{T+1}, v{vlane}, 2, 2
        v_and_b32 v{T+2}, 3, v{vlane}
        v_lshl_add_u32 v{T+3}, v{T}, 2, v{T+1}
        v_mul_u32_u24 v{aW}, 96, v{T+3}
        v_lshl_add_u32 v{aW}, v{T+2}, 3, v{aW}
        s_mul_i32 s34, s{s_wn}, 6144
        s_add_u32 s34, s34, {BBASE}
        v_add_u32 v{aW}, s34, v{aW}
        ''')
        a('s_barrier')
        P.stamp(6)
        a(f'''
        v_and_b32 v{T+4}, 15, v{vlane}
        s_lshl_b32 s34, s{s_wm}, 6
        v_add_u32 v{T+4}, s34, v{T+4}
        v_lshlrev_b32 v{aRS}, 2, v{T+4}
        s_mul_i32 s34, s{s_wn}, 192
        v_lshlrev_b32 v{aCS}, 4, v{T}
        v_add_u32 v{aCS}, s34, v{aCS}
        s_lshl_b32 s57, s{s_qb}, 1
        s_and_b32 s34, s{s_x8}, 1
        s_add_u32 s57, s57, s34
        s_lshr_b32 s58, s{s_x8}, 1
        s_lshl_b32 s58, s58, 2
        s_add_u32 s58, s58, s{s_hs}
        s_lshl_b32 s36, s57, 3
        s_lshl_b32 s37, s{s_wm}, 2
        s_add_u32 s36, s36, s37
        s_mul_i32 s36, s36, {96*512}
        s_mul_i32 s37, s58, 6
        s_mul_i32 s35, s{s_wn}, 3
        s_add_u32 s37, s37, s35
        s_lshl_b32 s37, s37, 9
        s_add_u32 s60, s36, s37
        s_mov_b32 s{s_it}, 0
        s_mov_b32 s68, {ASL}
        s_mov_b32 s69, {(-3*ASL) & 0xffffffff}
        s_mov_b32 s70, {BSL}
        s_mov_b32 s71, {(-3*BSL) & 0xffffffff}
        ''')
        srd(a, sO, WSL, WSH, WS_ACT, S*F*2)
        for r in range(96): a(f'v_mov_b32 v{88+r}, 0')
        a('s_barrier')
        def rd(t, b):
            o = []
            for i in range(4):
                for e in range(2):
                    o.append(f'ds_read_b64 {vr(XF(b,i)+2*e,2)}, v{aX} offset:{(i*2+t)*1024 + e*512}')
            for k in range(6):
                mat, s = divmod(k, 3)
                for e in range(2):
                    o.append(f'ds_read_b64_tr_b16 {vr(WF(b,k)+2*e,2)}, v{aW} offset:{mat*12288 + (32*t+16*e)*96 + s*32}')
            return o
        a('s_barrier')
        P.stamp(7)
        for o in rd(0, 0): a(o)
        a.label(f'{L}_p4_loop')
        for u in range(2):
          for t in range(2):
            b = t
            if t == 1:
                a('s_waitcnt lgkmcnt(0)')
                a('s_barrier')
                if u == 0:
                    a(f'v_add_u32 v{aX}, {ASL}, v{aX}')
                    a(f'v_add_u32 v{aW}, {BSL}, v{aW}')
                else:
                    a(f'''
                    s_bitcmp1_b32 s{s_it}, 0
                    s_cselect_b32 s{s_dA}, s69, s68
                    s_cselect_b32 s{s_dB}, s71, s70
                    v_add_u32 v{aX}, s{s_dA}, v{aX}
                    v_add_u32 v{aW}, s{s_dB}, v{aW}
                    ''')
            R = rd(1, 1) if t == 0 else rd(0, 0)
            R = R[8:10] + R[0:8] + R[10:]
            n = 0
            for k in range(6):
                for i in range(4):
                    if t == 0 and (i == 0 or k == 0):
                        need_old = (2 + 2*(i+1)) if k == 0 else (10 + 2*k)
                        rem_old = 20 - need_old
                        a(f's_waitcnt lgkmcnt({min(15, rem_old + min(20, n))})')
                    a(f'v_mfma_f32_16x16x32_bf16 {vr(ACC(k,i),4)}, {vr(WF(b,k),4)}, {vr(XF(b,i),4)}, {vr(ACC(k,i),4)}')
                    if n < 20: a(R[n])
                    n += 1
        a(f'''
        s_add_u32 s{s_it}, s{s_it}, 1
        s_cmp_lt_u32 s{s_it}, 5
        s_cbranch_scc1 {L}_p4_loop
        ''')
        P.stamp(8)
        RS = lambda i: 8 + 4*i; MR = lambda i: 10 + 4*i
        CS = lambda k: 40 + 4*k
        a('s_waitcnt lgkmcnt(0)')
        for i in range(4):
            a(f'ds_read_b32 v{RS(i)}, v{aRS} offset:{STAT4 + i*64}')
            a(f'ds_read_b32 v{MR(i)}, v{aRS} offset:{STAT4 + 512 + i*64}')
        for k in range(6):
            mat, s = divmod(k, 3)
            a(f'ds_read_b128 {vr(CS(k),4)}, v{aCS} offset:{STAT4 + 1024 + mat*384 + s*64}')
        C0 = 2*0.7978845608028654*1.4426950408889634
        C1 = C0*0.044715
        a(f'''
        v_mov_b32 v{T+8}, {fbits(-C0)}
        v_mov_b32 v{T+9}, {fbits(-C0)}
        v_mov_b32 v{T+10}, {fbits(-C1)}
        v_mov_b32 v{T+11}, {fbits(-C1)}
        v_mov_b32 v{T+12}, 1.0
        v_mov_b32 v{T+13}, 1.0
        s_waitcnt lgkmcnt(0)
        ''')
        X = 64
        for s in range(3):
            for i in range(4):
                G0 = ACC(s, i); U0 = ACC(3+s, i)
                for h2 in range(2):
                    for (A0, k) in ((G0, s), (U0, 3+s)):
                        r = A0 + 2*h2
                        pk(a, 'v_pk_mul_f32', r, vr(r,2), vr(RS(i),2), mods='op_sel_hi:[1,0]')
                        pk(a, 'v_pk_fma_f32', r, vr(MR(i),2), vr(CS(k)+2*h2,2), vr(r,2), mods='op_sel_hi:[0,1,1] neg_lo:[1,0,0] neg_hi:[1,0,0]')
                XX = X + 4*((s*4+i) % 4)
                for h2 in range(2): pk(a, 'v_pk_mul_f32', XX+2*h2, vr(G0+2*h2,2), vr(G0+2*h2,2))
                for h2 in range(2): pk(a, 'v_pk_fma_f32', XX+2*h2, vr(XX+2*h2,2), vr(T+10,2), vr(T+8,2))
                for h2 in range(2): pk(a, 'v_pk_mul_f32', XX+2*h2, vr(XX+2*h2,2), vr(G0+2*h2,2))
                for r4 in range(4): a(f'v_exp_f32 v{XX+r4}, v{XX+r4}')
                for h2 in range(2): pk(a, 'v_pk_mul_f32', G0+2*h2, vr(G0+2*h2,2), vr(U0+2*h2,2))
                for h2 in range(2): pk(a, 'v_pk_add_f32', XX+2*h2, vr(XX+2*h2,2), vr(T+12,2))
                for r4 in range(4): a(f'v_rcp_f32 v{XX+r4}, v{XX+r4}')
                for h2 in range(2): pk(a, 'v_pk_mul_f32', G0+2*h2, vr(G0+2*h2,2), vr(XX+2*h2,2))
                a(f'v_cvt_pk_bf16_f32 v{G0}, v{G0}, v{G0+1}')
                a(f'v_cvt_pk_bf16_f32 v{G0+1}, v{G0+2}, v{G0+3}')
                a(f's_add_u32 s36, s60, {s*512 + i*96*512}')
                a(f'buffer_store_dwordx2 {vr(G0,2)}, v{EAo}, s[{sO}:{sO+3}], s36 offen sc1')
        P.stamp(9)
        a('s_waitcnt vmcnt(0)')
    n640_compute('wd', [10, 11, 12])
    a('s_waitcnt vmcnt(0)')
    a('s_barrier')
    P.finish()
    a.label(f'{L}_end')
    a('s_endpgm')
    a.fix_hazards()
    for lab, br in (('sl1', 'sl1'), ('sl2', 'sl2'), ('p4_loop', 'p4_loop'), ('wd_loop', 'wd_loop')):
        bad = a.check_loop(f'{L}_{lab}', f's_cbranch_scc1 {L}_{br}')
        assert not bad, bad
    return kernel_wrap(name, a.text(), vgpr=208, sgpr=102), 163840
```

```python
from asmlib import Asm
S=2048; D=640; H=32; DH=20; F=1536
WS_Q = 0
WS_K = WS_Q + 32*81920
WS_V = WS_K + 32*81920
WS_O = WS_V + 32*81920
WS_H = WS_O + S*D*2
WS_ACT = WS_H + S*D*2
WS_ST = WS_ACT + S*F*2
WS_RS1 = WS_ST + S*16*2*4
WS_MR1 = WS_RS1 + S*4
WS_CS1 = WS_MR1 + S*4
WS_CS2 = WS_CS1 + 2048*4
WS_END = WS_CS2 + 5*3072*4
WS_FLAG = (WS_END + 4095) // 4096 * 4096
WS_EPOCH = WS_FLAG + 512*128
WS_WT3 = WS_EPOCH + 4096
WS_WT4 = WS_WT3 + 8*5*20480
WS_WT5 = WS_WT4 + 16*10*24576
WS_RP = WS_WT5 + 8*12*20480
WS_CP = WS_RP + 10*2048*8
WS_FLAG2 = WS_CP + 10*2048*4
WS_ALL = WS_FLAG2 + 5*256*128
EPOCH_INC = 0x9E3779B1
import struct
def fbits(x): return '0x%08x' % struct.unpack('<I', struct.pack('<f', x))[0]
class Prof:
    def __init__(self, a, on, L, base=64, n=8, fin=(6, 7)): self.a = a; self.on = on; self.L = L; self.base = base; self.n = n; self.fin = fin
    def stamp(self, i):
        if self.on: self.a(f's_memtime s[{self.base+2*i}:{self.base+1+2*i}]')
    def finish(self, wave_sel=0):
        if not self.on: return
        a = self.a
        self.stamp(self.fin[0])
        a('s_waitcnt vmcnt(0)')
        self.stamp(self.fin[1])
        a(f'''
        s_load_dwordx2 s[4:5], s[0:1], 64
        s_waitcnt lgkmcnt(0)
        s_add_u32 s4, s4, {RT['poff']}
        s_addc_u32 s5, s5, 0
        v_cmp_eq_u32 vcc, {wave_sel*64}, v0
        s_and_saveexec_b64 s[10:11], vcc
        s_lshl_b32 s3, s2, 6
        v_mov_b32 v2, s3
        ''')
        for i in range(16 if (RT.get('fine') and self.n == 8) else self.n):
            a(f's_sub_u32 s3, s{self.base+2*i}, s{self.base}')
            a(f'v_mov_b32 v3, s3')
            a(f'global_store_dword v2, v3, s[4:5] offset:{4*i}')
RT = {'off': 16384, 'poff': 4096}
def rt_begin(a, on):
    if on and not RT.get('fine'): a('s_memrealtime s[84:85]')
def rt_end(a, on):
    if not on or RT.get('fine'): return
    a(f'''
    s_waitcnt vmcnt(0)
    s_memrealtime s[86:87]
    s_load_dwordx2 s[88:89], s[0:1], 64
    s_mov_b64 exec, -1
    v_lshrrev_b32 v2, 6, v0
    v_and_b32 v3, 63, v0
    s_mul_i32 s90, s2, 128
    v_lshl_add_u32 v2, v2, 3, s90
    v_add_u32 v2, {RT['off']}, v2
    v_cmp_eq_u32 vcc, 0, v3
    s_and_saveexec_b64 s[92:93], vcc
    s_waitcnt lgkmcnt(0)
    v_mov_b32 v4, s84
    v_mov_b32 v5, s86
    global_store_dwordx2 v2, v[4:5], s[88:89]
    ''')
def pk(a, op, d, x, y, z=None, mods=''):
    if z is None: a(f'{op} {vr(d,2)}, {x}, {y} {mods}')
    else: a(f'{op} {vr(d,2)}, {x}, {y}, {z} {mods}')

KA = dict(x=0, wqkv=8, wo=16, bx=24, wg=32, wu=40, wd=48, out=56, dbg=64, ws=72)

def vr(base, n): return f'v[{base}:{base+n-1}]'

class Vm:
    def __init__(self, a): self.a = a; self.q = []
    def issue(self, tag): self.q.append(tag)
    def need(self, tag):
        idx = [i for i, t in enumerate(self.q) if t == tag]
        if not idx: return None
        n = len(self.q) - 1 - idx[-1]
        self.q = self.q[idx[-1] + 1:]
        return n
    def wait(self, tag):
        n = self.need(tag)
        if n is not None: self.a(f's_waitcnt vmcnt({n})')
    def wait_all(self):
        self.q = []; self.a('s_waitcnt vmcnt(0)')

def srd(a, sreg, base_lo, base_hi, off, size):
    if off:
        a(f's_add_u32 s{sreg}, s{base_lo}, {off}')
        a(f's_addc_u32 s{sreg+1}, s{base_hi}, 0')
    else:
        a(f's_mov_b32 s{sreg}, s{base_lo}')
        a(f's_mov_b32 s{sreg+1}, s{base_hi}')
    a(f's_mov_b32 s{sreg+2}, {size}')
    a(f's_mov_b32 s{sreg+3}, 0x00020000')

def kernel_wrap(name, body, vgpr, sgpr=102, accum=None):
    if accum is None: accum = (vgpr + 3) // 4 * 4
    return f'''.text
.globl {name}
.p2align 8
.type {name},@function
{name}:
{body}
.section .rodata,"a"
.p2align 6
.amdhsa_kernel {name}
  .amdhsa_next_free_vgpr {vgpr}
  .amdhsa_next_free_sgpr {sgpr}
  .amdhsa_accum_offset {accum}
  .amdhsa_group_segment_fixed_size 0
  .amdhsa_kernarg_size 80
  .amdhsa_user_sgpr_count 2
  .amdhsa_user_sgpr_kernarg_segment_ptr 1
  .amdhsa_system_sgpr_workgroup_id_x 1
.end_amdhsa_kernel
'''

def prefetch(a, vlane, segs, s_idx, n_wg, n_waves, s_w, vt, st, vdst):
    for (sr, nrows, lpr, stride, s_base) in segs:
        total = nrows * lpr
        per = -(-total // (n_wg * n_waves * 64))
        a(f's_mul_i32 s{st}, s{s_idx}, {n_waves}')
        a(f's_add_u32 s{st}, s{st}, s{s_w}')
        a(f's_mul_i32 s{st}, s{st}, {per*64}')
        for j in range(per):
            a(f'v_add_u32 v{vt}, s{st}, v{vlane}')
            if j: a(f'v_add_u32 v{vt}, {64*j}, v{vt}')
            if stride == lpr * 128:
                a(f'v_lshlrev_b32 v{vt+1}, 7, v{vt}')
            else:
                magic = (1 << 20) // lpr + 1
                a(f's_mov_b32 s{st+1}, {magic}')
                a(f'v_mul_lo_u32 v{vt+1}, v{vt}, s{st+1}')
                a(f'v_lshrrev_b32 v{vt+1}, 20, v{vt+1}')
                a(f'v_mul_u32_u24 v{vt+2}, {lpr}, v{vt+1}')
                a(f'v_sub_u32 v{vt+2}, v{vt}, v{vt+2}')
                a(f'v_mul_u32_u24 v{vt+1}, {stride}, v{vt+1}')
                a(f'v_lshl_add_u32 v{vt+1}, v{vt+2}, 7, v{vt+1}')
            a(f'v_cmp_gt_u32 vcc, {total}, v{vt}')
            a(f'v_mov_b32 v{vt+2}, 0x7f000000')
            a(f'v_cndmask_b32 v{vt+1}, v{vt+2}, v{vt+1}, vcc')
            a(f'buffer_load_dword v{vdst}, v{vt+1}, s[{sr}:{sr+3}], s{s_base} offen')

def code_prefetch(a, uid, start_label, end_label, nbytes_est, vlane, vt, sb, part=None):
    a(f'''
    s_getpc_b64 s[{sb}:{sb+1}]
    {uid}_pc:
    s_add_u32 s{sb}, s{sb}, {start_label}-{uid}_pc
    s_addc_u32 s{sb+1}, s{sb+1}, -1
    v_lshlrev_b32 v{vt}, 7, v{vlane}
    ''')
```

```python
from common import *
import math
QSCALE = math.log2(math.e) / math.sqrt(20.0)

def gen_k1(name='k1_kernel', prof=False, exp=''):
    a = Asm()
    L = name
    P = Prof(a, prof, L)
    NST = 10
    sX, sW, sO = 12, 16, 20
    s_mt, s_nt, s_w, s_wm, s_wn = 24, 25, 26, 27, 28
    s_m0A, s_m0B, s_offA, s_offB = 29, 30, 31, 32
    s_ks = 33
    s_scale = 52
    s_t0, s_t1 = 53, 54
    s_it = 55
    s_ep = 58
    sS = 60
    sF = 44
    sP = 48
    vlane = 1
    voffA = [16, 17, 18, 19]; voffB = [20, 21, 22, 23]
    aB = [28, 29]
    XF = lambda b, i: 36 + b * 8 + i * 4
    WF = lambda b, j: 52 + b * 8 + j * 4
    ACC = lambda p, q: 68 + (p * 2 + q) * 16
    EA = 140; EL = 148; TB = 160
    STAT = 131072
    P.stamp(0); rt_begin(a, prof)
    a(f'''
    s_cmp_ge_u32 s2, 240
    s_cbranch_scc1 {L}_end
    s_load_dwordx4 s[4:7], s[0:1], 0
    s_load_dwordx2 s[10:11], s[0:1], 72
    v_and_b32 v{vlane}, 63, v0
    v_lshrrev_b32 v2, 6, v0
    v_readfirstlane_b32 s{s_w}, v2
    s_and_b32 s35, s2, 7             ; x8
    s_lshr_b32 s36, s2, 3            ; i 0..29
    s_lshr_b32 s37, s35, 2
    s_mul_i32 s37, s37, 30
    s_add_u32 s37, s37, s36          ; t 0..59
    s_lshr_b32 s{s_nt}, s37, 2
    s_and_b32 s{s_mt}, s37, 3
    s_and_b32 s35, s35, 3
    s_lshl_b32 s35, s35, 2
    s_add_u32 s{s_mt}, s{s_mt}, s35
    s_add_u32 s{s_ks}, s{s_mt}, s{s_nt}      ; rho = (mt+nt) % 10   (max 29)
    s_cmp_ge_u32 s{s_ks}, 20
    s_cselect_b32 s34, 20, 0
    s_sub_u32 s{s_ks}, s{s_ks}, s34
    s_cmp_ge_u32 s{s_ks}, 10
    s_cselect_b32 s34, 10, 0
    s_sub_u32 s{s_ks}, s{s_ks}, s34
    s_cmp_lt_u32 s{s_w}, 4
    s_cbranch_scc1 {L}_comp
    ''')
    a(f'''
    s_sub_u32 s{s_w}, s{s_w}, 4
    v_lshrrev_b32 v3, 4, v{vlane}    ; lane>>4
    v_and_b32 v4, 7, v{vlane}
    v_xor_b32 v5, v4, v3
    v_xor_b32 v6, 4, v5
    v_lshrrev_b32 v2, 3, v{vlane}
    s_lshl_b32 s{s_m0A}, s{s_w}, 12
    s_add_u32 s{s_m0B}, s{s_m0A}, 65536
    s_lshl_b32 s34, s{s_mt}, 7
    s_lshl_b32 s35, s{s_w}, 5
    s_add_u32 s34, s34, s35
    v_add_u32 v2, s34, v2            ; row (i=0)
    s_movk_i32 s35, 1280
    v_mul_lo_u32 v2, v2, s35         ; row*1280
    v_lshl_add_u32 v5, v5, 4, v2
    v_lshl_add_u32 v6, v6, 4, v2
    ''')
    for i in range(4):
        a(f'v_add_u32 v{voffA[i]}, {i*(10240-1024)}, v{5 if i%2==0 else 6}')
    a(f'''
    s_lshl_b32 s34, s{s_w}, 4
    v_add_u32 v2, s34, v3            ; krow (i=0)
    s_movk_i32 s35, 3840
    v_mul_lo_u32 v2, v2, s35
    v_and_b32 v4, 15, v{vlane}
    v_lshlrev_b32 v5, 2, v3
    v_xor_b32 v4, v4, v5
    v_lshl_add_u32 v2, v4, 4, v2
    s_lshl_b32 s34, s{s_nt}, 8
    v_add_u32 v2, s34, v2
    ''')
    for i in range(4):
        a(f'v_add_u32 v{voffB[i]}, {i*(4*3840-1024)}, v2')
    a('s_waitcnt lgkmcnt(0)')
    srd(a, sX, 4, 5, 0, S*D*2)
    srd(a, sW, 6, 7, 0, D*1920*2)
    gray = [0, 1, 3, 2]
    def loader(role):
        R = f'{L}_{role}'
        vm = Vm(a)
        def dma_stage(pos):
            slot = gray[pos % 4]
            a(f's_lshl_b32 s{s_offA}, s{s_ks}, 7')
            a(f's_mul_i32 s{s_offB}, s{s_ks}, {64*3840}')
            a(f's_add_u32 m0, s{s_m0A}, {slot*16384}')
            a(f's_add_u32 s{s_ks}, s{s_ks}, 1')
            for i in range(4):
                a(f'buffer_load_dwordx4 v{voffA[i]}, s[{sX}:{sX+3}], s{s_offA} offen offset:{i*1024} lds'); vm.issue(pos)
            a(f's_add_u32 m0, s{s_m0B}, {slot*16384}')
            a(f's_cmp_eq_u32 s{s_ks}, 10')
            a(f's_cselect_b32 s{s_ks}, 0, s{s_ks}')
            for i in range(4):
                a(f'buffer_load_dwordx4 v{voffB[i]}, s[{sW}:{sW+3}], s{s_offB} offen offset:{i*1024} lds'); vm.issue(pos)
        dma_stage(0); dma_stage(1)
        if role in ('A0', 'F'):
            srd(a, sF, 10, 11, WS_FLAG, 512*128 + 4096)
            a(f'''
            s_add_u32 s34, s10, {WS_EPOCH}
            s_addc_u32 s35, s11, 0
            s_load_dword s{s_ep}, s[34:35], 0
            ''')
        if role == 'A0':
            srd(a, sP, 10, 11, WS_RP, 10*2048*12)
            a(f'''
            v_subrev_u32 v8, 10, v{vlane}
            s_lshl_b32 s34, s{s_mt}, 4
            v_add_u32 v9, s34, v{vlane}
            v_lshlrev_b32 v10, 4, v8
            v_add_u32 v10, s{s_nt}, v10
            v_cmp_gt_u32 vcc, 10, v{vlane}
            v_cndmask_b32 v9, v10, v9, vcc
            v_cmp_gt_u32 vcc, 20, v{vlane}
            s_lshl_b32 s34, s{s_mt}, 4
            v_mov_b32 v10, s34
            v_cndmask_b32 v9, v10, v9, vcc
            v_lshlrev_b32 v30, 7, v9
            v_lshlrev_b32 v31, 4, v{vlane}
            s_lshl_b32 s34, s{s_mt}, 10
            v_add_u32 v31, s34, v31
            v_lshlrev_b32 v32, 3, v{vlane}
            s_lshl_b32 s34, s{s_nt}, 9
            s_add_u32 s34, s34, {10*2048*8}
            v_add_u32 v32, s34, v32
            v_lshlrev_b32 v33, 3, v{vlane}
            v_add_u32 v33, {STAT}, v33
            ''')
        for st in range(NST):
            vm.wait(st)
            if st == 9 and role == 'A0':
                a(f'''
                s_barrier
                s_waitcnt vmcnt(0)
                ''')
                for k in range(1, 10):
                    pk(a, 'v_pk_add_f32', 64, vr(64,2), vr(64+4*k,2))
                    pk(a, 'v_pk_add_f32', 66, vr(66,2), vr(66+4*k,2))
                    pk(a, 'v_pk_add_f32', 104, vr(104,2), vr(104+2*k,2))
                for (sv, qv) in ((64, 65), (66, 67)):
                    a(f'''
                    v_mul_f32 v{sv}, {fbits(1.0/640)}, v{sv}
                    v_mul_f32 v{qv}, {fbits(1.0/640)}, v{qv}
                    v_fma_f32 v{qv}, -v{sv}, v{sv}, v{qv}
                    v_max_f32 v{qv}, 0, v{qv}
                    v_add_f32 v{qv}, {fbits(1e-5)}, v{qv}
                    v_rsq_f32 v{qv}, v{qv}
                    v_mul_f32 v{sv}, v{sv}, v{qv}
                    ''')
                a(f'''
                v_mov_b32 v68, v65
                v_mov_b32 v69, v67
                v_mov_b32 v70, v64
                v_mov_b32 v71, v66
                ds_write_b64 v33, v[68:69]
                ds_write_b64 v33, v[70:71] offset:512
                ds_write_b64 v33, v[104:105] offset:1024
                s_waitcnt lgkmcnt(0)
                s_barrier
                s_cmp_lg_u32 s2, 0
                s_cbranch_scc1 {L}_end
                v_and_b32 v20, 15, v{vlane}
                v_cmp_eq_u32 vcc, 15, v20
                v_subrev_u32 v21, 1, v{vlane}
                v_cndmask_b32 v20, v{vlane}, v21, vcc
                v_lshlrev_b32 v20, 7, v20
                v_add_u32 v21, 8192, v20
                v_add_u32 v22, 16384, v20
                v_add_u32 v23, 24576, v20
                s_mov_b32 s38, 0
                {R}_pall:
                buffer_load_dword v24, v20, s[{sF}:{sF+3}], 0 offen sc1
                buffer_load_dword v25, v21, s[{sF}:{sF+3}], 0 offen sc1
                buffer_load_dword v26, v22, s[{sF}:{sF+3}], 0 offen sc1
                buffer_load_dword v27, v23, s[{sF}:{sF+3}], 0 offen sc1
                s_waitcnt vmcnt(0)
                v_cmp_ne_u32 vcc, s34, v24
                v_cmp_ne_u32 s[36:37], s34, v25
                s_or_b64 vcc, vcc, s[36:37]
                v_cmp_ne_u32 s[36:37], s34, v26
                s_or_b64 vcc, vcc, s[36:37]
                v_cmp_ne_u32 s[36:37], s34, v27
                s_or_b64 vcc, vcc, s[36:37]
                s_cbranch_vccz {R}_pallok
                s_add_u32 s38, s38, 1
                s_cmp_ge_u32 s38, 100000
                s_cbranch_scc1 {R}_pallok
                s_sleep 1
                s_branch {R}_pall
                {R}_pallok:
                v_mov_b32 v20, 0
                v_mov_b32 v21, s34
                s_mov_b32 s35, {512*128}
                v_cmp_eq_u32 vcc, 0, v{vlane}
                s_and_saveexec_b64 s[42:43], vcc
                buffer_store_dword v21, v20, s[{sF}:{sF+3}], s35 offen sc1
                s_mov_b64 exec, s[42:43]
                s_branch {L}_end
                ''')
                return
            a('s_barrier')
            if st == 3 and role == 'F':
                a(f'''
                s_waitcnt lgkmcnt(0)
                s_add_u32 s34, s{s_ep}, {EPOCH_INC}
                v_mov_b32 v8, 0
                v_mov_b32 v9, s34
                s_lshl_b32 s35, s{s_mt}, 4
                s_add_u32 s35, s35, s{s_nt}
                s_lshl_b32 s35, s35, 7
                v_cmp_eq_u32 vcc, 0, v{vlane}
                s_and_saveexec_b64 s[42:43], vcc
                buffer_store_dword v9, v8, s[{sF}:{sF+3}], s35 offen sc1
                s_mov_b64 exec, s[42:43]
                ''')
                vm.issue('flag')
            if st == 0: dma_stage(2); dma_stage(3)
            elif st + 3 < NST: dma_stage(st + 3)
            if st == 6 and role == 'A0':
                a(f'buffer_load_dword v13, v30, s[{sF}:{sF+3}], 0 offen sc1'); vm.issue('flag')
            if st == 8 and role == 'A0':
                vm.wait('flag')
                a(f'''
                s_waitcnt lgkmcnt(0)
                s_add_u32 s34, s{s_ep}, {EPOCH_INC}
                s_mov_b32 s38, 0
                {R}_poll:
                v_cmp_ne_u32 vcc, s34, v13
                s_cbranch_vccz {R}_pollok
                s_add_u32 s38, s38, 1
                s_cmp_ge_u32 s38, 100000
                s_cbranch_scc1 {R}_pollok
                s_sleep 1
                buffer_load_dword v13, v30, s[{sF}:{sF+3}], 0 offen sc1
                s_waitcnt vmcnt(0)
                s_branch {R}_poll
                {R}_pollok:
                ''')
                vm.q = []
                for k in range(10):
                    a(f's_mov_b32 s35, {k*2048*8}')
                    a(f'buffer_load_dwordx4 {vr(64+4*k,4)}, v31, s[{sP}:{sP+3}], s35 offen sc1')
                    a(f's_mov_b32 s36, {k*2048*4}')
                    a(f'buffer_load_dwordx2 {vr(104+2*k,2)}, v32, s[{sP}:{sP+3}], s36 offen sc1')
        if role == 'A1':
            sG = 44; vcol = 61
            srd(a, sS, 10, 11, WS_RS1, WS_END - WS_RS1)
            a(f'''
            s_barrier
            s_mov_b32 s40, 0xffff0000
            s_load_dwordx4 s[36:39], s[0:1], 32
            s_mov_b32 s34, s2                      ; j 0..239
            s_mul_i32 s35, s34, 1366
            s_lshr_b32 s35, s35, 16                ; part = j / 48
            s_mul_i32 s33, s35, 48
            s_sub_u32 s33, s34, s33                ; slab = j % 48
            s_cmp_ge_u32 s33, 24
            s_cselect_b32 s41, 24, 0
            s_sub_u32 s41, s33, s41
            s_lshl_b32 s41, s41, 7
            v_and_b32 v8, 7, v{vlane}
            v_lshrrev_b32 v9, 3, v{vlane}
            s_lshl_b32 s42, s35, 7
            v_add_u32 v9, s42, v9
            v_mul_u32_u24 v9, 3072, v9
            v_lshl_add_u32 v9, v8, 4, v9
            v_add_u32 v{vcol}, s41, v9
            s_mul_i32 s57, s35, {3072*4}
            s_lshl_b32 s41, s33, 8
            s_add_u32 s57, s57, s41
            s_add_u32 s57, s57, {16384+8192}
            s_waitcnt lgkmcnt(0)
            s_cmp_ge_u32 s33, 24
            s_cselect_b32 s36, s38, s36
            s_cselect_b32 s37, s39, s37
            ''')
            srd(a, sG, 36, 37, 0, D*F*2)
            for i in range(16):
                a(f's_mov_b32 s34, {i*8*3072}')
                a(f'buffer_load_dwordx4 {vr(64+4*i,4)}, v{vcol}, s[{sG}:{sG+3}], s34 offen')
            for j in range(8): a(f'v_mov_b32 v{24+j}, 0')
            for i in range(16):
                a(f's_waitcnt vmcnt({15-i})')
                for j in range(4):
                    d = 64 + 4*i + j
                    a(f'v_lshlrev_b32 v10, 16, v{d}')
                    a(f'v_and_b32 v11, s40, v{d}')
                    pk(a, 'v_pk_add_f32', 24+2*j, vr(24+2*j,2), vr(10,2))
            for j in range(8):
                a(f'v_add_f32_dpp v{24+j}, v{24+j}, v{24+j} row_ror:8 row_mask:0xf bank_mask:0xf')
            for j in range(8): a(f'v_mov_b32 v{40+j}, v{24+j}')
            for j in range(8): a(f'v_permlane16_swap_b32 v{40+j}, v{24+j}')
            for j in range(8): a(f'v_add_f32 v{24+j}, v{24+j}, v{40+j}')
            for j in range(8): a(f'v_mov_b32 v{40+j}, v{24+j}')
            for j in range(8): a(f'v_permlane32_swap_b32 v{40+j}, v{24+j}')
            for j in range(8): a(f'v_add_f32 v{24+j}, v{24+j}, v{40+j}')
            a(f'''
            v_cmp_gt_u32 vcc, 8, v{vlane}
            s_and_saveexec_b64 s[42:43], vcc
            v_lshlrev_b32 v10, 5, v{vlane}
            buffer_store_dwordx4 {vr(24,4)}, v10, s[{sS}:{sS+3}], s57 offen
            buffer_store_dwordx4 {vr(28,4)}, v10, s[{sS}:{sS+3}], s57 offen offset:16
            ''')
        a(f's_branch {L}_end')
    a(f'''
    s_cmp_eq_u32 s{s_w}, 1
    s_cbranch_scc1 {L}_roleA1
    s_cmp_eq_u32 s{s_w}, 2
    s_cbranch_scc1 {L}_roleF
    s_cmp_eq_u32 s{s_w}, 3
    s_cbranch_scc1 {L}_roleN
    ''')
    loader('A0')
    a.label(f'{L}_roleA1'); loader('A1')
    a.label(f'{L}_roleF'); loader('F')
    a.label(f'{L}_roleN'); loader('N')
    a.label(f'{L}_comp')
    if 'nocpf' not in exp:
        a(f'''
        s_getpc_b64 s[48:49]
        {L}_pc:
        s_sub_u32 s48, s48, {L}_pc-{L}
        s_subb_u32 s49, s49, 0
        v_lshlrev_b32 v2, 7, v{vlane}
        s_mul_i32 s34, s{s_w}, {3*8192}
        v_add_u32 v2, s34, v2
        ''')
        for i in range(3):
            a(f'v_add_u32 v3, {i*8192}, v2')
            a(f'v_min_u32 v3, text_end-{L}-4, v3')
            a(f'global_load_dword v{200+i}, v3, s[48:49]')
    a(f'''
    s_lshr_b32 s{s_wm}, s{s_w}, 1
    s_and_b32 s{s_wn}, s{s_w}, 1
    v_and_b32 v2, 31, v{vlane}       ; r
    v_lshrrev_b32 v3, 5, v{vlane}    ; hh
    s_lshl_b32 s36, s{s_wm}, 6       ; m base
    s_lshl_b32 s38, s{s_wn}, 6       ; n base
    v_add_u32 v4, s36, v2
    v_lshlrev_b32 v8, 2, v4
    v_add_u32 v{EL}, {STAT}, v8
    s_lshl_b32 s34, s{s_mt}, 7
    v_add_u32 v9, s34, v4
    v_lshlrev_b32 v{EL+4}, 3, v9
    s_lshl_b32 s34, s{s_ks}, 14
    v_add_u32 v{EL+4}, s34, v{EL+4}
    v_lshlrev_b32 v4, 7, v4
    v_bfe_u32 v5, v2, 1, 3           ; (r>>1)&7
    v_add_u32 v10, s38, v2
    v_lshlrev_b32 v12, 2, v10
    v_add_u32 v{EL+1}, {STAT+1024}, v12
    s_lshl_b32 s34, s{s_nt}, 9
    s_lshl_b32 s35, s{s_ks}, 13
    s_add_u32 s34, s34, s35
    s_add_u32 s34, s34, {10*2048*8}
    v_add_u32 v{EL+5}, s34, v12
    ''')
    aA1 = [132 + t for t in range(4)]
    for t in range(4):
        a(f'''
        v_add_u32 v6, {2*t}, v3
        v_xor_b32 v6, v6, v5
        v_lshl_add_u32 v{aA1[t]}, v6, 4, v4
        ''')
    a(f'''
    v_bfe_u32 v13, v{vlane}, 2, 2    ; rr
    v_and_b32 v4, 3, v{vlane}        ; cq
    v_bfe_u32 v5, v{vlane}, 4, 1     ; nhalf
    v_lshl_add_u32 v6, v3, 3, v13    ; 8hh+rr
    v_lshlrev_b32 v6, 8, v6
    v_add_u32 v6, 65536, v6
    v_and_b32 v7, 1, v4
    v_lshl_add_u32 v6, v7, 3, v6
    v_lshrrev_b32 v7, 1, v4
    v_lshl_add_u32 v7, v5, 1, v7
    v_lshl_add_u32 v6, v7, 4, v6
    s_lshl_b32 s34, s{s_wn}, 1
    s_add_u32 s35, s34, 1
    v_xor_b32 v7, s34, v13
    v_lshl_add_u32 v{aB[0]}, v7, 6, v6
    v_xor_b32 v7, s35, v13
    v_lshl_add_u32 v{aB[1]}, v7, 6, v6
    s_lshl_b32 s42, s{s_mt}, 2
    s_lshl_b32 s43, s{s_wm}, 1
    s_add_u32 s42, s42, s43
    s_mul_i32 s{s_t0}, s42, 1280
    s_add_u32 s{s_t1}, s{s_t0}, 1280
    s_mov_b32 s47, 81920
    s_mov_b32 s40, 0xffff0000
    s_cmp_lt_u32 s{s_nt}, 5
    s_cselect_b32 s{s_scale}, {fbits(QSCALE)}, 1.0
    s_mov_b32 s{s_it}, 0
    s_waitcnt lgkmcnt(0)
    ''')
    srd(a, sO, 10, 11, WS_Q, 3*32*81920)
    srd(a, sP, 10, 11, WS_RP, 10*2048*12)
    for r in range(64): a(f'v_mov_b32 v{68+r}, 0')
    SX = [TB, TB+4]; SQ = [TB+2, TB+6]; SW = [TB+8, TB+10]; TT = TB + 12
    for r in range(12): a(f'v_mov_b32 v{TB+r}, 0')
    a(f'''
    s_cmp_ge_u32 s{s_nt}, 10
    s_cbranch_scc1 {L}_v
    ''')
    def rd(t, b):
        o = []
        for i in range(2):
            o.append(f'ds_read_b128 {vr(XF(b,i),4)}, v{aA1[t]} offset:{i*4096}')
            for e in range(2):
                o.append(f'ds_read_b64_tr_b16 {vr(WF(b,i)+2*e,2)}, v{aB[i]} offset:{t*4096 + e*1024}')
        return o
    def stat_ops(b):
        o = []
        n = 0
        for i in range(2):
            for r in range(4):
                t0 = TT + 2*(n % 4); n += 1
                d = XF(b, i) + r
                o += [f'v_lshlrev_b32 v{t0}, 16, v{d}', f'v_and_b32 v{t0+1}, s40, v{d}',
                      f'v_pk_add_f32 {vr(SX[i],2)}, {vr(SX[i],2)}, {vr(t0,2)}',
                      f'v_pk_fma_f32 {vr(SQ[i],2)}, {vr(t0,2)}, {vr(t0,2)}, {vr(SQ[i],2)}']
            for r in range(4):
                t0 = TT + 2*(n % 4); n += 1
                d = WF(b, i) + r
                o += [f'v_lshlrev_b32 v{t0}, 16, v{d}', f'v_and_b32 v{t0+1}, s40, v{d}',
                      f'v_pk_add_f32 {vr(SW[i],2)}, {vr(SW[i],2)}, {vr(t0,2)}']
        return o
    def stage(V, gx, with_stats=False, vmw=False, stampi=None):
        for t in range(4):
            b = t & 1
            def MF(p, q):
                if V == 'qk': return f'v_mfma_f32_32x32x16_bf16 {vr(ACC(p,q),16)}, {vr(WF(b,p),4)}, {vr(XF(b,q),4)}, {vr(ACC(p,q),16)}'
                return f'v_mfma_f32_32x32x16_bf16 {vr(ACC(q,p),16)}, {vr(XF(b,q),4)}, {vr(WF(b,p),4)}, {vr(ACC(q,p),16)}'
            so = stat_ops(b) if with_stats else []
            q4 = len(so) // 4
            if t == 3:
                a('s_waitcnt lgkmcnt(0)' if not vmw else 's_waitcnt vmcnt(0) lgkmcnt(0)')
                a('s_barrier')
                if stampi is not None: P.stamp(stampi)
                a(MF(0, 0))
                for tt in range(4): a(f'v_xor_b32 v{aA1[tt]}, {gx}, v{aA1[tt]}')
                for j in range(2): a(f'v_xor_b32 v{aB[j]}, {gx}, v{aB[j]}')
                R = rd(0, b ^ 1)
                for o in R[:3]: a(o)
                for o in so[:q4]: a(o)
                a(MF(0, 1))
                for o in R[3:]: a(o)
                for o in so[q4:2*q4]: a(o)
                a(MF(1, 0))
                for o in so[2*q4:3*q4]: a(o)
                a(MF(1, 1))
                for o in so[3*q4:]: a(o)
            else:
                R = rd(t + 1, b ^ 1)
                if with_stats:
                    a('s_waitcnt lgkmcnt(0)')
                    a(MF(0, 0))
                    for o in R[:3]: a(o)
                    for o in so[:q4]: a(o)
                    a(MF(0, 1))
                    for o in R[3:]: a(o)
                    for o in so[q4:2*q4]: a(o)
                    a(MF(1, 0))
                    for o in so[2*q4:3*q4]: a(o)
                    a(MF(1, 1))
                    for o in so[3*q4:]: a(o)
                else:
                    a('s_waitcnt lgkmcnt(3)')
                    a(MF(0, 0))
                    for o in R[:3]: a(o)
                    a('s_waitcnt lgkmcnt(5)')
                    a(MF(0, 1))
                    for o in R[3:]: a(o)
                    a('s_waitcnt lgkmcnt(6)')
                    a(MF(1, 0)); a(MF(1, 1))
    def stat_store():
        for i in range(2):
            a(f'v_add_f32 v{SX[i]}, v{SX[i]}, v{SX[i]+1}')
            a(f'v_add_f32 v{SX[i]+1}, v{SQ[i]}, v{SQ[i]+1}')
            a(f'v_add_f32 v{SW[i]}, v{SW[i]}, v{SW[i]+1}')
        regs = [SX[0], SX[0]+1, SX[1], SX[1]+1, SW[0], SW[1]]
        for n, r in enumerate(regs): a(f'v_mov_b32 v{TT+n}, v{r}')
        for n, r in enumerate(regs): a(f'v_permlane32_swap_b32 v{TT+n}, v{r}')
        for n, r in enumerate(regs): a(f'v_add_f32 v{r}, v{r}, v{TT+n}')
        a(f'''
        v_cmp_gt_u32 vcc, 32, v{vlane}
        s_and_saveexec_b64 s[42:43], vcc
        buffer_store_dwordx2 {vr(SX[0],2)}, v{EL+4}, s[{sP}:{sP+3}], 0 offen sc1
        buffer_store_dwordx2 {vr(SX[1],2)}, v{EL+4}, s[{sP}:{sP+3}], 0 offen offset:256 sc1
        buffer_store_dword v{SW[0]}, v{EL+5}, s[{sP}:{sP+3}], 0 offen sc1
        buffer_store_dword v{SW[1]}, v{EL+5}, s[{sP}:{sP+3}], 0 offen offset:128 sc1
        s_mov_b64 exec, s[42:43]
        ''')
    fine = RT.get('fine')
    def mainloop(V):
        P.stamp(3)
        a('s_barrier')
        P.stamp(4)
        for o in rd(0, 0): a(o)
        stage(V, 0x4000, with_stats=True, stampi=8 if fine else None)
        stat_store()
        stage(V, 0x8000, stampi=9 if fine else None)
        stage(V, 0x4000, vmw=True, stampi=10 if fine else None)
        a.label(f'{L}_{V}_loop')
        stage(V, 0x8000)
        stage(V, 0x4000)
        a(f'''
        s_add_u32 s{s_it}, s{s_it}, 1
        s_cmp_lt_u32 s{s_it}, 3
        s_cbranch_scc1 {L}_{V}_loop
        ''')
        if fine: P.stamp(11)
        stage(V, 0x8000, stampi=12 if fine else None)
        P.stamp(5)
    a(f'''
    v_lshlrev_b32 v6, 4, v3           ; 4hh*4
    s_lshl_b32 s34, s38, 2
    v_add_u32 v7, s34, v6
    v_add_u32 v{EL+2}, {STAT+1024}, v7
    s_cmp_ge_u32 s{s_nt}, 5
    s_cselect_b32 s40, 1, 0
    s_mul_i32 s41, s40, 5
    s_sub_u32 s41, s{s_nt}, s41      ; nt5
    s_mul_i32 s40, s40, {32*81920}
    s_add_u32 s{s_t0}, s{s_t0}, s40
    s_add_u32 s{s_t1}, s{s_t1}, s40
    s_lshl_b32 s44, s41, 5
    s_lshr_b32 s45, s38, 2
    s_add_u32 s45, s45, s44
    s_add_u32 s46, s45, 8
    v_lshlrev_b32 v9, 4, v2          ; r*16
    v_lshlrev_b32 v10, 3, v2         ; r*8
    v_add_u32 v10, 1024, v10
    s_mov_b32 s40, 0xffff0000
    ''')
    for p in range(2):
        for a4 in range(4):
            a(f'''
            v_add_u32 v11, s{45+p}, v3
            v_add_u32 v11, {2*a4}, v11           ; qd
            v_mul_u32_u24 v12, 205, v11
            v_lshrrev_b32 v12, 10, v12           ; head
            v_mul_u32_u24 v13, 5, v12
            v_sub_u32 v13, v11, v13              ; dq
            v_lshrrev_b32 v14, 1, v13
            v_lshl_add_u32 v14, v14, 9, v9       ; (dq>>1)*512 + r*16
            v_and_b32 v15, 1, v13
            v_lshl_add_u32 v14, v15, 3, v14
            v_cmp_eq_u32 vcc, 4, v13
            v_cndmask_b32 v14, v14, v10, vcc
            v_mul_lo_u32 v12, v12, s47
            v_add_u32 v{EA+p*4+a4}, v14, v12
            ''')
    mainloop('qk')
    RS = [36, 38]; MR = [40, 42]
    CSB = TB
    a(f'''
    s_waitcnt lgkmcnt(0)
    ds_read_b32 v{RS[0]}, v{EL}
    ds_read_b32 v{MR[0]}, v{EL} offset:512
    ds_read_b32 v{RS[1]}, v{EL} offset:128
    ds_read_b32 v{MR[1]}, v{EL} offset:640
    ''')
    for p in range(2):
        for a4 in range(4):
            a(f'ds_read_b128 {vr(CSB+(p*4+a4)*4,4)}, v{EL+2} offset:{p*128 + a4*32}')
    a('s_waitcnt lgkmcnt(8)')
    for q in range(2):
        a(f'v_mul_f32 v{RS[q]}, s{s_scale}, v{RS[q]}')
        a(f'v_mul_f32 v{MR[q]}, s{s_scale}, v{MR[q]}')
    a('s_waitcnt lgkmcnt(0)')
    for p in range(2):
        for a4 in range(4):
            for q in range(2):
                A0 = ACC(p, q) + a4*4
                C0 = CSB + (p*4+a4)*4
                for h2 in range(2):
                    pk(a, 'v_pk_mul_f32', A0+2*h2, vr(A0+2*h2,2), vr(RS[q],2), mods='op_sel_hi:[1,0]')
                    pk(a, 'v_pk_fma_f32', A0+2*h2, vr(MR[q],2), vr(C0+2*h2,2), vr(A0+2*h2,2), mods='op_sel_hi:[0,1,1] neg_lo:[1,0,0] neg_hi:[1,0,0]')
                a(f'v_cvt_pk_bf16_f32 v{A0}, v{A0}, v{A0+1}')
                a(f'v_cvt_pk_bf16_f32 v{A0+1}, v{A0+2}, v{A0+3}')
                a(f'buffer_store_dwordx2 {vr(A0,2)}, v{EA+p*4+a4}, s[{sO}:{sO+3}], s{[s_t0,s_t1][q]} offen')
    a(f's_branch {L}_fin')
    a.label(f'{L}_v')
    a(f'''
    s_lshl_b32 s36, s36, 2
    v_lshlrev_b32 v8, 4, v3
    v_add_u32 v9, s36, v8
    v_add_u32 v{EL+2}, {STAT}, v9
    s_sub_u32 s41, s{s_nt}, 10
    s_lshl_b32 s41, s41, 7
    s_add_u32 s{s_t0}, s{s_t0}, {2*32*81920}
    s_add_u32 s{s_t1}, s{s_t1}, {2*32*81920}
    v_mul_u32_u24 v8, 320, v3       ; hh*320
    ''')
    for q in range(2):
        a(f'''
        v_add_u32 v12, s41, v10
        v_add_u32 v12, {32*q}, v12
        v_mul_u32_u24 v13, 3277, v12
        v_lshrrev_b32 v13, 16, v13          ; head
        v_mul_u32_u24 v14, 20, v13
        v_sub_u32 v14, v12, v14             ; d
        v_mul_lo_u32 v13, v13, s47
        v_lshl_add_u32 v14, v14, 4, v8
        v_add_u32 v{EA+q}, v14, v13
        ''')
    mainloop('v')
    RSB = TB; MRB = TB + 32
    CSV = [36, 38]
    a(f'''
    s_waitcnt lgkmcnt(0)
    ds_read_b32 v{CSV[0]}, v{EL+1}
    ds_read_b32 v{CSV[1]}, v{EL+1} offset:128
    ''')
    for p in range(2):
        for a4 in range(4):
            a(f'ds_read_b128 {vr(RSB+(p*4+a4)*4,4)}, v{EL+2} offset:{p*128 + a4*32}')
            a(f'ds_read_b128 {vr(MRB+(p*4+a4)*4,4)}, v{EL+2} offset:{512 + p*128 + a4*32}')
    a('s_waitcnt lgkmcnt(0)')
    for p in range(2):
        for q in range(2):
            for mf in range(2):
                A0 = ACC(p, q) + mf*8
                for h2 in range(4):
                    a4 = mf*2 + h2//2
                    o = (p*4+a4)*4 + (h2 & 1)*2
                    r = A0 + h2*2
                    pk(a, 'v_pk_mul_f32', r, vr(r,2), vr(RSB+o,2))
                    pk(a, 'v_pk_fma_f32', r, vr(MRB+o,2), vr(CSV[q],2), vr(r,2), mods='op_sel_hi:[1,0,1] neg_lo:[1,0,0] neg_hi:[1,0,0]')
                for k in range(4):
                    a(f'v_cvt_pk_bf16_f32 v{A0+k}, v{A0+2*k}, v{A0+2*k+1}')
                a(f'buffer_store_dwordx4 {vr(A0,4)}, v{EA+q}, s[{sO}:{sO+3}], s{[s_t0,s_t1][p]} offen offset:{mf*640}')
    a.label(f'{L}_fin')
    P.finish()
    a.label(f'{L}_end')
    rt_end(a, prof)
    a('s_endpgm')
    a.fix_hazards()
    for V in ('qk', 'v'):
        bad = a.check_loop(f'{L}_{V}_loop', f's_cbranch_scc1 {L}_{V}_loop')
        assert not bad, bad
    return kernel_wrap(name, a.text(), vgpr=224, sgpr=100), 131072 + 2048
```

```python
from common import *

def gen_m2(name='m2_kernel', prof=False, exp=''):
    a = Asm(); L = name
    P = Prof(a, prof, L, base=72, n=15, fin=(13, 14))
    vlane = 1
    A4 = 'noa4' not in exp
    s_w, s_ep, s_x8, s_hs, s_qb, s_ct = 22, 23, 24, 25, 26, 27
    sFL = 28
    WSL, WSH = 20, 21
    def set_flag(arr, phase_c, vt=2):
        a(f'''
        s_add_u32 s34, s{s_ep}, {(EPOCH_INC * phase_c) & 0xffffffff}
        v_mov_b32 v{vt}, s34
        s_lshl_b32 s35, s2, 7
        s_add_u32 s35, s35, {arr*256*128}
        v_mov_b32 v{vt+1}, s35
        v_cmp_eq_u32 vcc, 0, v{vlane}
        s_and_saveexec_b64 s[36:37], vcc
        buffer_store_dword v{vt}, v{vt+1}, s[{sFL}:{sFL+3}], 0 offen sc1
        s_mov_b64 exec, s[36:37]
        ''')
    def lstamp(idx):
        if not prof: return
        a(f'''
        s_memtime s[96:97]
        s_load_dwordx2 s[98:99], s[0:1], 64
        s_waitcnt lgkmcnt(0)
        s_sub_u32 s96, s96, s72
        s_lshl_b32 s97, s2, 6
        s_add_u32 s97, s97, {0x50000 + 4*idx}
        v_mov_b32 v200, s97
        v_mov_b32 v201, s96
        s_cmp_lg_u32 s{s_w}, 0
        s_cbranch_scc1 {L}_ls{idx}
        global_store_dword v200, v201, s[98:99]
        {L}_ls{idx}:
        ''')
    uid = [0]
    def poll(vaddrs, phase_c, vt=4):
        uid[0] += 1; u = uid[0]
        a(f's_add_u32 s34, s{s_ep}, {(EPOCH_INC * phase_c) & 0xffffffff}')
        a('s_mov_b32 s38, 0')
        a.label(f'{L}_poll{u}')
        for i, v in enumerate(vaddrs):
            a(f'buffer_load_dword v{vt+i}, v{v}, s[{sFL}:{sFL+3}], 0 offen sc1')
        a('s_waitcnt vmcnt(0)')
        for i in range(len(vaddrs)):
            a(f'v_cmp_ne_u32 vcc, s34, v{vt+i}' if i == 0 else f'v_cmp_ne_u32 s[36:37], s34, v{vt+i}')
            if i: a('s_or_b64 vcc, vcc, s[36:37]')
        a(f'''
        s_cbranch_vccz {L}_pollok{u}
        s_add_u32 s38, s38, 1
        s_cmp_ge_u32 s38, 100000
        s_cbranch_scc1 {L}_pollok{u}
        s_sleep 1
        s_branch {L}_poll{u}
        {L}_pollok{u}:
        ''')
    P.stamp(0)
    a(f'''
    s_cmp_ge_u32 s2, 256
    s_cbranch_scc1 {L}_end
    s_load_dwordx16 s[4:19], s[0:1], 0
    s_load_dwordx2 s[20:21], s[0:1], 72
    v_and_b32 v{vlane}, 63, v0
    v_lshrrev_b32 v2, 6, v0
    v_readfirstlane_b32 s{s_w}, v2
    s_and_b32 s{s_x8}, s2, 7
    s_bfe_u32 s{s_hs}, s2, 0x20003
    s_lshr_b32 s{s_qb}, s2, 5
    s_lshr_b32 s{s_ct}, s{s_x8}, 2
    s_lshl_b32 s{s_ct}, s{s_ct}, 2
    s_add_u32 s{s_ct}, s{s_ct}, s{s_hs}
    s_waitcnt lgkmcnt(0)
    s_add_u32 s34, s{WSL}, {WS_EPOCH}
    s_addc_u32 s35, s{WSH}, 0
    s_load_dword s{s_ep}, s[34:35], 0
    ''')
    srd(a, sFL, WSL, WSH, WS_FLAG2, 4*256*128)
    sQ, sO = 40, 44
    s_it = 48; s_vmask = 50; s_t = 52
    s_lo = [54, 55, 56]; s_go = [57, 58, 59]; s_ch = 60
    aK1, aK2, aV = 2, 3, 4
    EA = [5, 6, 7]
    Q1 = 8; Q2 = 12
    K1 = [16, 24]; K2 = [20, 28]
    V1 = [32, 40]; V2 = [36, 44]
    S_ = [48, 64]; PP = [80, 88]; O_ = 96
    T = 112
    RD = 128
    RA = 144; FA = 148; FD = 152
    vD = 156
    srd(a, sQ, WSL, WSH, WS_Q, 3*32*81920)
    a(f'''
    s_lshl_b32 s34, s{s_x8}, 2
    s_add_u32 s61, s34, s{s_hs}          ; head
    s_mul_i32 s36, s61, 81920
    v_lshlrev_b32 v{vD}, 4, v{vlane}
    ''')
    for i in range(3):
        a(f'''
        s_add_u32 s34, s{s_w}, {8*i}
        s_lshl_b32 s35, s34, 10
        s_add_u32 s37, s35, {81920 - 10240}
        s_add_u32 s38, s35, {WS_K - WS_Q}
        s_add_u32 s39, s35, {WS_V - WS_Q - 10240}
        s_cmp_lt_u32 s34, 10
        s_cselect_b32 s{s_lo[i]}, s35, s37
        s_cselect_b32 s{s_go[i]}, s38, s39
        s_add_u32 s{s_go[i]}, s{s_go[i]}, s36
        s_cmp_lt_u32 s34, 20
        s_cselect_b32 s{s_lo[i]}, s{s_lo[i]}, 0x28000
        s_cselect_b32 s{s_go[i]}, s{s_go[i]}, 0x70000000
        ''')
    a(f'''
    s_lshl_b32 s34, s{s_qb}, 3
    s_add_u32 s34, s34, s{s_w}
    s_mul_i32 s35, s34, 1280
    s_add_u32 s35, s35, s36
    v_and_b32 v{T}, 31, v{vlane}
    v_lshrrev_b32 v{T+1}, 5, v{vlane}
    v_mov_b32 v{aK1}, v{vD}
    v_lshlrev_b32 v{aK2}, 3, v{T}
    v_add_u32 v{aK2}, 1024, v{aK2}
    buffer_load_dwordx4 {vr(Q1,4)}, v{aK1}, s[{sQ}:{sQ+3}], s35 offen
    buffer_load_dwordx2 {vr(Q2,2)}, v{aK2}, s[{sQ}:{sQ+3}], s35 offen
    s_mov_b32 s{s_ch}, 0
    ''')
    def dma_piece(i):
        return [f's_add_u32 m0, s{s_lo[i]}, s{s_ch}', f's_add_u32 s39, s{s_go[i]}, s{s_ch}',
                f'buffer_load_dwordx4 v{vD}, s[{sQ}:{sQ+3}], s39 offen lds']
    def ch_adv():
        return [f's_add_u32 s{s_ch}, s{s_ch}, 10240', f's_cmp_ge_u32 s{s_ch}, 81920', f's_cselect_b32 s{s_ch}, 0x40000000, s{s_ch}']
    for c in range(3):
        for i in range(3):
            for o in dma_piece(i): a(o)
        for o in ch_adv(): a(o)
    srd(a, sO, WSL, WSH, WS_O, S*D*2)
    a(f'''
    v_mul_u32_u24 v{aV}, 320, v{T+1}
    v_lshl_add_u32 v{aV}, v{T}, 4, v{aV}
    v_add_u32 v{aV}, 81920, v{aV}
    v_cmp_gt_u32 s[{s_vmask}:{s_vmask+1}], 20, v{T}
    v_cmp_eq_u32 vcc, 20, v{T}
    v_mov_b32 v{T+2}, 0
    v_mov_b32 v{T+3}, 0x3f803f80
    v_cndmask_b32 v{T+4}, v{T+2}, v{T+3}, vcc
    v_cmp_eq_u32 vcc, 24, v{T}
    v_cndmask_b32 v{T+4}, v{T+4}, v{T+3}, vcc
    ''')
    for b in range(2):
        for r in range(4):
            a(f'v_mov_b32 v{V1[b]+r}, v{T+4}')
            a(f'v_mov_b32 v{V2[b]+r}, v{T+4}')
    a(f'''
    v_cmp_eq_u32 vcc, 0, v{T+1}
    v_mov_b32 v{T+3}, 0x00003f80
    v_cndmask_b32 v{T+5}, v{T+2}, v{T+3}, vcc
    ''')
    for b in range(2):
        a(f'v_mov_b32 v{K2[b]+2}, v{T+5}')
        a(f'v_mov_b32 v{K2[b]+3}, 0')
    a(f'v_mov_b32 v{Q2+2}, 0')
    a(f'v_mov_b32 v{Q2+3}, 0')
    for r in range(16): a(f'v_mov_b32 v{O_+r}, 0')
    for r in range(8): a(f'v_mov_b32 v{PP[1]+r}, 0')
    a(f'''
    s_mul_i32 s37, s61, 5
    v_and_b32 v{T+6}, 15, v{T}
    v_lshrrev_b32 v{T+7}, 4, v{T}
    v_mul_u32_u24 v{T+7}, 20480, v{T+7}
    v_lshl_add_u32 v{T+7}, v{T+6}, 3, v{T+7}
    s_mul_i32 s{s_t}, s34, 40960
    ''')
    for G in range(3):
        a(f'''
        v_add_u32 v{T+8}, s37, v{T+1}
        v_add_u32 v{T+8}, {2*G}, v{T+8}
        v_lshl_add_u32 v{EA[G]}, v{T+8}, 7, v{T+7}
        ''')
    s_rb = [62, 64, 66, 68]
    s_dst = [32, 33, 49, 53]
    def rt_setup4(k, ug):
        a(f'''
        s_mul_i32 s35, s{ug}, 4370
        s_lshr_b32 s35, s35, 20                ; ft = u/240
        s_mul_i32 s36, s35, 240
        s_sub_u32 s34, s{ug}, s36              ; r
        s_mul_i32 s36, s34, 2731
        s_lshr_b32 s36, s36, 16                ; st = r/24
        s_mul_i32 s37, s36, 24
        s_sub_u32 s34, s34, s37                ; r2
        s_mul_i32 s37, s34, 10923
        s_lshr_b32 s37, s37, 16                ; sub = r2/6
        s_mul_i32 s38, s37, 6
        s_sub_u32 s34, s34, s38                ; i
        s_lshl_b32 s34, s34, 6
        v_add_u32 v{T+8}, s34, v{vlane}
        v_mul_u32_u24 v{T+9}, 10923, v{T+8}
        v_lshrrev_b32 v{T+9}, 16, v{T+9}
        v_mul_u32_u24 v{T+10}, 6, v{T+9}
        v_sub_u32 v{T+10}, v{T+8}, v{T+10}
        v_mul_u32_u24 v{T+9}, 3072, v{T+9}
        v_lshl_add_u32 v{T+9}, v{T+10}, 4, v{T+9}
        s_mul_i32 s36, s36, {64*3072}
        s_mul_i32 s35, s35, 192
        s_add_u32 s36, s36, s35
        s_and_b32 s35, s37, 1
        s_mul_i32 s35, s35, 96
        s_add_u32 s36, s36, s35
        v_add_u32 v{RA+k}, s36, v{T+9}
        s_cmp_lt_u32 s37, 2
        s_cselect_b32 s{s_rb[k]}, s12, s14
        s_cselect_b32 s{s_rb[k]+1}, s13, s15
        s_add_u32 s{s_dst[k]}, s{ug}, 800
        s_lshl_b32 s{s_dst[k]}, s{s_dst[k]}, 10
        s_cmp_lt_u32 s{ug}, 3840
        s_cselect_b32 s{s_dst[k]}, s{s_dst[k]}, 0x70000000
        ''')
    def rt_setupN(k, kind, ug):
        K = 640 if kind == 3 else 1536
        NS_ = K // 128
        per_ct = NS_ * 20
        magic = (1 << 20) // per_ct + 1
        a(f'''
        s_mul_i32 s35, s{ug}, {magic}
        s_lshr_b32 s35, s35, 20                ; ct
        s_mul_i32 s36, s35, {per_ct}
        s_sub_u32 s34, s{ug}, s36              ; r
        s_mul_i32 s36, s34, 3277
        s_lshr_b32 s36, s36, 16                ; st
        s_mul_i32 s37, s36, 20
        s_sub_u32 s34, s34, s37                ; r2
        s_cmp_ge_u32 s34, 10
        s_cselect_b32 s37, 1, 0                ; kh
        s_mul_i32 s38, s37, 10
        s_sub_u32 s34, s34, s38                ; i2
        s_lshl_b32 s34, s34, 6
        v_add_u32 v{T+8}, s34, v{vlane}
        v_mul_u32_u24 v{T+9}, 6554, v{T+8}
        v_lshrrev_b32 v{T+9}, 16, v{T+9}
        v_mul_u32_u24 v{T+10}, 10, v{T+9}
        v_sub_u32 v{T+10}, v{T+8}, v{T+10}
        v_mul_u32_u24 v{T+9}, 1280, v{T+9}
        v_lshl_add_u32 v{T+9}, v{T+10}, 4, v{T+9}
        s_mul_i32 s37, s37, {K//2}
        s_lshl_b32 s36, s36, 6
        s_add_u32 s36, s36, s37
        s_mul_i32 s36, s36, 1280
        s_mul_i32 s35, s35, 160
        s_add_u32 s36, s36, s35
        v_add_u32 v{RA+k}, s36, v{T+9}
        s_add_u32 s{s_dst[k]}, s{ug}, {0 if kind == 3 else 4640}
        s_lshl_b32 s{s_dst[k]}, s{s_dst[k]}, 10
        s_cmp_lt_u32 s{ug}, {800 if kind == 3 else 1920}
        s_cselect_b32 s{s_dst[k]}, s{s_dst[k]}, 0x70000000
        ''')
    a(f'''
    s_lshl_b32 s39, s2, 3
    s_add_u32 s39, s39, s{s_w}              ; gw
    s_add_u32 s31, s39, 2048
    ''') if False else None
    def retile_setup_all():
        a(f'''
        s_lshl_b32 s70, s2, 3
        s_add_u32 s70, s70, s{s_w}              ; gw
        s_add_u32 s71, s70, 2048
        ''')
        rt_setup4(0, 70); rt_setup4(1, 71); rt_setupN(2, 5, 70); rt_setupN(3, 3, 70)
    def retile_loads():
        srcs = [(s_rb[0], s_rb[0]+1, 640*1536*2), (s_rb[1], s_rb[1]+1, 640*1536*2), (16, 17, 1536*640*2), (8, 9, 640*640*2)]
        for k, (lo, hi, sz) in enumerate(srcs):
            a(f'''
            s_mov_b32 s68, s{lo}
            s_mov_b32 s69, s{hi}
            s_mov_b32 s70, {sz}
            s_mov_b32 s71, 0x00020000
            buffer_load_dwordx4 {vr(RD+4*k,4)}, v{RA+k}, s[68:71], 0 offen
            ''')
    def retile_store():
        srd(a, 68, WSL, WSH, WS_WT3, 6560*1024)
        for k in range(4):
            a(f'buffer_store_dwordx4 {vr(RD+4*k,4)}, v{vD}, s[68:71], s{s_dst[k]} offen sc1')
    retile_setup_all()
    WP = 158
    a(f'''
    s_lshl_b32 s34, s{s_qb}, 3
    s_add_u32 s34, s34, s{s_w}               ; q
    s_lshr_b32 s35, s{s_x8}, 1
    s_lshl_b32 s35, s35, 2
    s_add_u32 s35, s35, s{s_hs}              ; ft
    s_mul_i32 s35, s35, {10*24576}
    s_add_u32 s35, s35, {WS_WT4 - WS_WT3}
    s_mul_i32 s36, s34, {30*128}
    s_add_u32 s35, s35, s36
    s_mul_i32 s37, s{s_ct}, {12*20480}
    s_add_u32 s37, s37, {WS_WT5 - WS_WT3 - 32*128}
    s_add_u32 s37, s37, s36
    v_lshlrev_b32 v{T+8}, 7, v{vlane}
    v_add_u32 v{T+9}, s35, v{T+8}
    v_add_u32 v{T+10}, s37, v{T+8}
    v_cmp_gt_u32 vcc, 32, v{vlane}
    v_cndmask_b32 v{WP}, v{T+10}, v{T+9}, vcc
    v_and_b32 v{T+9}, 31, v{vlane}
    v_cmp_gt_u32 vcc, 30, v{T+9}
    v_mov_b32 v{T+10}, 0x7f000000
    v_cndmask_b32 v{WP}, v{T+10}, v{WP}, vcc
    s_mul_i32 s37, s{s_ct}, {5*20480}
    s_mul_i32 s36, s34, {13*128}
    s_add_u32 s37, s37, s36
    v_add_u32 v{T+9}, s37, v{T+8}
    v_cmp_gt_u32 vcc, 13, v{vlane}
    v_cndmask_b32 v{WP+1}, v{T+10}, v{T+9}, vcc
    ''')
    a(f'''
    v_lshlrev_b32 v{FA}, 7, v{vlane}
    v_add_u32 v{FA+1}, 8192, v{FA}
    v_add_u32 v{FA+2}, 16384, v{FA}
    v_add_u32 v{FA+3}, 24576, v{FA}
    v_cmp_eq_u32 vcc, 1, v{T+1}
    v_mov_b32 v{T+8}, 0x7f000000
    v_cndmask_b32 v{EA[2]}, v{EA[2]}, v{T+8}, vcc
    s_waitcnt vmcnt(9)
    v_cndmask_b32 v{Q2}, v{Q2}, v{T+2}, vcc
    v_cndmask_b32 v{Q2+1}, v{Q2+1}, v{T+2}, vcc
    s_waitcnt vmcnt(6)
    ''')
    P.stamp(1)
    a('s_barrier')
    def QK(sb, kb):
        return [f'v_mfma_f32_32x32x16_bf16 {vr(S_[sb],16)}, {vr(K1[kb],4)}, {vr(Q1,4)}, 0',
                f'v_mfma_f32_32x32x16_bf16 {vr(S_[sb],16)}, {vr(K2[kb],4)}, {vr(Q2,4)}, {vr(S_[sb],16)}']
    def PV(pb, vb):
        return [f'v_mfma_f32_32x32x16_bf16 {vr(O_,16)}, {vr(V1[vb],4)}, {vr(PP[pb],4)}, {vr(O_,16)}',
                f'v_mfma_f32_32x32x16_bf16 {vr(O_,16)}, {vr(V2[vb],4)}, {vr(PP[pb]+4,4)}, {vr(O_,16)}']
    def rdK(kb, off):
        return [f'ds_read_b128 {vr(K1[kb],4)}, v{aK1} offset:{off}', f'ds_read_b64 {vr(K2[kb],2)}, v{aK2} offset:{off}']
    def rdV(vb, off):
        return [f's_mov_b64 exec, s[{s_vmask}:{s_vmask+1}]',
                f'ds_read_b128 {vr(V1[vb],4)}, v{aV} offset:{off}', f'ds_read_b128 {vr(V2[vb],4)}, v{aV} offset:{off+640}',
                's_mov_b64 exec, -1']
    def setm(mreg):
        a(f'''
        v_sub_f32 v{mreg}, 0, v{mreg}
        v_cvt_pk_bf16_f32 v{mreg}, v{mreg}, 0
        v_and_b32 v{mreg}, 0xffff, v{mreg}
        v_cmp_gt_u32 vcc, 32, v{vlane}
        v_cndmask_b32 v{Q2+2}, 0, v{mreg}, vcc
        ''')
    def maxtree(sb, dst, init=False):
        s = S_[sb]
        if init:
            a(f'v_max3_f32 v{dst}, v{s}, v{s+1}, v{s+2}'); rest = list(range(3, 16))
        else: rest = list(range(0, 16))
        while rest:
            if len(rest) >= 2:
                a(f'v_max3_f32 v{dst}, v{dst}, v{s+rest[0]}, v{s+rest[1]}'); rest = rest[2:]
            else:
                a(f'v_max_f32 v{dst}, v{dst}, v{s+rest[0]}'); rest = rest[1:]
    def crosshalf_max(dst, tmp):
        a(f'''
        v_mov_b32 v{tmp}, v{dst}
        v_permlane32_swap_b32 v{tmp}, v{dst}
        v_max_f32 v{dst}, v{dst}, v{tmp}
        ''')
    for o in rdK(0, 0) + rdK(1, 1280): a(o)
    a('s_waitcnt lgkmcnt(2)')
    for o in QK(0, 0): a(o)
    maxtree(0, T, init=True)
    crosshalf_max(T, T+2)
    setm(T)
    for o in QK(0, 0): a(o)
    puid = [0]
    def phase(sb, mf_pv, mf_qk, reads, extra=()):
        s = S_[sb]; p = PP[sb]
        if 'prio' in exp.split():
            puid[0] += 1; u = puid[0]
            a(f'''
            s_cmp_lt_u32 s{s_w}, 4
            s_cbranch_scc1 {L}_pa{u}
            s_setprio {1 if sb == 0 else 0}
            s_branch {L}_pb{u}
            {L}_pa{u}:
            s_setprio {0 if sb == 0 else 1}
            {L}_pb{u}:
            ''')
        ev = []
        for i in range(16):
            ev.append(f'v_exp_f32 v{s+i}, v{s+i}')
            if i >= 3 and i % 2 == 1:
                k = (i - 3) // 2
                ev.append(f'v_cvt_pk_bf16_f32 v{p+k}, v{s+2*k}, v{s+2*k+1}')
        ev.append(f'v_cvt_pk_bf16_f32 v{p+7}, v{s+14}, v{s+15}')
        pos = {1: mf_qk[0], 7: mf_qk[1], 13: mf_pv[0], 19: mf_pv[1]}
        for i, e in enumerate(ev):
            if i in pos: a(pos[i])
            if i == 3:
                for o in reads: a(o)
            if i == 10:
                for o in extra: a(o)
            a(e)
    vm = Vm(a)
    for c in (1, 2):
        for _ in range(3): vm.issue(('kv', c))
    def adv():
        a(f'''
        v_add_u32 v{aK1}, 10240, v{aK1}
        v_add_u32 v{aK2}, 10240, v{aK2}
        v_add_u32 v{aV}, 10240, v{aV}
        ''')
    issue_at = {(0, 0): 3, (0, 2): 4, (1, 0): 5, (1, 1): 6, (1, 2): 7}
    bar_for = {0: ('kv', 1), 1: ('kv', 2), 2: ('kv', 4), 4: ('kv', 7)}
    for c in range(8):
        for j in range(4):
            ex0 = []; ex1 = []
            if j == 3 and c in bar_for:
                vm.wait(bar_for[c])
                a('s_barrier')
                if c == 4:
                    a(f'''
                    s_cmp_lg_u32 s{s_w}, 0
                    s_cbranch_scc1 {L}_nofw
                    s_waitcnt lgkmcnt(0)
                    ''')
                    set_flag(0, 1, vt=T+8)
                    a.label(f'{L}_nofw')
            if (c, j) in issue_at:
                cc = issue_at[(c, j)]
                ex0 = dma_piece(0) + dma_piece(1); ex1 = dma_piece(2) + ch_adv()
                for _ in range(3): vm.issue(('kv', cc))
            a('s_waitcnt lgkmcnt(0)')
            o = j * 2560
            phase(0, PV(1, 1), QK(1, 1), rdK(0, o+2560) + rdV(0, o), ex0)
            a('s_waitcnt lgkmcnt(0)')
            phase(1, PV(0, 0), QK(0, 0), rdK(1, o+3840) + rdV(1, o+1280), ex1)
            if 'nort' in exp: continue
            if c == 2 and j == 0:
                retile_loads()
                for k in range(4): vm.issue('rtl')
            if c == 3 and j == 1:
                vm.wait('rtl'); retile_store()
                for _ in range(4): vm.issue('rts')
            if c == 4 and j == 2:
                vm.wait('rts')
            if c == 5 and j == 3:
                for i in range(4):
                    a(f'buffer_load_dword v{FD+i}, v{FA+i}, s[{sFL}:{sFL+3}], 0 offen sc1'); vm.issue('fw')
            if c == 7 and j == 0 and 'nowpf' not in exp:
                vm.wait('fw')
                a(f'''
                s_add_u32 s34, s{s_ep}, {EPOCH_INC & 0xffffffff}
                v_cmp_ne_u32 vcc, s34, v{FD}
                v_cmp_ne_u32 s[36:37], s34, v{FD+1}
                s_or_b64 vcc, vcc, s[36:37]
                v_cmp_ne_u32 s[36:37], s34, v{FD+2}
                s_or_b64 vcc, vcc, s[36:37]
                v_cmp_ne_u32 s[36:37], s34, v{FD+3}
                s_or_b64 vcc, vcc, s[36:37]
                s_cbranch_vccnz {L}_nowpf
                ''')
                srd(a, 68, WSL, WSH, WS_WT3, 6560*1024)
                a(f'''
                buffer_load_dword v{RD}, v{WP}, s[68:71], 0 offen
                buffer_load_dword v{RD+1}, v{WP+1}, s[68:71], 0 offen
                {L}_nowpf:
                ''')
        adv()
    a('s_waitcnt lgkmcnt(0)')
    for o in PV(1, 1): a(o)
    P.stamp(2)
    if prof:
        a(f'''
        s_load_dwordx2 s[62:63], s[0:1], 64
        s_waitcnt lgkmcnt(0)
        s_sub_u32 s34, s76, s72
        s_lshl_b32 s35, s2, 3
        s_add_u32 s35, s35, s{s_w}
        s_lshl_b32 s35, s35, 2
        s_add_u32 s35, s35, 0x40000
        v_mov_b32 v{T+8}, s35
        v_mov_b32 v{T+9}, s34
        global_store_dword v{T+8}, v{T+9}, s[62:63]
        ''')
    a(f'''
    v_cmp_gt_u32 s[34:35], 32, v{vlane}
    v_cndmask_b32 v{T}, v{O_+8}, v{O_+12}, s[34:35]
    v_mov_b32 v{T+5}, {fbits(2.0**30)}
    v_cmp_nle_f32 vcc, v{T}, v{T+5}
    s_cbranch_vccnz {L}_slow
    ''')
    a.label(f'{L}_store')
    a(f'v_rcp_f32 v{T}, v{T}')
    for G in range(3):
        o = O_ + 4*G
        for h2 in range(2):
            pk(a, 'v_pk_mul_f32', o+2*h2, vr(o+2*h2,2), vr(T,2), mods='op_sel_hi:[1,0]')
        a(f'v_cvt_pk_bf16_f32 v{o}, v{o}, v{o+1}')
        a(f'v_cvt_pk_bf16_f32 v{o+1}, v{o+2}, v{o+3}')
        a(f'buffer_store_dwordx2 {vr(o,2)}, v{EA[G]}, s[{sO}:{sO+3}], s{s_t} offen sc1')
    a(f's_branch {L}_p2fin')
    a.label(f'{L}_slow')
    a(f'''
    v_lshlrev_b32 v{aK1}, 4, v{vlane}
    v_and_b32 v{T+4}, 31, v{vlane}
    v_lshlrev_b32 v{aK2}, 3, v{T+4}
    v_add_u32 v{aK2}, 1024, v{aK2}
    v_mov_b32 v{Q2+2}, 0
    v_mov_b32 v{T}, 0xff800000
    s_mov_b32 s{s_it}, 0
    {L}_sl1:
    ''')
    for o in rdK(0, 0): a(o)
    a('s_waitcnt lgkmcnt(0)')
    for o in QK(0, 0): a(o)
    maxtree(0, T)
    a(f'''
    v_add_u32 v{aK1}, 1280, v{aK1}
    v_add_u32 v{aK2}, 1280, v{aK2}
    s_add_u32 s{s_it}, s{s_it}, 1
    s_cmp_lt_u32 s{s_it}, 64
    s_cbranch_scc1 {L}_sl1
    ''')
    crosshalf_max(T, T+2)
    setm(T)
    a(f'''
    v_lshlrev_b32 v{aK1}, 4, v{vlane}
    v_lshlrev_b32 v{aK2}, 3, v{T+4}
    v_add_u32 v{aK2}, 1024, v{aK2}
    v_lshrrev_b32 v{T+5}, 5, v{vlane}
    v_mul_u32_u24 v{aV}, 320, v{T+5}
    v_lshl_add_u32 v{aV}, v{T+4}, 4, v{aV}
    v_add_u32 v{aV}, 81920, v{aV}
    s_mov_b32 s{s_it}, 0
    ''')
    for r in range(16): a(f'v_mov_b32 v{O_+r}, 0')
    a.label(f'{L}_sl2')
    for o in rdK(0, 0) + rdV(0, 0): a(o)
    a('s_waitcnt lgkmcnt(0)')
    for o in QK(0, 0): a(o)
    for i in range(16): a(f'v_exp_f32 v{S_[0]+i}, v{S_[0]+i}')
    for k in range(8): a(f'v_cvt_pk_bf16_f32 v{PP[0]+k}, v{S_[0]+2*k}, v{S_[0]+2*k+1}')
    for o in PV(0, 0): a(o)
    a(f'''
    v_add_u32 v{aK1}, 1280, v{aK1}
    v_add_u32 v{aK2}, 1280, v{aK2}
    v_add_u32 v{aV}, 1280, v{aV}
    s_add_u32 s{s_it}, s{s_it}, 1
    s_cmp_lt_u32 s{s_it}, 64
    s_cbranch_scc1 {L}_sl2
    s_nop 15
    v_cmp_gt_u32 s[34:35], 32, v{vlane}
    v_cndmask_b32 v{T}, v{O_+8}, v{O_+12}, s[34:35]
    s_branch {L}_store
    ''')
    a.label(f'{L}_p2fin')
    a(f'''
    s_waitcnt vmcnt(0) lgkmcnt(0)
    s_add_u32 s34, s{s_ep}, {EPOCH_INC & 0xffffffff}
    v_cmp_ne_u32 vcc, s34, v{FD}
    v_cmp_ne_u32 s[36:37], s34, v{FD+1}
    s_or_b64 vcc, vcc, s[36:37]
    v_cmp_ne_u32 s[36:37], s34, v{FD+2}
    s_or_b64 vcc, vcc, s[36:37]
    v_cmp_ne_u32 s[36:37], s34, v{FD+3}
    s_or_b64 vcc, vcc, s[36:37]
    s_cbranch_vccz {L}_fwok
    ''')
    poll([FA, FA+1, FA+2, FA+3], 1, vt=FD)
    a.label(f'{L}_fwok')
    a('s_setprio 0')
    a(f'''
    s_cmp_lt_u32 s{s_w}, 4
    s_cbranch_scc1 {L}_comp
    s_sub_u32 s{s_w}, s{s_w}, 4
    s_barrier
    ''')
    def n640_loader(mode, arr_self, phase_self, poll_setup, phase_dep):
        K = 640 if mode == 'wo' else 1536
        KT = K // 16
        NST = K // 128
        ASL = 16384; BSL = 20480; BBASE = 65536
        sA, sB = 40, 44
        a(f'''
        s_cmp_lg_u32 s{s_w}, 0
        s_cbranch_scc1 {L}_{mode}_nf
        ''')
        set_flag(arr_self, phase_self, vt=20)
        a.label(f'{L}_{mode}_nf')
        srd(a, sA, WSL, WSH, WS_O if mode == 'wo' else WS_ACT, S*K*2)
        srd(a, sB, WSL, WSH, WS_WT3 if mode == 'wo' else WS_WT5, 8*NST*20480)
        a(f'''
        s_lshr_b32 s50, s{s_w}, 1            ; kh
        s_and_b32 s51, s{s_w}, 1             ; mh
        s_lshl_b32 s34, s{s_qb}, 2
        s_and_b32 s35, s{s_x8}, 3
        s_add_u32 s34, s34, s35              ; m64
        s_lshl_b32 s34, s34, 2
        s_lshl_b32 s35, s51, 1
        s_add_u32 s34, s34, s35              ; mt16
        s_mul_i32 s34, s34, {KT*512}
        s_mul_i32 s35, s50, {KT//2*512}
        s_add_u32 s34, s34, s35
        v_lshlrev_b32 v2, 4, v{vlane}
        v_add_u32 v13, s34, v2
        v_add_u32 v14, {KT*512 - 2048}, v13
        s_lshl_b32 s52, s50, 13
        s_lshl_b32 s53, s51, 12
        s_add_u32 s52, s52, s53              ; m0A base
        s_mul_i32 s53, s50, 10240
        s_mul_i32 s33, s51, 5120
        s_add_u32 s53, s53, s33
        s_mul_i32 s54, s{s_ct}, {NST*20480}
        s_add_u32 s54, s54, s53
        s_add_u32 s53, s53, {BBASE}          ; m0B base
        ''')
        def body(role):
            vm = Vm(a)
            def dA(st):
                slot = st % 4
                a(f's_add_u32 m0, s52, {slot*ASL}')
                a(f's_movk_i32 s34, {st*2048}')
                for i in range(4):
                    a(f'buffer_load_dwordx4 v{13 + i//2}, s[{sA}:{sA+3}], s34 offen offset:{i*1024} lds'); vm.issue(st)
            def dBp(st, p0, n):
                slot = st % 4
                p = p0
                while p < p0 + n:
                    k = min(4, p0 + n - p)
                    a(f's_mov_b32 m0, {BBASE + slot*BSL + p*1024}')
                    a(f's_add_u32 s35, s55, {st*20480 + p*1024}')
                    for q in range(k):
                        a(f'buffer_load_dwordx4 v2, s[{sB}:{sB+3}], s35 offen offset:{q*1024} lds'); vm.issue(st)
                    p += k
            if role == 0:
                lstamp(lb + 0)
                poll_setup()
                lstamp(lb + 2)
                a('s_barrier')
                for st in range(4 if A4 else 2): dA(st)
            else:
                p0, n = [(0, 7), (7, 7), (14, 6)][role - 1]
                for st in range(4): dBp(st, p0, n)
                a('s_barrier')
                for st in range(4 if A4 else 2): dA(st)
            for st in range(NST):
                vm.wait(st)
                a('s_barrier')
                if st == 0:
                    if not A4: dA(2); dA(3)
                elif st + 3 < NST:
                    dBp(st + 3, 5*role, 5); dA(st + 3)
            a('s_barrier')
            a('s_barrier')
        lb = 0 if mode == 'wo' else 10
        a(f's_mul_i32 s55, s{s_ct}, {NST*20480}')
        for role in range(4):
            if role < 3:
                a(f'''
                s_cmp_lg_u32 s{s_w}, {role}
                s_cbranch_scc1 {L}_{mode}_r{role+1}
                ''')
            body(role)
            if role < 3:
                a(f's_branch {L}_{mode}_done')
                a.label(f'{L}_{mode}_r{role+1}')
        a.label(f'{L}_{mode}_done')
    def poll_p3():
        a(f'''
        v_and_b32 v8, 31, v{vlane}
        s_lshl_b32 s35, s{s_qb}, 5
        v_add_u32 v8, s35, v8
        v_lshlrev_b32 v8, 7, v8
        v_add_u32 v8, {1*256*128}, v8
        ''')
        poll([8], 2, vt=24)
    n640_loader('wo', 1, 2, poll_p3, 2)
    ASL = 16384; BSL = 24576; BBASE = 65536
    STAT4 = 0
    sA, sG, sS, sC = 40, 44, 48, 52
    a(f'''
    s_cmp_lg_u32 s{s_w}, 0
    s_cbranch_scc1 {L}_p4_nf
    ''')
    set_flag(2, 3, vt=20)
    a.label(f'{L}_p4_nf')
    srd(a, sA, WSL, WSH, WS_H, S*D*2)
    srd(a, sG, WSL, WSH, WS_WT4, 16*10*24576)
    srd(a, sS, WSL, WSH, WS_ST, S*16*8)
    srd(a, sC, WSL, WSH, WS_CS2, 5*3072*4)
    a(f'''
    s_lshl_b32 s56, s{s_qb}, 1
    s_and_b32 s34, s{s_x8}, 1
    s_add_u32 s56, s56, s34              ; mt128
    s_lshr_b32 s57, s{s_x8}, 1
    s_lshl_b32 s57, s57, 2
    s_add_u32 s57, s57, s{s_hs}          ; ft
    s_lshl_b32 s34, s56, 3
    s_lshl_b32 s35, s{s_w}, 1
    s_add_u32 s34, s34, s35              ; mt16
    s_mul_i32 s34, s34, 20480
    v_lshlrev_b32 v2, 4, v{vlane}
    v_add_u32 v14, s34, v2
    v_add_u32 v15, {20480 - 2048}, v14
    s_lshl_b32 s58, s{s_w}, 12           ; m0A base
    s_mul_i32 s59, s{s_w}, 6144
    s_mul_i32 s60, s57, {10*24576}
    s_add_u32 s60, s60, s59
    s_add_u32 s59, s59, {BBASE}          ; m0B base
    ''')
    a(f'''
    s_lshl_b32 s34, s56, 7
    s_lshl_b32 s35, s{s_w}, 6
    s_add_u32 s34, s34, s35
    v_add_u32 v16, s34, v{vlane}
    v_lshlrev_b32 v16, 7, v16
    v_cmp_gt_u32 vcc, 24, v{vlane}
    v_lshlrev_b32 v17, 4, v{vlane}
    v_add_u32 v18, {1536*4 - 24*16}, v17
    v_cndmask_b32 v17, v18, v17, vcc
    s_mul_i32 s34, s57, 384
    v_add_u32 v17, s34, v17
    v_cmp_gt_u32 vcc, 48, v{vlane}
    v_mov_b32 v18, 0x7f000000
    v_cndmask_b32 v17, v18, v17, vcc
    ''')
    a(f's_mul_i32 s61, s57, {10*24576}')
    def p4body(role):
        vm = Vm(a)
        def dA4(st):
            slot = st % 4
            a(f's_add_u32 m0, s58, {slot*ASL}')
            a(f's_movk_i32 s34, {st*2048}')
            for i in range(4):
                a(f'buffer_load_dwordx4 v{14 + i//2}, s[{sA}:{sA+3}], s34 offen offset:{i*1024} lds'); vm.issue(st)
        def dBp(st, p0, n):
            slot = st % 4
            p = p0
            while p < p0 + n:
                k = min(4, p0 + n - p)
                a(f's_mov_b32 m0, {BBASE + slot*BSL + p*1024}')
                a(f's_add_u32 s35, s61, {st*24576 + p*1024}')
                for q in range(k):
                    a(f'buffer_load_dwordx4 v2, s[{sG}:{sG+3}], s35 offen offset:{q*1024} lds'); vm.issue(st)
                p += k
        def dB4(st): dBp(st, 6*role, 6)
        if role == 0:
            lstamp(5)
            a(f'''
            v_bfe_u32 v8, v{vlane}, 2, 2          ; hs'
            v_lshlrev_b32 v8, 3, v8
            v_bfe_u32 v9, v{vlane}, 1, 1
            v_lshl_add_u32 v8, v9, 2, v8
            v_and_b32 v9, 1, v{vlane}
            v_add_u32 v8, v8, v9
            s_lshl_b32 s35, s{s_qb}, 5
            s_and_b32 s34, s{s_x8}, 1
            s_lshl_b32 s34, s34, 1
            s_add_u32 s35, s35, s34
            v_add_u32 v8, s35, v8
            v_lshlrev_b32 v8, 7, v8
            v_add_u32 v8, {2*256*128}, v8
            ''')
            poll([8], 3, vt=24)
            lstamp(7)
            a('s_barrier')
            for st in range(4 if A4 else 2): dA4(st)
        else:
            if role == 2:
                for i in range(5):
                    a(f's_mov_b32 s34, {i*3072*4}')
                    a(f'buffer_load_dwordx4 {vr(32+4*i,4)}, v17, s[{sC}:{sC+3}], s34 offen'); vm.issue('side')
            for st in range(4): dBp(st, 8*(role-1), 8)
            a('s_barrier')
            for st in range(4 if A4 else 2): dA4(st)
        if role < 2:
            for i in range(8):
                a(f'buffer_load_dwordx4 {vr(32+4*i,4)}, v16, s[{sS}:{sS+3}], 0 offen offset:{16*i} sc1'); vm.issue('side')
        for st in range(10):
            vm.wait(st)
            if st == 9:
                a('s_waitcnt vmcnt(0)')
                if role < 2:
                    for i in range(1, 16):
                        pk(a, 'v_pk_add_f32', 32, vr(32,2), vr(32+2*i,2))
                    a(f'''
                    v_mul_f32 v32, {fbits(1.0/640)}, v32
                    v_mul_f32 v33, {fbits(1.0/640)}, v33
                    v_fma_f32 v33, -v32, v32, v33
                    v_max_f32 v33, 0, v33
                    v_add_f32 v33, {fbits(1e-5)}, v33
                    v_rsq_f32 v33, v33
                    v_mul_f32 v32, v32, v33
                    s_lshl_b32 s34, s{s_w}, 8
                    v_lshlrev_b32 v16, 2, v{vlane}
                    v_add_u32 v16, s34, v16
                    s_barrier
                    ds_write_b32 v16, v33 offset:{STAT4}
                    ds_write_b32 v16, v32 offset:{STAT4+512}
                    s_waitcnt lgkmcnt(0)
                    s_barrier
                    ''')
                elif role == 2:
                    for i in range(1, 5):
                        pk(a, 'v_pk_add_f32', 32, vr(32,2), vr(32+4*i,2))
                        pk(a, 'v_pk_add_f32', 34, vr(34,2), vr(34+4*i,2))
                    a(f'''
                    v_lshlrev_b32 v16, 4, v{vlane}
                    v_cmp_gt_u32 vcc, 48, v{vlane}
                    s_barrier
                    s_and_saveexec_b64 s[34:35], vcc
                    ds_write_b128 v16, v[32:35] offset:{STAT4+1024}
                    s_waitcnt lgkmcnt(0)
                    s_mov_b64 exec, s[34:35]
                    s_barrier
                    ''')
                else:
                    a('s_barrier'); a('s_barrier')
            else:
                a('s_barrier')
                if st == 0:
                    if not A4: dA4(2); dA4(3)
                elif st + 3 < 10:
                    dB4(st + 3); dA4(st + 3)
    for role in range(4):
        if role < 3:
            a(f'''
            s_cmp_lg_u32 s{s_w}, {role}
            s_cbranch_scc1 {L}_p4r{role+1}
            ''')
        p4body(role)
        if role < 3:
            a(f's_branch {L}_p4done')
            a.label(f'{L}_p4r{role+1}')
    a.label(f'{L}_p4done')
    a('s_barrier')
    def poll_p5():
        a(f'''
        v_bfe_u32 v8, v{vlane}, 2, 2          ; hs'
        v_lshlrev_b32 v8, 3, v8
        v_and_b32 v9, 3, v{vlane}
        v_lshl_add_u32 v8, v9, 1, v8          ; + 2*(x8'>>1)
        s_lshl_b32 s35, s{s_qb}, 5
        s_bfe_u32 s34, s{s_x8}, 0x10001       ; (x8>>1)&1
        s_add_u32 s35, s35, s34
        v_add_u32 v8, s35, v8
        v_lshlrev_b32 v8, 7, v8
        v_add_u32 v8, {3*256*128}, v8
        ''')
        poll([8], 4, vt=24)
    n640_loader('wd', 3, 4, poll_p5, 4)
    a(f's_branch {L}_end')
    a.label(f'{L}_comp')
    def n640_compute(mode, stamps):
        K = 640 if mode == 'wo' else 1536
        NST = K // 128
        ASL = 16384; BSL = 20480; BBASE = 65536
        EXB = BBASE + ((NST - 2) % 4) * BSL
        sR, sO, sS = 40, 44, 48
        s_mh, s_kh, s_it, s_dA, s_dB = 52, 53, 54, 55, 56
        aX, aW1, aW2 = 2, 3, 4
        XF = lambda b, i: 8 + b*8 + i*4
        WF = lambda b, s: 24 + b*20 + s*4
        ACC = lambda s, i: 64 + (s*2 + i)*4
        RES = lambda j, i: 104 + (j*2 + i)*2
        EAo = 116; EAr = 117; ESt = 118; aEw = 119; aEr = 120
        T = 124
        M = mode
        a(f'''
        s_lshr_b32 s{s_mh}, s{s_w}, 1
        s_and_b32 s{s_kh}, s{s_w}, 1
        v_lshlrev_b32 v{aX}, 3, v{vlane}
        s_lshl_b32 s34, s{s_kh}, 13
        s_lshl_b32 s35, s{s_mh}, 12
        s_add_u32 s34, s34, s35
        v_add_u32 v{aX}, s34, v{aX}
        v_lshrrev_b32 v{T}, 4, v{vlane}        ; g
        v_bfe_u32 v{T+1}, v{vlane}, 2, 2       ; rr
        v_and_b32 v{T+2}, 3, v{vlane}          ; cq
        v_lshl_add_u32 v{T+3}, v{T}, 2, v{T+1}
        v_mul_u32_u24 v{T+3}, 160, v{T+3}
        v_lshl_add_u32 v{T+3}, v{T+2}, 3, v{T+3}
        s_mul_i32 s34, s{s_kh}, {10240 + 96}
        s_add_u32 s34, s34, {BBASE}
        v_add_u32 v{aW1}, s34, v{T+3}
        s_mul_i32 s34, s{s_kh}, {10240 - 64}
        s_add_u32 s34, s34, {BBASE}
        v_add_u32 v{aW2}, s34, v{T+3}
        v_and_b32 v{T+4}, 15, v{vlane}         ; m
        s_lshl_b32 s34, s{s_qb}, 2
        s_and_b32 s35, s{s_x8}, 3
        s_add_u32 s34, s34, s35                ; m64
        s_lshl_b32 s34, s34, 6
        s_lshl_b32 s35, s{s_mh}, 5
        s_add_u32 s34, s34, s35
        v_add_u32 v{T+5}, s34, v{T+4}
        v_mul_u32_u24 v{T+6}, 1280, v{T+5}
        v_lshl_add_u32 v{T+6}, v{T}, 3, v{T+6}
        s_mul_i32 s35, s{s_ct}, 160
        v_add_u32 v{T+6}, s35, v{T+6}
        v_lshlrev_b32 v{T+7}, 3, v{vlane}
        s_lshr_b32 s35, s34, 4
        s_mul_i32 s35, s35, 20480
        v_add_u32 v{T+7}, s35, v{T+7}
        s_mul_i32 s36, s{s_ct}, 5
        ''')
        if mode == 'wo':
            srd(a, sR, 4, 5, 0, S*D*2)
            srd(a, sO, WSL, WSH, WS_H, S*D*2)
            srd(a, sS, WSL, WSH, WS_ST, S*16*8)
            a(f'v_mov_b32 v{EAr}, v{T+6}'); a(f'v_mov_b32 v{EAo}, v{T+7}')
        else:
            srd(a, sR, WSL, WSH, WS_H, S*D*2)
            srd(a, sO, 18, 19, 0, S*D*2)
            a(f'v_mov_b32 v{EAr}, v{T+7}'); a(f'v_mov_b32 v{EAo}, v{T+6}')
        s_nat = 60; s_fm = 64
        for j in range(3):
            a(f'''
            s_mul_i32 s34, s{s_kh}, 3
            s_add_u32 s34, s34, {j}
            s_lshl_b32 s{s_nat+j}, s34, 5
            s_add_u32 s34, s34, s36
            s_lshl_b32 s{s_fm+j}, s34, 9
            ''')
        s_res = s_nat if mode == 'wo' else s_fm
        s_out = s_fm if mode == 'wo' else s_nat
        a(f'''
        s_mul_i32 s34, s{s_mh}, 10240
        s_add_u32 s34, s34, {EXB}
        s_cmp_eq_u32 s{s_kh}, 0
        s_movk_i32 s33, 4096
        s_cselect_b32 s35, {(-2048) & 0xffffffff}, s33
        s_cselect_b32 s33, 4096, 0
        s_add_u32 s35, s35, s34
        s_add_u32 s33, s33, s34
        v_lshlrev_b32 v{T}, 4, v{vlane}
        v_add_u32 v{aEw}, s35, v{T}
        v_add_u32 v{aEr}, s33, v{T}
        v_lshlrev_b32 v{ESt}, 7, v{T+5}
        s_lshl_b32 s34, s{s_ct}, 4
        s_lshl_b32 s35, s{s_kh}, 3
        s_add_u32 s34, s34, s35
        v_add_u32 v{ESt}, s34, v{ESt}
        s_mov_b32 s{s_it}, 0
        s_mov_b32 s68, {ASL}
        s_mov_b32 s69, {(-3*ASL) & 0xffffffff}
        s_mov_b32 s70, {BSL}
        s_mov_b32 s71, {(-3*BSL) & 0xffffffff}
        ''')
        for r in range(40): a(f'v_mov_b32 v{64+r}, 0')
        a('s_waitcnt vmcnt(0)')
        a('s_barrier')
        if stamps: P.stamp(stamps[0])
        for j in range(3):
            for i in range(2):
                a(f's_add_u32 s34, s{s_res+j}, {i*20480}')
                a(f'buffer_load_dwordx2 {vr(RES(j,i),2)}, v{EAr}, s[{sR}:{sR+3}], s34 offen' + (' sc1' if mode != 'wo' else ''))
        a('s_barrier')
        def rd(t, b):
            o = []
            for i in range(2):
                for e in range(2):
                    o.append(f'ds_read_b64 {vr(XF(b,i)+2*e,2)}, v{aX} offset:{(i*2+t)*1024 + e*512}')
            for s in range(5):
                for e in range(2):
                    o.append(f'ds_read_b64_tr_b16 {vr(WF(b,s)+2*e,2)}, v{aW1 if s < 2 else aW2} offset:{(32*t+16*e)*160 + s*32}')
            return o
        a('s_barrier')
        if stamps: P.stamp(stamps[1])
        for o in rd(0, 0): a(o)
        UNR = NST if mode == 'wo' else 2
        if UNR < NST: a.label(f'{L}_{M}_loop')
        for u in range(UNR):
          for t in range(2):
            b = t
            if t == 1:
                a('s_waitcnt lgkmcnt(0)')
                last = (UNR == NST and u == NST - 1)
                if UNR == NST:
                    if not last: a('s_barrier')
                    nxt = (u + 1) % 4
                    dA = ASL if nxt else -3*ASL; dB = BSL if nxt else -3*BSL
                    a(f'v_add_u32 v{aX}, {dA & 0xffffffff}, v{aX}')
                    a(f'v_add_u32 v{aW1}, {dB & 0xffffffff}, v{aW1}')
                    a(f'v_add_u32 v{aW2}, {dB & 0xffffffff}, v{aW2}')
                else:
                    if u == UNR - 1:
                        a(f'''
                        s_cmp_eq_u32 s{s_it}, {NST//UNR - 1}
                        s_cbranch_scc1 {L}_{M}_nob
                        s_barrier
                        {L}_{M}_nob:
                        s_bitcmp1_b32 s{s_it}, 0
                        s_cselect_b32 s{s_dA}, s69, s68
                        s_cselect_b32 s{s_dB}, s71, s70
                        v_add_u32 v{aX}, s{s_dA}, v{aX}
                        v_add_u32 v{aW1}, s{s_dB}, v{aW1}
                        v_add_u32 v{aW2}, s{s_dB}, v{aW2}
                        ''')
                    else:
                        a('s_barrier')
                        a(f'v_add_u32 v{aX}, {ASL}, v{aX}')
                        a(f'v_add_u32 v{aW1}, {BSL}, v{aW1}')
                        a(f'v_add_u32 v{aW2}, {BSL}, v{aW2}')
            R = rd(1, 1) if t == 0 else rd(0, 0)
            n = 0
            for s in range(5):
                for i in range(2):
                    if t == 0 and i == 0:
                        rem_old = 14 - (4 + 2*(s+1))
                        a(f's_waitcnt lgkmcnt({min(15, rem_old + min(14, 2*n))})')
                    a(f'v_mfma_f32_16x16x32_bf16 {vr(ACC(s,i),4)}, {vr(WF(b,s),4)}, {vr(XF(b,i),4)}, {vr(ACC(s,i),4)}')
                    for o in R[2*n:2*n+2]: a(o)
                    n += 1
        if UNR < NST:
            a(f'''
            s_add_u32 s{s_it}, s{s_it}, 1
            s_cmp_lt_u32 s{s_it}, {NST//UNR}
            s_cbranch_scc1 {L}_{M}_loop
            ''')
        if stamps: P.stamp(stamps[2])
        a(f'''
        s_cmp_eq_u32 s{s_kh}, 0
        s_cbranch_scc1 {L}_{M}_skipw
        ''')
        for i in range(2): a(f'ds_write_b128 v{aEw}, {vr(ACC(2,i),4)} offset:{i*1024}')
        a.label(f'{L}_{M}_skipw')
        for s in (3, 4):
            for i in range(2): a(f'ds_write_b128 v{aEw}, {vr(ACC(s,i),4)} offset:{(s-2)*2048 + i*1024}')
        a('s_waitcnt lgkmcnt(0)')
        a('s_barrier')
        EXR = lambda j, i: 8 + (j*2+i)*4
        for j in range(3):
            for i in range(2): a(f'ds_read_b128 {vr(EXR(j,i),4)}, v{aEr} offset:{j*2048 + i*1024}')
        a('s_waitcnt vmcnt(0) lgkmcnt(0)')
        SUM = [32, 34]; SQ = [36, 38]
        if mode == 'wo':
            for r in range(32, 40): a(f'v_mov_b32 v{r}, 0')
        for j in range(3):
            if j == 2:
                a(f's_cmp_lg_u32 s{s_kh}, 0')
                a(f's_cbranch_scc1 {L}_{M}_skip2')
            for i in range(2):
                A0 = ACC(j, i); E0 = EXR(j, i); R0 = RES(j, i)
                pk(a, 'v_pk_add_f32', A0, vr(A0,2), vr(E0,2))
                pk(a, 'v_pk_add_f32', A0+2, vr(A0+2,2), vr(E0+2,2))
                a(f'v_lshlrev_b32 v{E0}, 16, v{R0}')
                a(f'v_and_b32 v{E0+1}, 0xffff0000, v{R0}')
                a(f'v_lshlrev_b32 v{E0+2}, 16, v{R0+1}')
                a(f'v_and_b32 v{E0+3}, 0xffff0000, v{R0+1}')
                pk(a, 'v_pk_add_f32', A0, vr(A0,2), vr(E0,2))
                pk(a, 'v_pk_add_f32', A0+2, vr(A0+2,2), vr(E0+2,2))
                a(f'v_cvt_pk_bf16_f32 v{A0}, v{A0}, v{A0+1}')
                a(f'v_cvt_pk_bf16_f32 v{A0+1}, v{A0+2}, v{A0+3}')
                a(f's_add_u32 s34, s{s_out+j}, {i*20480}')
                a(f'buffer_store_dwordx2 {vr(A0,2)}, v{EAo}, s[{sO}:{sO+3}], s34 offen' + (' sc1' if mode == 'wo' else ''))
                if mode == 'wo':
                    a(f'v_lshlrev_b32 v{E0}, 16, v{A0}')
                    a(f'v_and_b32 v{E0+1}, 0xffff0000, v{A0}')
                    a(f'v_lshlrev_b32 v{E0+2}, 16, v{A0+1}')
                    a(f'v_and_b32 v{E0+3}, 0xffff0000, v{A0+1}')
                    pk(a, 'v_pk_add_f32', SUM[i], vr(SUM[i],2), vr(E0,2))
                    pk(a, 'v_pk_fma_f32', SQ[i], vr(E0,2), vr(E0,2), vr(SQ[i],2))
                    pk(a, 'v_pk_add_f32', SUM[i], vr(SUM[i],2), vr(E0+2,2))
                    pk(a, 'v_pk_fma_f32', SQ[i], vr(E0+2,2), vr(E0+2,2), vr(SQ[i],2))
        a.label(f'{L}_{M}_skip2')
        if mode == 'wo':
            for i in range(2):
                a(f'v_add_f32 v{40+2*i}, v{SUM[i]}, v{SUM[i]+1}')
                a(f'v_add_f32 v{41+2*i}, v{SQ[i]}, v{SQ[i]+1}')
            for r in range(4): a(f'v_mov_b32 v{44+r}, v{40+r}')
            for r in range(4): a(f'v_permlane16_swap_b32 v{44+r}, v{40+r}')
            for r in range(4): a(f'v_add_f32 v{40+r}, v{40+r}, v{44+r}')
            for r in range(4): a(f'v_mov_b32 v{44+r}, v{40+r}')
            for r in range(4): a(f'v_permlane32_swap_b32 v{44+r}, v{40+r}')
            for r in range(4): a(f'v_add_f32 v{40+r}, v{40+r}, v{44+r}')
            a(f'''
            v_cmp_gt_u32 vcc, 16, v{vlane}
            s_and_saveexec_b64 s[34:35], vcc
            buffer_store_dwordx2 v[40:41], v{ESt}, s[{sS}:{sS+3}], 0 offen sc1
            buffer_store_dwordx2 v[42:43], v{ESt}, s[{sS}:{sS+3}], 0 offen offset:2048 sc1
            s_mov_b64 exec, s[34:35]
            ''')
    n640_compute('wo', [3, 4, 5])
    if True:
        ASL = 16384; BSL = 24576; BBASE = 65536; STAT4 = 0
        sO = 40
        s_wm, s_wn, s_it, s_dA, s_dB = 52, 53, 54, 55, 56
        aX, aW = 2, 3
        XF = lambda b, i: 8 + b*16 + i*4
        WF = lambda b, k: 40 + b*24 + k*4
        ACC = lambda k, i: 88 + (k*4 + i)*4
        aRS, aCS, EAo = 184, 185, 186
        T = 188
        a('s_waitcnt vmcnt(0)')
        a(f'''
        s_lshr_b32 s{s_wm}, s{s_w}, 1
        s_and_b32 s{s_wn}, s{s_w}, 1
        v_lshlrev_b32 v{aX}, 3, v{vlane}
        v_mov_b32 v{EAo}, v{aX}
        s_lshl_b32 s34, s{s_wm}, 13
        v_add_u32 v{aX}, s34, v{aX}
        v_lshrrev_b32 v{T}, 4, v{vlane}
        v_bfe_u32 v{T+1}, v{vlane}, 2, 2
        v_and_b32 v{T+2}, 3, v{vlane}
        v_lshl_add_u32 v{T+3}, v{T}, 2, v{T+1}
        v_mul_u32_u24 v{aW}, 96, v{T+3}
        v_lshl_add_u32 v{aW}, v{T+2}, 3, v{aW}
        s_mul_i32 s34, s{s_wn}, 6144
        s_add_u32 s34, s34, {BBASE}
        v_add_u32 v{aW}, s34, v{aW}
        ''')
        a('s_barrier')
        P.stamp(6)
        a(f'''
        v_and_b32 v{T+4}, 15, v{vlane}
        s_lshl_b32 s34, s{s_wm}, 6
        v_add_u32 v{T+4}, s34, v{T+4}
        v_lshlrev_b32 v{aRS}, 2, v{T+4}
        s_mul_i32 s34, s{s_wn}, 192
        v_lshlrev_b32 v{aCS}, 4, v{T}
        v_add_u32 v{aCS}, s34, v{aCS}
        s_lshl_b32 s57, s{s_qb}, 1
        s_and_b32 s34, s{s_x8}, 1
        s_add_u32 s57, s57, s34
        s_lshr_b32 s58, s{s_x8}, 1
        s_lshl_b32 s58, s58, 2
        s_add_u32 s58, s58, s{s_hs}
        s_lshl_b32 s36, s57, 3
        s_lshl_b32 s37, s{s_wm}, 2
        s_add_u32 s36, s36, s37
        s_mul_i32 s36, s36, {96*512}
        s_mul_i32 s37, s58, 6
        s_mul_i32 s35, s{s_wn}, 3
        s_add_u32 s37, s37, s35
        s_lshl_b32 s37, s37, 9
        s_add_u32 s60, s36, s37
        s_mov_b32 s{s_it}, 0
        s_mov_b32 s68, {ASL}
        s_mov_b32 s69, {(-3*ASL) & 0xffffffff}
        s_mov_b32 s70, {BSL}
        s_mov_b32 s71, {(-3*BSL) & 0xffffffff}
        ''')
        srd(a, sO, WSL, WSH, WS_ACT, S*F*2)
        for r in range(96): a(f'v_mov_b32 v{88+r}, 0')
        a('s_barrier')
        def rd(t, b):
            o = []
            for i in range(4):
                for e in range(2):
                    o.append(f'ds_read_b64 {vr(XF(b,i)+2*e,2)}, v{aX} offset:{(i*2+t)*1024 + e*512}')
            for k in range(6):
                mat, s = divmod(k, 3)
                for e in range(2):
                    o.append(f'ds_read_b64_tr_b16 {vr(WF(b,k)+2*e,2)}, v{aW} offset:{mat*12288 + (32*t+16*e)*96 + s*32}')
            return o
        a('s_barrier')
        P.stamp(7)
        for o in rd(0, 0): a(o)
        a.label(f'{L}_p4_loop')
        for u in range(2):
          for t in range(2):
            b = t
            if t == 1:
                a('s_waitcnt lgkmcnt(0)')
                a('s_barrier')
                if u == 0:
                    a(f'v_add_u32 v{aX}, {ASL}, v{aX}')
                    a(f'v_add_u32 v{aW}, {BSL}, v{aW}')
                else:
                    a(f'''
                    s_bitcmp1_b32 s{s_it}, 0
                    s_cselect_b32 s{s_dA}, s69, s68
                    s_cselect_b32 s{s_dB}, s71, s70
                    v_add_u32 v{aX}, s{s_dA}, v{aX}
                    v_add_u32 v{aW}, s{s_dB}, v{aW}
                    ''')
            R = rd(1, 1) if t == 0 else rd(0, 0)
            R = R[8:10] + R[0:8] + R[10:]
            n = 0
            for k in range(6):
                for i in range(4):
                    if t == 0 and (i == 0 or k == 0):
                        need_old = (2 + 2*(i+1)) if k == 0 else (10 + 2*k)
                        rem_old = 20 - need_old
                        a(f's_waitcnt lgkmcnt({min(15, rem_old + min(20, n))})')
                    a(f'v_mfma_f32_16x16x32_bf16 {vr(ACC(k,i),4)}, {vr(WF(b,k),4)}, {vr(XF(b,i),4)}, {vr(ACC(k,i),4)}')
                    if n < 20: a(R[n])
                    n += 1
        a(f'''
        s_add_u32 s{s_it}, s{s_it}, 1
        s_cmp_lt_u32 s{s_it}, 5
        s_cbranch_scc1 {L}_p4_loop
        ''')
        P.stamp(8)
        RS = lambda i: 8 + 4*i; MR = lambda i: 10 + 4*i
        CS = lambda k: 40 + 4*k
        a('s_waitcnt lgkmcnt(0)')
        for i in range(4):
            a(f'ds_read_b32 v{RS(i)}, v{aRS} offset:{STAT4 + i*64}')
            a(f'ds_read_b32 v{MR(i)}, v{aRS} offset:{STAT4 + 512 + i*64}')
        for k in range(6):
            mat, s = divmod(k, 3)
            a(f'ds_read_b128 {vr(CS(k),4)}, v{aCS} offset:{STAT4 + 1024 + mat*384 + s*64}')
        C0 = 2*0.7978845608028654*1.4426950408889634
        C1 = C0*0.044715
        a(f'''
        v_mov_b32 v{T+8}, {fbits(-C0)}
        v_mov_b32 v{T+9}, {fbits(-C0)}
        v_mov_b32 v{T+10}, {fbits(-C1)}
        v_mov_b32 v{T+11}, {fbits(-C1)}
        v_mov_b32 v{T+12}, 1.0
        v_mov_b32 v{T+13}, 1.0
        s_waitcnt lgkmcnt(0)
        ''')
        X = 64
        for s in range(3):
            for i in range(4):
                G0 = ACC(s, i); U0 = ACC(3+s, i)
                for h2 in range(2):
                    for (A0, k) in ((G0, s), (U0, 3+s)):
                        r = A0 + 2*h2
                        pk(a, 'v_pk_mul_f32', r, vr(r,2), vr(RS(i),2), mods='op_sel_hi:[1,0]')
                        pk(a, 'v_pk_fma_f32', r, vr(MR(i),2), vr(CS(k)+2*h2,2), vr(r,2), mods='op_sel_hi:[0,1,1] neg_lo:[1,0,0] neg_hi:[1,0,0]')
                XX = X + 4*((s*4+i) % 4)
                for h2 in range(2): pk(a, 'v_pk_mul_f32', XX+2*h2, vr(G0+2*h2,2), vr(G0+2*h2,2))
                for h2 in range(2): pk(a, 'v_pk_fma_f32', XX+2*h2, vr(XX+2*h2,2), vr(T+10,2), vr(T+8,2))
                for h2 in range(2): pk(a, 'v_pk_mul_f32', XX+2*h2, vr(XX+2*h2,2), vr(G0+2*h2,2))
                for r4 in range(4): a(f'v_exp_f32 v{XX+r4}, v{XX+r4}')
                for h2 in range(2): pk(a, 'v_pk_mul_f32', G0+2*h2, vr(G0+2*h2,2), vr(U0+2*h2,2))
                for h2 in range(2): pk(a, 'v_pk_add_f32', XX+2*h2, vr(XX+2*h2,2), vr(T+12,2))
                for r4 in range(4): a(f'v_rcp_f32 v{XX+r4}, v{XX+r4}')
                for h2 in range(2): pk(a, 'v_pk_mul_f32', G0+2*h2, vr(G0+2*h2,2), vr(XX+2*h2,2))
                a(f'v_cvt_pk_bf16_f32 v{G0}, v{G0}, v{G0+1}')
                a(f'v_cvt_pk_bf16_f32 v{G0+1}, v{G0+2}, v{G0+3}')
                a(f's_add_u32 s36, s60, {s*512 + i*96*512}')
                a(f'buffer_store_dwordx2 {vr(G0,2)}, v{EAo}, s[{sO}:{sO+3}], s36 offen sc1')
        P.stamp(9)
        a('s_waitcnt vmcnt(0)')
    n640_compute('wd', [10, 11, 12])
    a('s_waitcnt vmcnt(0)')
    a('s_barrier')
    P.finish()
    a.label(f'{L}_end')
    a('s_endpgm')
    a.fix_hazards()
    for lab, br in (('sl1', 'sl1'), ('sl2', 'sl2'), ('p4_loop', 'p4_loop'), ('wd_loop', 'wd_loop')):
        bad = a.check_loop(f'{L}_{lab}', f's_cbranch_scc1 {L}_{br}')
        assert not bad, bad
    return kernel_wrap(name, a.text(), vgpr=208, sgpr=102), 163840
```

```python
from common import *

def gen_m3(name='m2_kernel', prof=False, exp=''):
    a = Asm(); L = name
    P = Prof(a, prof, L, base=72, n=15, fin=(13, 14))
    vlane = 1
    s_w, s_ep, s_qb, s_i, s_m64, s_ct = 22, 23, 24, 25, 26, 27
    s_fast = 3
    sFL = 28
    WSL, WSH = 20, 21
    fuid = [0]
    def set_flag(arr, phase_c, vt=2, glob=False):
        fuid[0] += 1; u = fuid[0]
        a(f'''
        s_add_u32 s34, s{s_ep}, {(EPOCH_INC * phase_c) & 0xffffffff}
        v_mov_b32 v{vt}, s34
        s_lshl_b32 s35, s2, 7
        s_add_u32 s35, s35, {arr*256*128}
        v_mov_b32 v{vt+1}, s35
        v_cmp_eq_u32 vcc, 0, v{vlane}
        s_and_saveexec_b64 s[36:37], vcc
        ''')
        if glob:
            a(f'buffer_store_dword v{vt}, v{vt+1}, s[{sFL}:{sFL+3}], 0 offen sc1')
        else:
            a(f'''
            s_cmp_eq_u32 s{s_fast}, 0
            s_cbranch_scc1 {L}_sf{u}
            buffer_store_dword v{vt}, v{vt+1}, s[{sFL}:{sFL+3}], 0 offen
            s_branch {L}_sg{u}
            {L}_sf{u}:
            buffer_store_dword v{vt}, v{vt+1}, s[{sFL}:{sFL+3}], 0 offen sc1
            {L}_sg{u}:
            ''')
        a('s_mov_b64 exec, s[36:37]')
    def both(fn, tag):
        a(f'''
        s_cmp_eq_u32 s{s_fast}, 0
        s_cbranch_scc1 {L}_b0{tag}
        ''')
        fn('')
        a(f's_branch {L}_b1{tag}')
        a.label(f'{L}_b0{tag}')
        fn(' sc1')
        a.label(f'{L}_b1{tag}')
    def lstamp(idx):
        if not prof: return
        a(f'''
        s_memtime s[92:93]
        s_load_dwordx2 s[94:95], s[0:1], 64
        s_waitcnt lgkmcnt(0)
        s_sub_u32 s92, s92, s72
        s_lshl_b32 s93, s2, 6
        s_add_u32 s93, s93, {0x50000 + 4*idx}
        v_mov_b32 v200, s93
        v_mov_b32 v201, s92
        s_cmp_lg_u32 s{s_w}, 0
        s_cbranch_scc1 {L}_ls{idx}
        global_store_dword v200, v201, s[94:95]
        {L}_ls{idx}:
        ''')
    uid = [0]
    def poll(vaddrs, phase_c, vt=4):
        uid[0] += 1; u = uid[0]
        a(f's_add_u32 s34, s{s_ep}, {(EPOCH_INC * phase_c) & 0xffffffff}')
        a('s_mov_b32 s38, 0')
        a.label(f'{L}_poll{u}')
        for i, v in enumerate(vaddrs):
            a(f'buffer_load_dword v{vt+i}, v{v}, s[{sFL}:{sFL+3}], 0 offen sc1')
        a('s_waitcnt vmcnt(0)')
        for i in range(len(vaddrs)):
            a(f'v_cmp_ne_u32 vcc, s34, v{vt+i}' if i == 0 else f'v_cmp_ne_u32 s[36:37], s34, v{vt+i}')
            if i: a('s_or_b64 vcc, vcc, s[36:37]')
        a(f'''
        s_cbranch_vccz {L}_pollok{u}
        s_add_u32 s38, s38, 1
        s_cmp_ge_u32 s38, 100000
        s_cbranch_scc1 {L}_pollok{u}
        s_sleep 1
        s_branch {L}_poll{u}
        {L}_pollok{u}:
        ''')
    P.stamp(0)
    a(f'''
    s_cmp_ge_u32 s2, 256
    s_cbranch_scc1 {L}_end
    s_load_dwordx16 s[4:19], s[0:1], 0
    s_load_dwordx2 s[20:21], s[0:1], 72
    v_and_b32 v{vlane}, 63, v0
    v_lshrrev_b32 v2, 6, v0
    v_readfirstlane_b32 s{s_w}, v2
    s_and_b32 s{s_qb}, s2, 7
    s_lshr_b32 s{s_i}, s2, 3
    s_and_b32 s34, s{s_i}, 3
    s_lshl_b32 s{s_m64}, s{s_qb}, 2
    s_add_u32 s{s_m64}, s{s_m64}, s34
    s_lshr_b32 s{s_ct}, s{s_i}, 2
    s_getreg_b32 s39, hwreg(HW_REG_XCC_ID)
    s_waitcnt lgkmcnt(0)
    s_add_u32 s34, s{WSL}, {WS_EPOCH}
    s_addc_u32 s35, s{WSH}, 0
    s_load_dword s{s_ep}, s[34:35], 0
    ''')
    srd(a, sFL, WSL, WSH, WS_FLAG2, 5*256*128)
    a(f'''
    s_mov_b32 s71, s39
    s_cmp_lg_u32 s{s_w}, 0
    s_cbranch_scc1 {L}_noxt
    s_waitcnt lgkmcnt(0)
    s_add_u32 s34, s{s_ep}, {(EPOCH_INC * 5) & 0xffffffff}
    v_mov_b32 v2, s34
    v_mov_b32 v3, s39
    s_lshl_b32 s35, s2, 7
    s_add_u32 s35, s35, {4*256*128}
    v_mov_b32 v4, s35
    v_cmp_eq_u32 vcc, 0, v{vlane}
    s_and_saveexec_b64 s[36:37], vcc
    buffer_store_dwordx2 v[2:3], v4, s[{sFL}:{sFL+3}], 0 offen sc1
    s_mov_b64 exec, s[36:37]
    {L}_noxt:
    s_mov_b32 s{s_fast}, s39
    ''')
    sQ, sO = 40, 44
    s_it = 48; s_vmask = 50; s_t = 52
    s_lo = [54, 55, 56]; s_go = [57, 58, 59]; s_ch = 60
    aK1, aK2, aV = 2, 3, 4
    EA = [5, 6, 7]
    Q1 = 8; Q2 = 12
    K1 = [16, 24]; K2 = [20, 28]
    V1 = [32, 40]; V2 = [36, 44]
    S_ = [48, 64]; PP = [80, 88]; O_ = 96
    T = 112
    RD = 128
    RA = 144; FA = 148; FD = 152
    vD = 156
    XA = 157; XD = 158
    srd(a, sQ, WSL, WSH, WS_Q, 3*32*81920)
    a(f'''
    s_and_b32 s34, s2, 7
    s_lshl_b32 s34, s34, 2
    s_bfe_u32 s35, s2, 0x20003
    s_add_u32 s61, s34, s35              ; head
    s_mul_i32 s36, s61, 81920
    v_lshlrev_b32 v{vD}, 4, v{vlane}
    ''')
    for i in range(3):
        a(f'''
        s_add_u32 s34, s{s_w}, {8*i}
        s_lshl_b32 s35, s34, 10
        s_add_u32 s37, s35, {81920 - 10240}
        s_add_u32 s38, s35, {WS_K - WS_Q}
        s_add_u32 s39, s35, {WS_V - WS_Q - 10240}
        s_cmp_lt_u32 s34, 10
        s_cselect_b32 s{s_lo[i]}, s35, s37
        s_cselect_b32 s{s_go[i]}, s38, s39
        s_add_u32 s{s_go[i]}, s{s_go[i]}, s36
        s_cmp_lt_u32 s34, 20
        s_cselect_b32 s{s_lo[i]}, s{s_lo[i]}, 0x28000
        s_cselect_b32 s{s_go[i]}, s{s_go[i]}, 0x70000000
        ''')
    a(f'''
    s_lshr_b32 s34, s2, 5
    s_lshl_b32 s34, s34, 3
    s_add_u32 s34, s34, s{s_w}
    s_mul_i32 s35, s34, 1280
    s_add_u32 s35, s35, s36
    v_and_b32 v{T}, 31, v{vlane}
    v_lshrrev_b32 v{T+1}, 5, v{vlane}
    v_mov_b32 v{aK1}, v{vD}
    v_lshlrev_b32 v{aK2}, 3, v{T}
    v_add_u32 v{aK2}, 1024, v{aK2}
    buffer_load_dwordx4 {vr(Q1,4)}, v{aK1}, s[{sQ}:{sQ+3}], s35 offen
    buffer_load_dwordx2 {vr(Q2,2)}, v{aK2}, s[{sQ}:{sQ+3}], s35 offen
    s_mov_b32 s{s_ch}, 0
    ''')
    def dma_piece(i):
        return [f's_add_u32 m0, s{s_lo[i]}, s{s_ch}', f's_add_u32 s39, s{s_go[i]}, s{s_ch}',
                f'buffer_load_dwordx4 v{vD}, s[{sQ}:{sQ+3}], s39 offen lds']
    def ch_adv():
        return [f's_add_u32 s{s_ch}, s{s_ch}, 10240', f's_cmp_ge_u32 s{s_ch}, 81920', f's_cselect_b32 s{s_ch}, 0x40000000, s{s_ch}']
    for c in range(3):
        for i in range(3):
            for o in dma_piece(i): a(o)
        for o in ch_adv(): a(o)
    srd(a, sO, WSL, WSH, WS_O, S*D*2)
    a(f'''
    v_mul_u32_u24 v{aV}, 320, v{T+1}
    v_lshl_add_u32 v{aV}, v{T}, 4, v{aV}
    v_add_u32 v{aV}, 81920, v{aV}
    v_cmp_gt_u32 s[{s_vmask}:{s_vmask+1}], 20, v{T}
    v_cmp_eq_u32 vcc, 20, v{T}
    v_mov_b32 v{T+2}, 0
    v_mov_b32 v{T+3}, 0x3f803f80
    v_cndmask_b32 v{T+4}, v{T+2}, v{T+3}, vcc
    v_cmp_eq_u32 vcc, 24, v{T}
    v_cndmask_b32 v{T+4}, v{T+4}, v{T+3}, vcc
    ''')
    for b in range(2):
        for r in range(4):
            a(f'v_mov_b32 v{V1[b]+r}, v{T+4}')
            a(f'v_mov_b32 v{V2[b]+r}, v{T+4}')
    a(f'''
    v_cmp_eq_u32 vcc, 0, v{T+1}
    v_mov_b32 v{T+3}, 0x00003f80
    v_cndmask_b32 v{T+5}, v{T+2}, v{T+3}, vcc
    ''')
    for b in range(2):
        a(f'v_mov_b32 v{K2[b]+2}, v{T+5}')
        a(f'v_mov_b32 v{K2[b]+3}, 0')
    a(f'v_mov_b32 v{Q2+2}, 0')
    a(f'v_mov_b32 v{Q2+3}, 0')
    for r in range(16): a(f'v_mov_b32 v{O_+r}, 0')
    for r in range(8): a(f'v_mov_b32 v{PP[1]+r}, 0')
    a(f'''
    s_mul_i32 s37, s61, 5
    v_and_b32 v{T+6}, 15, v{T}
    v_lshrrev_b32 v{T+7}, 4, v{T}
    v_mul_u32_u24 v{T+7}, 20480, v{T+7}
    v_lshl_add_u32 v{T+7}, v{T+6}, 3, v{T+7}
    s_mul_i32 s{s_t}, s34, 40960
    ''')
    for G in range(3):
        a(f'''
        v_add_u32 v{T+8}, s37, v{T+1}
        v_add_u32 v{T+8}, {2*G}, v{T+8}
        v_lshl_add_u32 v{EA[G]}, v{T+8}, 7, v{T+7}
        ''')
    s_rb = [62, 64, 66, 68]
    s_dst = [32, 33, 49, 53]
    def rt_setup4(k, ug):
        a(f'''
        s_mul_i32 s35, s{ug}, 4370
        s_lshr_b32 s35, s35, 20                ; ft = u/240
        s_mul_i32 s36, s35, 240
        s_sub_u32 s34, s{ug}, s36              ; r
        s_mul_i32 s36, s34, 2731
        s_lshr_b32 s36, s36, 16                ; st = r/24
        s_mul_i32 s37, s36, 24
        s_sub_u32 s34, s34, s37                ; r2
        s_mul_i32 s37, s34, 10923
        s_lshr_b32 s37, s37, 16                ; sub = r2/6
        s_mul_i32 s38, s37, 6
        s_sub_u32 s34, s34, s38                ; i
        s_lshl_b32 s34, s34, 6
        v_add_u32 v{T+8}, s34, v{vlane}
        v_mul_u32_u24 v{T+9}, 10923, v{T+8}
        v_lshrrev_b32 v{T+9}, 16, v{T+9}
        v_mul_u32_u24 v{T+10}, 6, v{T+9}
        v_sub_u32 v{T+10}, v{T+8}, v{T+10}
        v_mul_u32_u24 v{T+9}, 3072, v{T+9}
        v_lshl_add_u32 v{T+9}, v{T+10}, 4, v{T+9}
        s_mul_i32 s36, s36, {64*3072}
        s_mul_i32 s35, s35, 192
        s_add_u32 s36, s36, s35
        s_and_b32 s35, s37, 1
        s_mul_i32 s35, s35, 96
        s_add_u32 s36, s36, s35
        v_add_u32 v{RA+k}, s36, v{T+9}
        s_cmp_lt_u32 s37, 2
        s_cselect_b32 s{s_rb[k]}, s12, s14
        s_cselect_b32 s{s_rb[k]+1}, s13, s15
        s_add_u32 s{s_dst[k]}, s{ug}, 800
        s_lshl_b32 s{s_dst[k]}, s{s_dst[k]}, 10
        s_cmp_lt_u32 s{ug}, 3840
        s_cselect_b32 s{s_dst[k]}, s{s_dst[k]}, 0x70000000
        ''')
    def rt_setupN(k, kind, ug):
        K = 640 if kind == 3 else 1536
        NS_ = K // 128
        per_ct = NS_ * 20
        magic = (1 << 20) // per_ct + 1
        a(f'''
        s_mul_i32 s35, s{ug}, {magic}
        s_lshr_b32 s35, s35, 20                ; ct
        s_mul_i32 s36, s35, {per_ct}
        s_sub_u32 s34, s{ug}, s36              ; r
        s_mul_i32 s36, s34, 3277
        s_lshr_b32 s36, s36, 16                ; st
        s_mul_i32 s37, s36, 20
        s_sub_u32 s34, s34, s37                ; r2
        s_cmp_ge_u32 s34, 10
        s_cselect_b32 s37, 1, 0                ; kh
        s_mul_i32 s38, s37, 10
        s_sub_u32 s34, s34, s38                ; i2
        s_lshl_b32 s34, s34, 6
        v_add_u32 v{T+8}, s34, v{vlane}
        v_mul_u32_u24 v{T+9}, 6554, v{T+8}
        v_lshrrev_b32 v{T+9}, 16, v{T+9}
        v_mul_u32_u24 v{T+10}, 10, v{T+9}
        v_sub_u32 v{T+10}, v{T+8}, v{T+10}
        v_mul_u32_u24 v{T+9}, 1280, v{T+9}
        v_lshl_add_u32 v{T+9}, v{T+10}, 4, v{T+9}
        s_mul_i32 s37, s37, {K//2}
        s_lshl_b32 s36, s36, 6
        s_add_u32 s36, s36, s37
        s_mul_i32 s36, s36, 1280
        s_mul_i32 s35, s35, 160
        s_add_u32 s36, s36, s35
        v_add_u32 v{RA+k}, s36, v{T+9}
        s_add_u32 s{s_dst[k]}, s{ug}, {0 if kind == 3 else 4640}
        s_lshl_b32 s{s_dst[k]}, s{s_dst[k]}, 10
        s_cmp_lt_u32 s{ug}, {800 if kind == 3 else 1920}
        s_cselect_b32 s{s_dst[k]}, s{s_dst[k]}, 0x70000000
        ''')
    a(f'''
    s_lshl_b32 s39, s2, 3
    s_add_u32 s39, s39, s{s_w}              ; gw
    s_add_u32 s31, s39, 2048
    ''') if False else None
    def retile_setup_all():
        a(f'''
        s_lshl_b32 s70, s2, 3
        s_add_u32 s70, s70, s{s_w}              ; gw
        s_add_u32 s71, s70, 2048
        ''')
        rt_setup4(0, 70); rt_setup4(1, 71); rt_setupN(2, 5, 70); rt_setupN(3, 3, 70)
    def retile_loads():
        srcs = [(s_rb[0], s_rb[0]+1, 640*1536*2), (s_rb[1], s_rb[1]+1, 640*1536*2), (16, 17, 1536*640*2), (8, 9, 640*640*2)]
        for k, (lo, hi, sz) in enumerate(srcs):
            a(f'''
            s_mov_b32 s68, s{lo}
            s_mov_b32 s69, s{hi}
            s_mov_b32 s70, {sz}
            s_mov_b32 s71, 0x00020000
            buffer_load_dwordx4 {vr(RD+4*k,4)}, v{RA+k}, s[68:71], 0 offen
            ''')
    def retile_store():
        srd(a, 68, WSL, WSH, WS_WT3, 6560*1024)
        for k in range(4):
            a(f'buffer_store_dwordx4 {vr(RD+4*k,4)}, v{vD}, s[68:71], s{s_dst[k]} offen sc1')
    retile_setup_all()
    a(f'''
    v_and_b32 v{XA}, 31, v{vlane}
    v_lshlrev_b32 v{XA}, 3, v{XA}
    v_add_u32 v{XA}, s{s_qb}, v{XA}
    v_lshlrev_b32 v{XA}, 7, v{XA}
    v_add_u32 v{XA}, {4*256*128}, v{XA}
    v_lshlrev_b32 v{FA}, 7, v{vlane}
    v_add_u32 v{FA+1}, 8192, v{FA}
    v_add_u32 v{FA+2}, 16384, v{FA}
    v_add_u32 v{FA+3}, 24576, v{FA}
    v_cmp_eq_u32 vcc, 1, v{T+1}
    v_mov_b32 v{T+8}, 0x7f000000
    v_cndmask_b32 v{EA[2]}, v{EA[2]}, v{T+8}, vcc
    s_waitcnt vmcnt(9)
    v_cndmask_b32 v{Q2}, v{Q2}, v{T+2}, vcc
    v_cndmask_b32 v{Q2+1}, v{Q2+1}, v{T+2}, vcc
    s_waitcnt vmcnt(6)
    ''')
    P.stamp(1)
    a('s_barrier')
    def QK(sb, kb):
        return [f'v_mfma_f32_32x32x16_bf16 {vr(S_[sb],16)}, {vr(K1[kb],4)}, {vr(Q1,4)}, 0',
                f'v_mfma_f32_32x32x16_bf16 {vr(S_[sb],16)}, {vr(K2[kb],4)}, {vr(Q2,4)}, {vr(S_[sb],16)}']
    def PV(pb, vb):
        return [f'v_mfma_f32_32x32x16_bf16 {vr(O_,16)}, {vr(V1[vb],4)}, {vr(PP[pb],4)}, {vr(O_,16)}',
                f'v_mfma_f32_32x32x16_bf16 {vr(O_,16)}, {vr(V2[vb],4)}, {vr(PP[pb]+4,4)}, {vr(O_,16)}']
    def rdK(kb, off):
        return [f'ds_read_b128 {vr(K1[kb],4)}, v{aK1} offset:{off}', f'ds_read_b64 {vr(K2[kb],2)}, v{aK2} offset:{off}']
    def rdV(vb, off):
        return [f's_mov_b64 exec, s[{s_vmask}:{s_vmask+1}]',
                f'ds_read_b128 {vr(V1[vb],4)}, v{aV} offset:{off}', f'ds_read_b128 {vr(V2[vb],4)}, v{aV} offset:{off+640}',
                's_mov_b64 exec, -1']
    def setm(mreg):
        a(f'''
        v_sub_f32 v{mreg}, 0, v{mreg}
        v_cvt_pk_bf16_f32 v{mreg}, v{mreg}, 0
        v_and_b32 v{mreg}, 0xffff, v{mreg}
        v_cmp_gt_u32 vcc, 32, v{vlane}
        v_cndmask_b32 v{Q2+2}, 0, v{mreg}, vcc
        ''')
    def maxtree(sb, dst, init=False):
        s = S_[sb]
        if init:
            a(f'v_max3_f32 v{dst}, v{s}, v{s+1}, v{s+2}'); rest = list(range(3, 16))
        else: rest = list(range(0, 16))
        while rest:
            if len(rest) >= 2:
                a(f'v_max3_f32 v{dst}, v{dst}, v{s+rest[0]}, v{s+rest[1]}'); rest = rest[2:]
            else:
                a(f'v_max_f32 v{dst}, v{dst}, v{s+rest[0]}'); rest = rest[1:]
    def crosshalf_max(dst, tmp):
        a(f'''
        v_mov_b32 v{tmp}, v{dst}
        v_permlane32_swap_b32 v{tmp}, v{dst}
        v_max_f32 v{dst}, v{dst}, v{tmp}
        ''')
    for o in rdK(0, 0) + rdK(1, 1280): a(o)
    a('s_waitcnt lgkmcnt(2)')
    for o in QK(0, 0): a(o)
    maxtree(0, T, init=True)
    crosshalf_max(T, T+2)
    setm(T)
    for o in QK(0, 0): a(o)
    puid = [0]
    def phase(sb, mf_pv, mf_qk, reads, extra=()):
        s = S_[sb]; p = PP[sb]
        if 'prio' in exp.split():
            puid[0] += 1; u = puid[0]
            a(f'''
            s_cmp_lt_u32 s{s_w}, 4
            s_cbranch_scc1 {L}_pa{u}
            s_setprio {1 if sb == 0 else 0}
            s_branch {L}_pb{u}
            {L}_pa{u}:
            s_setprio {0 if sb == 0 else 1}
            {L}_pb{u}:
            ''')
        ev = []
        for i in range(16):
            ev.append(f'v_exp_f32 v{s+i}, v{s+i}')
            if i >= 3 and i % 2 == 1:
                k = (i - 3) // 2
                ev.append(f'v_cvt_pk_bf16_f32 v{p+k}, v{s+2*k}, v{s+2*k+1}')
        ev.append(f'v_cvt_pk_bf16_f32 v{p+7}, v{s+14}, v{s+15}')
        pos = {1: mf_qk[0], 7: mf_qk[1], 13: mf_pv[0], 19: mf_pv[1]}
        for i, e in enumerate(ev):
            if i in pos: a(pos[i])
            if i == 3:
                for o in reads: a(o)
            if i == 10:
                for o in extra: a(o)
            a(e)
    vm = Vm(a)
    for c in (1, 2):
        for _ in range(3): vm.issue(('kv', c))
    def adv():
        a(f'''
        v_add_u32 v{aK1}, 10240, v{aK1}
        v_add_u32 v{aK2}, 10240, v{aK2}
        v_add_u32 v{aV}, 10240, v{aV}
        ''')
    issue_at = {(c, 0): c + 3 for c in range(5)}
    bar_for = {c: ('kv', c + 1) for c in range(7)}
    for c in range(8):
        for j in range(4):
            ex0 = []; ex1 = []
            if j == 3 and c in bar_for:
                vm.wait(bar_for[c])
                a('s_barrier')
                if c == 4:
                    a(f'''
                    s_cmp_lg_u32 s{s_w}, 0
                    s_cbranch_scc1 {L}_nofw
                    s_waitcnt lgkmcnt(0)
                    ''')
                    set_flag(0, 1, vt=T+8, glob=True)
                    a.label(f'{L}_nofw')
            if (c, j) in issue_at:
                cc = issue_at[(c, j)]
                ex0 = dma_piece(0) + dma_piece(1); ex1 = dma_piece(2) + ch_adv()
                for _ in range(3): vm.issue(('kv', cc))
            a('s_waitcnt lgkmcnt(0)')
            o = j * 2560
            phase(0, PV(1, 1), QK(1, 1), rdK(0, o+2560) + rdV(0, o), ex0)
            a('s_waitcnt lgkmcnt(0)')
            phase(1, PV(0, 0), QK(0, 0), rdK(1, o+3840) + rdV(1, o+1280), ex1)
            if 'nort' in exp: continue
            if c == 2 and j == 0:
                retile_loads()
                for k in range(4): vm.issue('rtl')
            if c == 3 and j == 1:
                vm.wait('rtl'); retile_store()
                for _ in range(4): vm.issue('rts')
            if c == 4 and j == 2:
                vm.wait('rts')
            if c == 6 and j == 3:
                for i in range(4):
                    a(f'buffer_load_dword v{FD+i}, v{FA+i}, s[{sFL}:{sFL+3}], 0 offen sc1'); vm.issue('fw')
                a(f'buffer_load_dwordx2 {vr(XD,2)}, v{XA}, s[{sFL}:{sFL+3}], 0 offen sc1'); vm.issue('fw')
        adv()
    a('s_waitcnt lgkmcnt(0)')
    for o in PV(1, 1): a(o)
    P.stamp(2)
    if prof:
        a(f'''
        s_load_dwordx2 s[62:63], s[0:1], 64
        s_waitcnt lgkmcnt(0)
        s_sub_u32 s34, s76, s72
        s_lshl_b32 s35, s2, 3
        s_add_u32 s35, s35, s{s_w}
        s_lshl_b32 s35, s35, 2
        s_add_u32 s35, s35, 0x40000
        v_mov_b32 v{T+8}, s35
        v_mov_b32 v{T+9}, s34
        global_store_dword v{T+8}, v{T+9}, s[62:63]
        ''')
    a(f'''
    s_waitcnt vmcnt(0) lgkmcnt(0)
    s_add_u32 s34, s{s_ep}, {(EPOCH_INC * 5) & 0xffffffff}
    s_mov_b32 s38, 0
    {L}_xt:
    v_cmp_ne_u32 vcc, s34, v{XD}
    s_cbranch_vccz {L}_xtok
    s_add_u32 s38, s38, 1
    s_cmp_ge_u32 s38, 100000
    s_cbranch_scc1 {L}_xtok
    buffer_load_dwordx2 {vr(XD,2)}, v{XA}, s[{sFL}:{sFL+3}], 0 offen sc1
    s_waitcnt vmcnt(0)
    s_branch {L}_xt
    {L}_xtok:
    v_cmp_ne_u32 s[36:37], s{s_fast}, v{XD+1}
    s_or_b64 vcc, vcc, s[36:37]
    s_cmp_eq_u64 vcc, 0
    s_cselect_b32 s{s_fast}, {0 if 'slowmode' in exp else 1}, 0
    ''')
    a(f'''
    v_cmp_gt_u32 s[34:35], 32, v{vlane}
    v_cndmask_b32 v{T}, v{O_+8}, v{O_+12}, s[34:35]
    v_mov_b32 v{T+5}, {fbits(2.0**30)}
    v_cmp_nle_f32 vcc, v{T}, v{T+5}
    s_cbranch_vccnz {L}_slow
    ''')
    a.label(f'{L}_store')
    a(f'v_rcp_f32 v{T}, v{T}')
    for G in range(3):
        o = O_ + 4*G
        for h2 in range(2):
            pk(a, 'v_pk_mul_f32', o+2*h2, vr(o+2*h2,2), vr(T,2), mods='op_sel_hi:[1,0]')
        a(f'v_cvt_pk_bf16_f32 v{o}, v{o}, v{o+1}')
        a(f'v_cvt_pk_bf16_f32 v{o+1}, v{o+2}, v{o+3}')
    def ost(sc):
        for G in range(3):
            o = O_ + 4*G
            a(f'buffer_store_dwordx2 {vr(o,2)}, v{EA[G]}, s[{sO}:{sO+3}], s{s_t} offen{sc}')
    ost(' sc1')
    a(f's_branch {L}_p2fin')
    a.label(f'{L}_slow')
    a(f'''
    v_lshlrev_b32 v{aK1}, 4, v{vlane}
    v_and_b32 v{T+4}, 31, v{vlane}
    v_lshlrev_b32 v{aK2}, 3, v{T+4}
    v_add_u32 v{aK2}, 1024, v{aK2}
    v_mov_b32 v{Q2+2}, 0
    v_mov_b32 v{T}, 0xff800000
    s_mov_b32 s{s_it}, 0
    {L}_sl1:
    ''')
    for o in rdK(0, 0): a(o)
    a('s_waitcnt lgkmcnt(0)')
    for o in QK(0, 0): a(o)
    maxtree(0, T)
    a(f'''
    v_add_u32 v{aK1}, 1280, v{aK1}
    v_add_u32 v{aK2}, 1280, v{aK2}
    s_add_u32 s{s_it}, s{s_it}, 1
    s_cmp_lt_u32 s{s_it}, 64
    s_cbranch_scc1 {L}_sl1
    ''')
    crosshalf_max(T, T+2)
    setm(T)
    a(f'''
    v_lshlrev_b32 v{aK1}, 4, v{vlane}
    v_lshlrev_b32 v{aK2}, 3, v{T+4}
    v_add_u32 v{aK2}, 1024, v{aK2}
    v_lshrrev_b32 v{T+5}, 5, v{vlane}
    v_mul_u32_u24 v{aV}, 320, v{T+5}
    v_lshl_add_u32 v{aV}, v{T+4}, 4, v{aV}
    v_add_u32 v{aV}, 81920, v{aV}
    s_mov_b32 s{s_it}, 0
    ''')
    for r in range(16): a(f'v_mov_b32 v{O_+r}, 0')
    a.label(f'{L}_sl2')
    for o in rdK(0, 0) + rdV(0, 0): a(o)
    a('s_waitcnt lgkmcnt(0)')
    for o in QK(0, 0): a(o)
    for i in range(16): a(f'v_exp_f32 v{S_[0]+i}, v{S_[0]+i}')
    for k in range(8): a(f'v_cvt_pk_bf16_f32 v{PP[0]+k}, v{S_[0]+2*k}, v{S_[0]+2*k+1}')
    for o in PV(0, 0): a(o)
    a(f'''
    v_add_u32 v{aK1}, 1280, v{aK1}
    v_add_u32 v{aK2}, 1280, v{aK2}
    v_add_u32 v{aV}, 1280, v{aV}
    s_add_u32 s{s_it}, s{s_it}, 1
    s_cmp_lt_u32 s{s_it}, 64
    s_cbranch_scc1 {L}_sl2
    s_nop 15
    v_cmp_gt_u32 s[34:35], 32, v{vlane}
    v_cndmask_b32 v{T}, v{O_+8}, v{O_+12}, s[34:35]
    s_branch {L}_store
    ''')
    a.label(f'{L}_p2fin')
    a(f'''
    s_waitcnt vmcnt(0) lgkmcnt(0)
    s_add_u32 s34, s{s_ep}, {EPOCH_INC & 0xffffffff}
    v_cmp_ne_u32 vcc, s34, v{FD}
    v_cmp_ne_u32 s[36:37], s34, v{FD+1}
    s_or_b64 vcc, vcc, s[36:37]
    v_cmp_ne_u32 s[36:37], s34, v{FD+2}
    s_or_b64 vcc, vcc, s[36:37]
    v_cmp_ne_u32 s[36:37], s34, v{FD+3}
    s_or_b64 vcc, vcc, s[36:37]
    s_cbranch_vccz {L}_fwok
    ''')
    poll([FA, FA+1, FA+2, FA+3], 1, vt=FD)
    a.label(f'{L}_fwok')
    a('s_setprio 0')
    a(f'''
    s_cmp_lt_u32 s{s_w}, 4
    s_cbranch_scc1 {L}_comp
    s_sub_u32 s{s_w}, s{s_w}, 4
    s_barrier
    ''')
    def n640_loader(mode, arr_self, phase_self, poll_setup, phase_dep):
        K = 640 if mode == 'wo' else 1536
        KT = K // 16
        NST = K // 128
        ASL = 16384; BSL = 20480; BBASE = 65536
        sA, sB = 40, 44
        a(f'''
        s_cmp_lg_u32 s{s_w}, 0
        s_cbranch_scc1 {L}_{mode}_nf
        ''')
        set_flag(arr_self, phase_self, vt=20, glob=(mode == 'wo'))
        a.label(f'{L}_{mode}_nf')
        srd(a, sA, WSL, WSH, WS_O if mode == 'wo' else WS_ACT, S*K*2)
        srd(a, sB, WSL, WSH, WS_WT3 if mode == 'wo' else WS_WT5, 8*NST*20480)
        a(f'''
        s_lshr_b32 s50, s{s_w}, 1            ; kh
        s_and_b32 s51, s{s_w}, 1             ; mh
        s_lshl_b32 s34, s{s_m64}, 2
        s_lshl_b32 s35, s51, 1
        s_add_u32 s34, s34, s35              ; mt16
        s_mul_i32 s34, s34, {KT*512}
        s_mul_i32 s35, s50, {KT//2*512}
        s_add_u32 s34, s34, s35
        v_lshlrev_b32 v2, 4, v{vlane}
        v_add_u32 v13, s34, v2
        v_add_u32 v14, {KT*512 - 2048}, v13
        s_lshl_b32 s52, s50, 13
        s_lshl_b32 s53, s51, 12
        s_add_u32 s52, s52, s53              ; m0A base
        s_mul_i32 s53, s50, 10240
        s_mul_i32 s33, s51, 5120
        s_add_u32 s53, s53, s33
        s_mul_i32 s54, s{s_ct}, {NST*20480}
        s_add_u32 s54, s54, s53
        s_add_u32 s53, s53, {BBASE}          ; m0B base
        ''')
        def body(role0):
            vm = Vm(a)
            def dA(st):
                slot = st % 4
                a(f's_add_u32 m0, s52, {slot*ASL}')
                a(f's_movk_i32 s34, {st*2048}')
                for i in range(4):
                    a(f'buffer_load_dwordx4 v{13 + i//2}, s[{sA}:{sA+3}], s34 offen offset:{i*1024} lds'); vm.issue(st)
            def dB(st):
                slot = st % 4
                a(f's_add_u32 m0, s53, {slot*BSL}')
                a(f's_add_u32 s35, s54, {st*20480}')
                for i in range(4):
                    a(f'buffer_load_dwordx4 v2, s[{sB}:{sB+3}], s35 offen offset:{i*1024} lds'); vm.issue(st)
                a(f's_add_u32 m0, s53, {slot*BSL + 4096}')
                a(f's_add_u32 s35, s35, 4096')
                a(f'buffer_load_dwordx4 v2, s[{sB}:{sB+3}], s35 offen lds'); vm.issue(st)
            if role0:
                lstamp(lb + 0)
                poll_setup()
                lstamp(lb + 2)
                a('s_barrier')
                dA(0); dB(0); dA(1); dB(1)
            else:
                for st in range(4): dB(st)
                a('s_barrier')
                dA(0); dA(1)
            for st in range(NST):
                vm.wait(st)
                a('s_barrier')
                if st == 0:
                    if role0: dA(2); dB(2); dA(3); dB(3)
                    else: dA(2); dA(3)
                elif st + 3 < NST:
                    dB(st + 3); dA(st + 3)
            a('s_barrier')
            a('s_barrier')
        lb = 0 if mode == 'wo' else 10
        a(f'''
        s_cmp_lg_u32 s{s_w}, 0
        s_cbranch_scc1 {L}_{mode}_oth
        ''')
        body(True)
        a(f's_branch {L}_{mode}_done')
        a.label(f'{L}_{mode}_oth')
        body(False)
        a.label(f'{L}_{mode}_done')
    def poll_p3():
        a(f'''
        v_and_b32 v8, 31, v{vlane}
        s_lshl_b32 s35, s{s_qb}, 5
        v_add_u32 v8, s35, v8
        v_lshlrev_b32 v8, 7, v8
        v_add_u32 v8, {1*256*128}, v8
        ''')
        poll([8], 2, vt=24)
    n640_loader('wo', 1, 2, poll_p3, 2)
    ASL = 16384; BSL = 24576; BBASE = 65536
    STAT4 = 0
    sA, sG, sS, sC = 40, 44, 48, 52
    a(f'''
    s_cmp_lg_u32 s{s_w}, 0
    s_cbranch_scc1 {L}_p4_nf
    ''')
    set_flag(2, 3, vt=20)
    a.label(f'{L}_p4_nf')
    srd(a, sA, WSL, WSH, WS_H, S*D*2)
    srd(a, sG, WSL, WSH, WS_WT4, 16*10*24576)
    srd(a, sS, WSL, WSH, WS_ST, S*16*8)
    srd(a, sC, WSL, WSH, WS_CS2, 5*3072*4)
    a(f'''
    s_lshl_b32 s56, s{s_qb}, 1
    s_and_b32 s34, s{s_i}, 1
    s_add_u32 s56, s56, s34              ; mt128
    s_lshr_b32 s57, s{s_i}, 1            ; ft
    s_lshl_b32 s34, s56, 3
    s_lshl_b32 s35, s{s_w}, 1
    s_add_u32 s34, s34, s35              ; mt16
    s_mul_i32 s34, s34, 20480
    v_lshlrev_b32 v2, 4, v{vlane}
    v_add_u32 v14, s34, v2
    v_add_u32 v15, {20480 - 2048}, v14
    s_lshl_b32 s58, s{s_w}, 12           ; m0A base
    s_mul_i32 s59, s{s_w}, 6144
    s_mul_i32 s60, s57, {10*24576}
    s_add_u32 s60, s60, s59
    s_add_u32 s59, s59, {BBASE}          ; m0B base
    ''')
    a(f'''
    s_lshl_b32 s34, s56, 7
    s_lshl_b32 s35, s{s_w}, 6
    s_add_u32 s34, s34, s35
    v_add_u32 v16, s34, v{vlane}
    v_lshlrev_b32 v16, 7, v16
    v_cmp_gt_u32 vcc, 24, v{vlane}
    v_lshlrev_b32 v17, 4, v{vlane}
    v_add_u32 v18, {1536*4 - 24*16}, v17
    v_cndmask_b32 v17, v18, v17, vcc
    s_mul_i32 s34, s57, 384
    v_add_u32 v17, s34, v17
    v_cmp_gt_u32 vcc, 48, v{vlane}
    v_mov_b32 v18, 0x7f000000
    v_cndmask_b32 v17, v18, v17, vcc
    ''')
    def p4body(role):
        vm = Vm(a)
        def dA4(st):
            slot = st % 4
            a(f's_add_u32 m0, s58, {slot*ASL}')
            a(f's_movk_i32 s34, {st*2048}')
            for i in range(4):
                a(f'buffer_load_dwordx4 v{14 + i//2}, s[{sA}:{sA+3}], s34 offen offset:{i*1024} lds'); vm.issue(st)
        def dB4(st):
            slot = st % 4
            a(f's_add_u32 m0, s59, {slot*BSL}')
            a(f's_add_u32 s35, s60, {st*24576}')
            for i in range(4):
                a(f'buffer_load_dwordx4 v2, s[{sG}:{sG+3}], s35 offen offset:{i*1024} lds'); vm.issue(st)
            a(f's_add_u32 m0, s59, {slot*BSL + 4096}')
            a(f's_add_u32 s35, s35, 4096')
            for i in range(2):
                a(f'buffer_load_dwordx4 v2, s[{sG}:{sG+3}], s35 offen offset:{i*1024} lds'); vm.issue(st)
        if role == 0:
            lstamp(5)
            a(f'''
            v_bfe_u32 v8, v{vlane}, 1, 3          ; c
            v_lshlrev_b32 v8, 2, v8
            v_and_b32 v9, 1, v{vlane}
            v_add_u32 v8, v8, v9
            s_and_b32 s34, s{s_i}, 1
            s_lshl_b32 s34, s34, 1
            v_add_u32 v8, s34, v8                 ; i' = 4c + 2b + e
            v_lshlrev_b32 v8, 3, v8
            v_add_u32 v8, s{s_qb}, v8
            v_lshlrev_b32 v8, 7, v8
            v_add_u32 v8, {2*256*128}, v8
            ''')
            poll([8], 3, vt=24)
            lstamp(7)
            a('s_barrier')
            dA4(0); dB4(0); dA4(1); dB4(1)
        else:
            if role == 2:
                for i in range(5):
                    a(f's_mov_b32 s34, {i*3072*4}')
                    a(f'buffer_load_dwordx4 {vr(32+4*i,4)}, v17, s[{sC}:{sC+3}], s34 offen'); vm.issue('side')
            for st in range(4): dB4(st)
            a('s_barrier')
            dA4(0); dA4(1)
        for st in range(10):
            vm.wait(st)
            if st == 9:
                a('s_waitcnt vmcnt(0)')
                if role < 2:
                    for i in range(1, 16):
                        pk(a, 'v_pk_add_f32', 32, vr(32,2), vr(32+2*i,2))
                    a(f'''
                    v_mul_f32 v32, {fbits(1.0/640)}, v32
                    v_mul_f32 v33, {fbits(1.0/640)}, v33
                    v_fma_f32 v33, -v32, v32, v33
                    v_max_f32 v33, 0, v33
                    v_add_f32 v33, {fbits(1e-5)}, v33
                    v_rsq_f32 v33, v33
                    v_mul_f32 v32, v32, v33
                    s_lshl_b32 s34, s{s_w}, 8
                    v_lshlrev_b32 v16, 2, v{vlane}
                    v_add_u32 v16, s34, v16
                    s_barrier
                    ds_write_b32 v16, v33 offset:{STAT4}
                    ds_write_b32 v16, v32 offset:{STAT4+512}
                    s_waitcnt lgkmcnt(0)
                    s_barrier
                    ''')
                elif role == 2:
                    for i in range(1, 5):
                        pk(a, 'v_pk_add_f32', 32, vr(32,2), vr(32+4*i,2))
                        pk(a, 'v_pk_add_f32', 34, vr(34,2), vr(34+4*i,2))
                    a(f'''
                    v_lshlrev_b32 v16, 4, v{vlane}
                    v_cmp_gt_u32 vcc, 48, v{vlane}
                    s_barrier
                    s_and_saveexec_b64 s[34:35], vcc
                    ds_write_b128 v16, v[32:35] offset:{STAT4+1024}
                    s_waitcnt lgkmcnt(0)
                    s_mov_b64 exec, s[34:35]
                    s_barrier
                    ''')
                else:
                    a('s_barrier'); a('s_barrier')
            else:
                a('s_barrier')
                if st == 0:
                    if role == 0: dA4(2); dB4(2); dA4(3); dB4(3)
                    else: dA4(2); dA4(3)
                elif st + 3 < 10:
                    dB4(st + 3); dA4(st + 3)
                if st == 2 and role < 2:
                    for i in range(8):
                        a(f'buffer_load_dwordx4 {vr(32+4*i,4)}, v16, s[{sS}:{sS+3}], 0 offen offset:{16*i} sc1'); vm.issue('side')
    for role in range(4):
        if role < 3:
            a(f'''
            s_cmp_lg_u32 s{s_w}, {role}
            s_cbranch_scc1 {L}_p4r{role+1}
            ''')
        p4body(role)
        if role < 3:
            a(f's_branch {L}_p4done')
            a.label(f'{L}_p4r{role+1}')
    a.label(f'{L}_p4done')
    a('s_barrier')
    def poll_p5():
        a(f'''
        v_and_b32 v8, 15, v{vlane}            ; f
        v_lshlrev_b32 v8, 1, v8
        s_bfe_u32 s34, s{s_i}, 0x10001        ; (i>>1)&1
        v_add_u32 v8, s34, v8                 ; i' = 2f + b'
        v_lshlrev_b32 v8, 3, v8
        v_add_u32 v8, s{s_qb}, v8
        v_lshlrev_b32 v8, 7, v8
        v_add_u32 v8, {3*256*128}, v8
        ''')
        poll([8], 4, vt=24)
    n640_loader('wd', 3, 4, poll_p5, 4)
    a(f's_branch {L}_end')
    a.label(f'{L}_comp')
    def n640_compute(mode, stamps):
        K = 640 if mode == 'wo' else 1536
        NST = K // 128
        ASL = 16384; BSL = 20480; BBASE = 65536
        EXB = BBASE + ((NST - 2) % 4) * BSL
        sR, sO, sS = 40, 44, 48
        s_mh, s_kh, s_it, s_dA, s_dB = 52, 53, 54, 55, 56
        aX, aW1, aW2 = 2, 3, 4
        XF = lambda b, i: 8 + b*8 + i*4
        WF = lambda b, s: 24 + b*20 + s*4
        ACC = lambda s, i: 64 + (s*2 + i)*4
        RES = lambda j, i: 104 + (j*2 + i)*2
        EAo = 116; EAr = 117; ESt = 118; aEw = 119; aEr = 120
        T = 124
        M = mode
        a(f'''
        s_lshr_b32 s{s_mh}, s{s_w}, 1
        s_and_b32 s{s_kh}, s{s_w}, 1
        v_lshlrev_b32 v{aX}, 3, v{vlane}
        s_lshl_b32 s34, s{s_kh}, 13
        s_lshl_b32 s35, s{s_mh}, 12
        s_add_u32 s34, s34, s35
        v_add_u32 v{aX}, s34, v{aX}
        v_lshrrev_b32 v{T}, 4, v{vlane}        ; g
        v_bfe_u32 v{T+1}, v{vlane}, 2, 2       ; rr
        v_and_b32 v{T+2}, 3, v{vlane}          ; cq
        v_lshl_add_u32 v{T+3}, v{T}, 2, v{T+1}
        v_mul_u32_u24 v{T+3}, 160, v{T+3}
        v_lshl_add_u32 v{T+3}, v{T+2}, 3, v{T+3}
        s_mul_i32 s34, s{s_kh}, {10240 + 96}
        s_add_u32 s34, s34, {BBASE}
        v_add_u32 v{aW1}, s34, v{T+3}
        s_mul_i32 s34, s{s_kh}, {10240 - 64}
        s_add_u32 s34, s34, {BBASE}
        v_add_u32 v{aW2}, s34, v{T+3}
        v_and_b32 v{T+4}, 15, v{vlane}         ; m
        s_lshl_b32 s34, s{s_m64}, 6
        s_lshl_b32 s35, s{s_mh}, 5
        s_add_u32 s34, s34, s35
        v_add_u32 v{T+5}, s34, v{T+4}
        v_mul_u32_u24 v{T+6}, 1280, v{T+5}
        v_lshl_add_u32 v{T+6}, v{T}, 3, v{T+6}
        s_mul_i32 s35, s{s_ct}, 160
        v_add_u32 v{T+6}, s35, v{T+6}
        v_lshlrev_b32 v{T+7}, 3, v{vlane}
        s_lshr_b32 s35, s34, 4
        s_mul_i32 s35, s35, 20480
        v_add_u32 v{T+7}, s35, v{T+7}
        s_mul_i32 s36, s{s_ct}, 5
        ''')
        if mode == 'wo':
            srd(a, sR, 4, 5, 0, S*D*2)
            srd(a, sO, WSL, WSH, WS_H, S*D*2)
            srd(a, sS, WSL, WSH, WS_ST, S*16*8)
            a(f'v_mov_b32 v{EAr}, v{T+6}'); a(f'v_mov_b32 v{EAo}, v{T+7}')
        else:
            srd(a, sR, WSL, WSH, WS_H, S*D*2)
            srd(a, sO, 18, 19, 0, S*D*2)
            a(f'v_mov_b32 v{EAr}, v{T+7}'); a(f'v_mov_b32 v{EAo}, v{T+6}')
        s_nat = 60; s_fm = 64
        for j in range(3):
            a(f'''
            s_mul_i32 s34, s{s_kh}, 3
            s_add_u32 s34, s34, {j}
            s_lshl_b32 s{s_nat+j}, s34, 5
            s_add_u32 s34, s34, s36
            s_lshl_b32 s{s_fm+j}, s34, 9
            ''')
        s_res = s_nat if mode == 'wo' else s_fm
        s_out = s_fm if mode == 'wo' else s_nat
        a(f'''
        s_mul_i32 s34, s{s_mh}, 10240
        s_add_u32 s34, s34, {EXB}
        s_cmp_eq_u32 s{s_kh}, 0
        s_movk_i32 s33, 4096
        s_cselect_b32 s35, {(-2048) & 0xffffffff}, s33
        s_cselect_b32 s33, 4096, 0
        s_add_u32 s35, s35, s34
        s_add_u32 s33, s33, s34
        v_lshlrev_b32 v{T}, 4, v{vlane}
        v_add_u32 v{aEw}, s35, v{T}
        v_add_u32 v{aEr}, s33, v{T}
        v_lshlrev_b32 v{ESt}, 7, v{T+5}
        s_lshl_b32 s34, s{s_ct}, 4
        s_lshl_b32 s35, s{s_kh}, 3
        s_add_u32 s34, s34, s35
        v_add_u32 v{ESt}, s34, v{ESt}
        s_mov_b32 s{s_it}, 0
        s_mov_b32 s68, {ASL}
        s_mov_b32 s69, {(-3*ASL) & 0xffffffff}
        s_mov_b32 s70, {BSL}
        s_mov_b32 s71, {(-3*BSL) & 0xffffffff}
        ''')
        for r in range(40): a(f'v_mov_b32 v{64+r}, 0')
        a('s_waitcnt vmcnt(0)')
        a('s_barrier')
        if stamps: P.stamp(stamps[0])
        for j in range(3):
            for i in range(2):
                a(f's_add_u32 s34, s{s_res+j}, {i*20480}')
                a(f'buffer_load_dwordx2 {vr(RES(j,i),2)}, v{EAr}, s[{sR}:{sR+3}], s34 offen' + (' sc1' if mode != 'wo' else ''))
        a('s_barrier')
        def rd(t, b):
            o = []
            for i in range(2):
                for e in range(2):
                    o.append(f'ds_read_b64 {vr(XF(b,i)+2*e,2)}, v{aX} offset:{(i*2+t)*1024 + e*512}')
            for s in range(5):
                for e in range(2):
                    o.append(f'ds_read_b64_tr_b16 {vr(WF(b,s)+2*e,2)}, v{aW1 if s < 2 else aW2} offset:{(32*t+16*e)*160 + s*32}')
            return o
        a('s_barrier')
        if stamps: P.stamp(stamps[1])
        for o in rd(0, 0): a(o)
        UNR = NST if mode == 'wo' else 2
        if UNR < NST: a.label(f'{L}_{M}_loop')
        for u in range(UNR):
          for t in range(2):
            b = t
            if t == 1:
                a('s_waitcnt lgkmcnt(0)')
                last = (UNR == NST and u == NST - 1)
                if UNR == NST:
                    if not last: a('s_barrier')
                    nxt = (u + 1) % 4
                    dA = ASL if nxt else -3*ASL; dB = BSL if nxt else -3*BSL
                    a(f'v_add_u32 v{aX}, {dA & 0xffffffff}, v{aX}')
                    a(f'v_add_u32 v{aW1}, {dB & 0xffffffff}, v{aW1}')
                    a(f'v_add_u32 v{aW2}, {dB & 0xffffffff}, v{aW2}')
                else:
                    if u == UNR - 1:
                        a(f'''
                        s_cmp_eq_u32 s{s_it}, {NST//UNR - 1}
                        s_cbranch_scc1 {L}_{M}_nob
                        s_barrier
                        {L}_{M}_nob:
                        s_bitcmp1_b32 s{s_it}, 0
                        s_cselect_b32 s{s_dA}, s69, s68
                        s_cselect_b32 s{s_dB}, s71, s70
                        v_add_u32 v{aX}, s{s_dA}, v{aX}
                        v_add_u32 v{aW1}, s{s_dB}, v{aW1}
                        v_add_u32 v{aW2}, s{s_dB}, v{aW2}
                        ''')
                    else:
                        a('s_barrier')
                        a(f'v_add_u32 v{aX}, {ASL}, v{aX}')
                        a(f'v_add_u32 v{aW1}, {BSL}, v{aW1}')
                        a(f'v_add_u32 v{aW2}, {BSL}, v{aW2}')
            R = rd(1, 1) if t == 0 else rd(0, 0)
            n = 0
            for s in range(5):
                for i in range(2):
                    if t == 0 and i == 0:
                        rem_old = 14 - (4 + 2*(s+1))
                        a(f's_waitcnt lgkmcnt({min(15, rem_old + min(14, 2*n))})')
                    a(f'v_mfma_f32_16x16x32_bf16 {vr(ACC(s,i),4)}, {vr(WF(b,s),4)}, {vr(XF(b,i),4)}, {vr(ACC(s,i),4)}')
                    for o in R[2*n:2*n+2]: a(o)
                    n += 1
        if UNR < NST:
            a(f'''
            s_add_u32 s{s_it}, s{s_it}, 1
            s_cmp_lt_u32 s{s_it}, {NST//UNR}
            s_cbranch_scc1 {L}_{M}_loop
            ''')
        if stamps: P.stamp(stamps[2])
        a(f'''
        s_cmp_eq_u32 s{s_kh}, 0
        s_cbranch_scc1 {L}_{M}_skipw
        ''')
        for i in range(2): a(f'ds_write_b128 v{aEw}, {vr(ACC(2,i),4)} offset:{i*1024}')
        a.label(f'{L}_{M}_skipw')
        for s in (3, 4):
            for i in range(2): a(f'ds_write_b128 v{aEw}, {vr(ACC(s,i),4)} offset:{(s-2)*2048 + i*1024}')
        a('s_waitcnt lgkmcnt(0)')
        a('s_barrier')
        EXR = lambda j, i: 8 + (j*2+i)*4
        for j in range(3):
            for i in range(2): a(f'ds_read_b128 {vr(EXR(j,i),4)}, v{aEr} offset:{j*2048 + i*1024}')
        a('s_waitcnt vmcnt(0) lgkmcnt(0)')
        def epi(sc, tg):
            SUM = [32, 34]; SQ = [36, 38]
            if mode == 'wo':
                for r in range(32, 40): a(f'v_mov_b32 v{r}, 0')
            for j in range(3):
                if j == 2:
                    a(f's_cmp_lg_u32 s{s_kh}, 0')
                    a(f's_cbranch_scc1 {L}_{M}_skip2{tg}')
                for i in range(2):
                    A0 = ACC(j, i); E0 = EXR(j, i); R0 = RES(j, i)
                    pk(a, 'v_pk_add_f32', A0, vr(A0,2), vr(E0,2))
                    pk(a, 'v_pk_add_f32', A0+2, vr(A0+2,2), vr(E0+2,2))
                    a(f'v_lshlrev_b32 v{E0}, 16, v{R0}')
                    a(f'v_and_b32 v{E0+1}, 0xffff0000, v{R0}')
                    a(f'v_lshlrev_b32 v{E0+2}, 16, v{R0+1}')
                    a(f'v_and_b32 v{E0+3}, 0xffff0000, v{R0+1}')
                    pk(a, 'v_pk_add_f32', A0, vr(A0,2), vr(E0,2))
                    pk(a, 'v_pk_add_f32', A0+2, vr(A0+2,2), vr(E0+2,2))
                    a(f'v_cvt_pk_bf16_f32 v{A0}, v{A0}, v{A0+1}')
                    a(f'v_cvt_pk_bf16_f32 v{A0+1}, v{A0+2}, v{A0+3}')
                    a(f's_add_u32 s34, s{s_out+j}, {i*20480}')
                    a(f'buffer_store_dwordx2 {vr(A0,2)}, v{EAo}, s[{sO}:{sO+3}], s34 offen' + sc)
                    if mode == 'wo':
                        a(f'v_lshlrev_b32 v{E0}, 16, v{A0}')
                        a(f'v_and_b32 v{E0+1}, 0xffff0000, v{A0}')
                        a(f'v_lshlrev_b32 v{E0+2}, 16, v{A0+1}')
                        a(f'v_and_b32 v{E0+3}, 0xffff0000, v{A0+1}')
                        pk(a, 'v_pk_add_f32', SUM[i], vr(SUM[i],2), vr(E0,2))
                        pk(a, 'v_pk_fma_f32', SQ[i], vr(E0,2), vr(E0,2), vr(SQ[i],2))
                        pk(a, 'v_pk_add_f32', SUM[i], vr(SUM[i],2), vr(E0+2,2))
                        pk(a, 'v_pk_fma_f32', SQ[i], vr(E0+2,2), vr(E0+2,2), vr(SQ[i],2))
            a.label(f'{L}_{M}_skip2{tg}')
            if mode == 'wo':
                for i in range(2):
                    a(f'v_add_f32 v{40+2*i}, v{SUM[i]}, v{SUM[i]+1}')
                    a(f'v_add_f32 v{41+2*i}, v{SQ[i]}, v{SQ[i]+1}')
                for r in range(4): a(f'v_mov_b32 v{44+r}, v{40+r}')
                for r in range(4): a(f'v_permlane16_swap_b32 v{44+r}, v{40+r}')
                for r in range(4): a(f'v_add_f32 v{40+r}, v{40+r}, v{44+r}')
                for r in range(4): a(f'v_mov_b32 v{44+r}, v{40+r}')
                for r in range(4): a(f'v_permlane32_swap_b32 v{44+r}, v{40+r}')
                for r in range(4): a(f'v_add_f32 v{40+r}, v{40+r}, v{44+r}')
                a(f'''
                v_cmp_gt_u32 vcc, 16, v{vlane}
                s_and_saveexec_b64 s[34:35], vcc
                buffer_store_dwordx2 v[40:41], v{ESt}, s[{sS}:{sS+3}], 0 offen{sc}
                buffer_store_dwordx2 v[42:43], v{ESt}, s[{sS}:{sS+3}], 0 offen offset:2048{sc}
                s_mov_b64 exec, s[34:35]
                ''')
        if mode == 'wo': both(lambda sc: epi(sc, 'f' if sc == '' else 's'), 'h')
        else: epi('', 'x')
    n640_compute('wo', [3, 4, 5])
    if True:
        ASL = 16384; BSL = 24576; BBASE = 65536; STAT4 = 0
        sO = 40
        s_wm, s_wn, s_it, s_dA, s_dB = 52, 53, 54, 55, 56
        aX, aW = 2, 3
        XF = lambda b, i: 8 + b*16 + i*4
        WF = lambda b, k: 40 + b*24 + k*4
        ACC = lambda k, i: 88 + (k*4 + i)*4
        aRS, aCS, EAo = 184, 185, 186
        T = 188
        a('s_waitcnt vmcnt(0)')
        a(f'''
        s_lshr_b32 s{s_wm}, s{s_w}, 1
        s_and_b32 s{s_wn}, s{s_w}, 1
        v_lshlrev_b32 v{aX}, 3, v{vlane}
        v_mov_b32 v{EAo}, v{aX}
        s_lshl_b32 s34, s{s_wm}, 13
        v_add_u32 v{aX}, s34, v{aX}
        v_lshrrev_b32 v{T}, 4, v{vlane}
        v_bfe_u32 v{T+1}, v{vlane}, 2, 2
        v_and_b32 v{T+2}, 3, v{vlane}
        v_lshl_add_u32 v{T+3}, v{T}, 2, v{T+1}
        v_mul_u32_u24 v{aW}, 96, v{T+3}
        v_lshl_add_u32 v{aW}, v{T+2}, 3, v{aW}
        s_mul_i32 s34, s{s_wn}, 6144
        s_add_u32 s34, s34, {BBASE}
        v_add_u32 v{aW}, s34, v{aW}
        ''')
        a('s_barrier')
        P.stamp(6)
        a(f'''
        v_and_b32 v{T+4}, 15, v{vlane}
        s_lshl_b32 s34, s{s_wm}, 6
        v_add_u32 v{T+4}, s34, v{T+4}
        v_lshlrev_b32 v{aRS}, 2, v{T+4}
        s_mul_i32 s34, s{s_wn}, 192
        v_lshlrev_b32 v{aCS}, 4, v{T}
        v_add_u32 v{aCS}, s34, v{aCS}
        s_lshl_b32 s57, s{s_qb}, 1
        s_and_b32 s34, s{s_i}, 1
        s_add_u32 s57, s57, s34
        s_lshr_b32 s58, s{s_i}, 1
        s_lshl_b32 s36, s57, 3
        s_lshl_b32 s37, s{s_wm}, 2
        s_add_u32 s36, s36, s37
        s_mul_i32 s36, s36, {96*512}
        s_mul_i32 s37, s58, 6
        s_mul_i32 s35, s{s_wn}, 3
        s_add_u32 s37, s37, s35
        s_lshl_b32 s37, s37, 9
        s_add_u32 s60, s36, s37
        s_mov_b32 s{s_it}, 0
        s_mov_b32 s68, {ASL}
        s_mov_b32 s69, {(-3*ASL) & 0xffffffff}
        s_mov_b32 s70, {BSL}
        s_mov_b32 s71, {(-3*BSL) & 0xffffffff}
        ''')
        srd(a, sO, WSL, WSH, WS_ACT, S*F*2)
        for r in range(96): a(f'v_mov_b32 v{88+r}, 0')
        a('s_barrier')
        def rd(t, b):
            o = []
            for i in range(4):
                for e in range(2):
                    o.append(f'ds_read_b64 {vr(XF(b,i)+2*e,2)}, v{aX} offset:{(i*2+t)*1024 + e*512}')
            for k in range(6):
                mat, s = divmod(k, 3)
                for e in range(2):
                    o.append(f'ds_read_b64_tr_b16 {vr(WF(b,k)+2*e,2)}, v{aW} offset:{mat*12288 + (32*t+16*e)*96 + s*32}')
            return o
        a('s_barrier')
        P.stamp(7)
        for o in rd(0, 0): a(o)
        a.label(f'{L}_p4_loop')
        for u in range(2):
          for t in range(2):
            b = t
            if t == 1:
                a('s_waitcnt lgkmcnt(0)')
                a('s_barrier')
                if u == 0:
                    a(f'v_add_u32 v{aX}, {ASL}, v{aX}')
                    a(f'v_add_u32 v{aW}, {BSL}, v{aW}')
                else:
                    a(f'''
                    s_bitcmp1_b32 s{s_it}, 0
                    s_cselect_b32 s{s_dA}, s69, s68
                    s_cselect_b32 s{s_dB}, s71, s70
                    v_add_u32 v{aX}, s{s_dA}, v{aX}
                    v_add_u32 v{aW}, s{s_dB}, v{aW}
                    ''')
            R = rd(1, 1) if t == 0 else rd(0, 0)
            R = R[8:10] + R[0:8] + R[10:]
            n = 0
            for k in range(6):
                for i in range(4):
                    if t == 0 and (i == 0 or k == 0):
                        need_old = (2 + 2*(i+1)) if k == 0 else (10 + 2*k)
                        rem_old = 20 - need_old
                        a(f's_waitcnt lgkmcnt({min(15, rem_old + min(20, n))})')
                    a(f'v_mfma_f32_16x16x32_bf16 {vr(ACC(k,i),4)}, {vr(WF(b,k),4)}, {vr(XF(b,i),4)}, {vr(ACC(k,i),4)}')
                    if n < 20: a(R[n])
                    n += 1
        a(f'''
        s_add_u32 s{s_it}, s{s_it}, 1
        s_cmp_lt_u32 s{s_it}, 5
        s_cbranch_scc1 {L}_p4_loop
        ''')
        P.stamp(8)
        RS = lambda i: 8 + 4*i; MR = lambda i: 10 + 4*i
        CS = lambda k: 40 + 4*k
        a('s_waitcnt lgkmcnt(0)')
        for i in range(4):
            a(f'ds_read_b32 v{RS(i)}, v{aRS} offset:{STAT4 + i*64}')
            a(f'ds_read_b32 v{MR(i)}, v{aRS} offset:{STAT4 + 512 + i*64}')
        for k in range(6):
            mat, s = divmod(k, 3)
            a(f'ds_read_b128 {vr(CS(k),4)}, v{aCS} offset:{STAT4 + 1024 + mat*384 + s*64}')
        C0 = 2*0.7978845608028654*1.4426950408889634
        C1 = C0*0.044715
        a(f'''
        v_mov_b32 v{T+8}, {fbits(-C0)}
        v_mov_b32 v{T+9}, {fbits(-C0)}
        v_mov_b32 v{T+10}, {fbits(-C1)}
        v_mov_b32 v{T+11}, {fbits(-C1)}
        v_mov_b32 v{T+12}, 1.0
        v_mov_b32 v{T+13}, 1.0
        s_waitcnt lgkmcnt(0)
        ''')
        def epi4(sc):
            X = 64
            for s in range(3):
                for i in range(4):
                    G0 = ACC(s, i); U0 = ACC(3+s, i)
                    for h2 in range(2):
                        for (A0, k) in ((G0, s), (U0, 3+s)):
                            r = A0 + 2*h2
                            pk(a, 'v_pk_mul_f32', r, vr(r,2), vr(RS(i),2), mods='op_sel_hi:[1,0]')
                            pk(a, 'v_pk_fma_f32', r, vr(MR(i),2), vr(CS(k)+2*h2,2), vr(r,2), mods='op_sel_hi:[0,1,1] neg_lo:[1,0,0] neg_hi:[1,0,0]')
                    XX = X + 4*((s*4+i) % 4)
                    for h2 in range(2): pk(a, 'v_pk_mul_f32', XX+2*h2, vr(G0+2*h2,2), vr(G0+2*h2,2))
                    for h2 in range(2): pk(a, 'v_pk_fma_f32', XX+2*h2, vr(XX+2*h2,2), vr(T+10,2), vr(T+8,2))
                    for h2 in range(2): pk(a, 'v_pk_mul_f32', XX+2*h2, vr(XX+2*h2,2), vr(G0+2*h2,2))
                    for r4 in range(4): a(f'v_exp_f32 v{XX+r4}, v{XX+r4}')
                    for h2 in range(2): pk(a, 'v_pk_mul_f32', G0+2*h2, vr(G0+2*h2,2), vr(U0+2*h2,2))
                    for h2 in range(2): pk(a, 'v_pk_add_f32', XX+2*h2, vr(XX+2*h2,2), vr(T+12,2))
                    for r4 in range(4): a(f'v_rcp_f32 v{XX+r4}, v{XX+r4}')
                    for h2 in range(2): pk(a, 'v_pk_mul_f32', G0+2*h2, vr(G0+2*h2,2), vr(XX+2*h2,2))
                    a(f'v_cvt_pk_bf16_f32 v{G0}, v{G0}, v{G0+1}')
                    a(f'v_cvt_pk_bf16_f32 v{G0+1}, v{G0+2}, v{G0+3}')
                    a(f's_add_u32 s36, s60, {s*512 + i*96*512}')
                    a(f'buffer_store_dwordx2 {vr(G0,2)}, v{EAo}, s[{sO}:{sO+3}], s36 offen' + sc)
        both(epi4, 'a')
        P.stamp(9)
        a('s_waitcnt vmcnt(0)')
    n640_compute('wd', [10, 11, 12])
    a('s_waitcnt vmcnt(0)')
    a('s_barrier')
    P.finish()
    a.label(f'{L}_end')
    a('s_endpgm')
    a.fix_hazards()
    for lab, br in (('sl1', 'sl1'), ('sl2', 'sl2'), ('p4_loop', 'p4_loop'), ('wd_loop', 'wd_loop')):
        bad = a.check_loop(f'{L}_{lab}', f's_cbranch_scc1 {L}_{br}')
        assert not bad, bad
    return kernel_wrap(name, a.text(), vgpr=208, sgpr=102), 163840
```

```python
from common import *
import math
QSCALE = math.log2(math.e) / math.sqrt(20.0)

def gen_k1(name='k1_kernel', prof=False, exp=''):
    a = Asm()
    L = name
    P = Prof(a, prof, L)
    NST = 10
    sX, sW, sO = 12, 16, 20
    s_mt, s_nt, s_w, s_wm, s_wn = 24, 25, 26, 27, 28
    s_m0A, s_m0B, s_offA, s_offB = 29, 30, 31, 32
    s_ks = 33
    s_scale = 52
    s_t0, s_t1 = 53, 54
    s_it = 55
    s_ep = 58
    sS = 60
    sF = 44
    sP = 48
    vlane = 1
    voffA = [16, 17, 18, 19]; voffB = [20, 21, 22, 23]
    aB = [28, 29]
    XF = lambda b, i: 36 + b * 8 + i * 4
    WF = lambda b, j: 52 + b * 8 + j * 4
    ACC = lambda p, q: 68 + (p * 2 + q) * 16
    EA = 140; EL = 148; TB = 160
    STAT = 131072
    P.stamp(0); rt_begin(a, prof)
    a(f'''
    s_cmp_ge_u32 s2, 240
    s_cbranch_scc1 {L}_end
    s_load_dwordx4 s[4:7], s[0:1], 0
    s_load_dwordx2 s[10:11], s[0:1], 72
    v_and_b32 v{vlane}, 63, v0
    v_lshrrev_b32 v2, 6, v0
    v_readfirstlane_b32 s{s_w}, v2
    s_and_b32 s35, s2, 7             ; x8
    s_lshr_b32 s36, s2, 3            ; i 0..29
    s_lshr_b32 s37, s35, 2
    s_mul_i32 s37, s37, 30
    s_add_u32 s37, s37, s36          ; t 0..59
    s_lshr_b32 s{s_nt}, s37, 2
    s_and_b32 s{s_mt}, s37, 3
    s_and_b32 s35, s35, 3
    s_lshl_b32 s35, s35, 2
    s_add_u32 s{s_mt}, s{s_mt}, s35
    s_add_u32 s{s_ks}, s{s_mt}, s{s_nt}      ; rho = (mt+nt) % 10   (max 29)
    s_cmp_ge_u32 s{s_ks}, 20
    s_cselect_b32 s34, 20, 0
    s_sub_u32 s{s_ks}, s{s_ks}, s34
    s_cmp_ge_u32 s{s_ks}, 10
    s_cselect_b32 s34, 10, 0
    s_sub_u32 s{s_ks}, s{s_ks}, s34
    s_cmp_lt_u32 s{s_w}, 4
    s_cbranch_scc1 {L}_comp
    ''')
    a(f'''
    s_sub_u32 s{s_w}, s{s_w}, 4
    v_lshrrev_b32 v3, 4, v{vlane}    ; lane>>4
    v_and_b32 v4, 7, v{vlane}
    v_xor_b32 v5, v4, v3
    v_xor_b32 v6, 4, v5
    v_lshrrev_b32 v2, 3, v{vlane}
    s_lshl_b32 s{s_m0A}, s{s_w}, 12
    s_add_u32 s{s_m0B}, s{s_m0A}, 65536
    s_lshl_b32 s34, s{s_mt}, 7
    s_lshl_b32 s35, s{s_w}, 5
    s_add_u32 s34, s34, s35
    v_add_u32 v2, s34, v2            ; row (i=0)
    s_movk_i32 s35, 1280
    v_mul_lo_u32 v2, v2, s35         ; row*1280
    v_lshl_add_u32 v5, v5, 4, v2
    v_lshl_add_u32 v6, v6, 4, v2
    ''')
    for i in range(4):
        a(f'v_add_u32 v{voffA[i]}, {i*(10240-1024)}, v{5 if i%2==0 else 6}')
    a(f'''
    s_lshl_b32 s34, s{s_w}, 4
    v_add_u32 v2, s34, v3            ; krow (i=0)
    s_movk_i32 s35, 3840
    v_mul_lo_u32 v2, v2, s35
    v_and_b32 v4, 15, v{vlane}
    v_lshlrev_b32 v5, 2, v3
    v_xor_b32 v4, v4, v5
    v_lshl_add_u32 v2, v4, 4, v2
    s_lshl_b32 s34, s{s_nt}, 8
    v_add_u32 v2, s34, v2
    ''')
    for i in range(4):
        a(f'v_add_u32 v{voffB[i]}, {i*(4*3840-1024)}, v2')
    a('s_waitcnt lgkmcnt(0)')
    srd(a, sX, 4, 5, 0, S*D*2)
    srd(a, sW, 6, 7, 0, D*1920*2)
    gray = [0, 1, 3, 2]
    def loader(role):
        R = f'{L}_{role}'
        vm = Vm(a)
        def dma_stage(pos):
            slot = gray[pos % 4]
            a(f's_lshl_b32 s{s_offA}, s{s_ks}, 7')
            a(f's_mul_i32 s{s_offB}, s{s_ks}, {64*3840}')
            a(f's_add_u32 m0, s{s_m0A}, {slot*16384}')
            a(f's_add_u32 s{s_ks}, s{s_ks}, 1')
            for i in range(4):
                a(f'buffer_load_dwordx4 v{voffA[i]}, s[{sX}:{sX+3}], s{s_offA} offen offset:{i*1024} lds'); vm.issue(pos)
            a(f's_add_u32 m0, s{s_m0B}, {slot*16384}')
            a(f's_cmp_eq_u32 s{s_ks}, 10')
            a(f's_cselect_b32 s{s_ks}, 0, s{s_ks}')
            for i in range(4):
                a(f'buffer_load_dwordx4 v{voffB[i]}, s[{sW}:{sW+3}], s{s_offB} offen offset:{i*1024} lds'); vm.issue(pos)
        dma_stage(0); dma_stage(1)
        if role in ('A0', 'F'):
            srd(a, sF, 10, 11, WS_FLAG, 512*128 + 4096)
            a(f'''
            s_add_u32 s34, s10, {WS_EPOCH}
            s_addc_u32 s35, s11, 0
            s_load_dword s{s_ep}, s[34:35], 0
            ''')
        if role == 'A0':
            srd(a, sP, 10, 11, WS_RP, 10*2048*12)
            a(f'''
            v_subrev_u32 v8, 10, v{vlane}
            s_lshl_b32 s34, s{s_mt}, 4
            v_add_u32 v9, s34, v{vlane}
            v_lshlrev_b32 v10, 4, v8
            v_add_u32 v10, s{s_nt}, v10
            v_cmp_gt_u32 vcc, 10, v{vlane}
            v_cndmask_b32 v9, v10, v9, vcc
            v_cmp_gt_u32 vcc, 20, v{vlane}
            s_lshl_b32 s34, s{s_mt}, 4
            v_mov_b32 v10, s34
            v_cndmask_b32 v9, v10, v9, vcc
            v_lshlrev_b32 v30, 7, v9
            v_lshlrev_b32 v31, 4, v{vlane}
            s_lshl_b32 s34, s{s_mt}, 10
            v_add_u32 v31, s34, v31
            v_lshlrev_b32 v32, 3, v{vlane}
            s_lshl_b32 s34, s{s_nt}, 9
            s_add_u32 s34, s34, {10*2048*8}
            v_add_u32 v32, s34, v32
            v_lshlrev_b32 v33, 3, v{vlane}
            v_add_u32 v33, {STAT}, v33
            ''')
        for st in range(NST):
            vm.wait(st)
            if st == 9 and role == 'A0':
                a(f'''
                s_barrier
                s_waitcnt vmcnt(0)
                ''')
                for k in range(1, 10):
                    pk(a, 'v_pk_add_f32', 64, vr(64,2), vr(64+4*k,2))
                    pk(a, 'v_pk_add_f32', 66, vr(66,2), vr(66+4*k,2))
                    pk(a, 'v_pk_add_f32', 104, vr(104,2), vr(104+2*k,2))
                for (sv, qv) in ((64, 65), (66, 67)):
                    a(f'''
                    v_mul_f32 v{sv}, {fbits(1.0/640)}, v{sv}
                    v_mul_f32 v{qv}, {fbits(1.0/640)}, v{qv}
                    v_fma_f32 v{qv}, -v{sv}, v{sv}, v{qv}
                    v_max_f32 v{qv}, 0, v{qv}
                    v_add_f32 v{qv}, {fbits(1e-5)}, v{qv}
                    v_rsq_f32 v{qv}, v{qv}
                    v_mul_f32 v{sv}, v{sv}, v{qv}
                    ''')
                a(f'''
                v_mov_b32 v68, v65
                v_mov_b32 v69, v67
                v_mov_b32 v70, v64
                v_mov_b32 v71, v66
                ds_write_b64 v33, v[68:69]
                ds_write_b64 v33, v[70:71] offset:512
                ds_write_b64 v33, v[104:105] offset:1024
                s_waitcnt lgkmcnt(0)
                s_barrier
                s_cmp_lg_u32 s2, 0
                s_cbranch_scc1 {L}_end
                v_and_b32 v20, 15, v{vlane}
                v_cmp_eq_u32 vcc, 15, v20
                v_subrev_u32 v21, 1, v{vlane}
                v_cndmask_b32 v20, v{vlane}, v21, vcc
                v_lshlrev_b32 v20, 7, v20
                v_add_u32 v21, 8192, v20
                v_add_u32 v22, 16384, v20
                v_add_u32 v23, 24576, v20
                s_mov_b32 s38, 0
                {R}_pall:
                buffer_load_dword v24, v20, s[{sF}:{sF+3}], 0 offen sc1
                buffer_load_dword v25, v21, s[{sF}:{sF+3}], 0 offen sc1
                buffer_load_dword v26, v22, s[{sF}:{sF+3}], 0 offen sc1
                buffer_load_dword v27, v23, s[{sF}:{sF+3}], 0 offen sc1
                s_waitcnt vmcnt(0)
                v_cmp_ne_u32 vcc, s34, v24
                v_cmp_ne_u32 s[36:37], s34, v25
                s_or_b64 vcc, vcc, s[36:37]
                v_cmp_ne_u32 s[36:37], s34, v26
                s_or_b64 vcc, vcc, s[36:37]
                v_cmp_ne_u32 s[36:37], s34, v27
                s_or_b64 vcc, vcc, s[36:37]
                s_cbranch_vccz {R}_pallok
                s_add_u32 s38, s38, 1
                s_cmp_ge_u32 s38, 100000
                s_cbranch_scc1 {R}_pallok
                s_sleep 1
                s_branch {R}_pall
                {R}_pallok:
                v_mov_b32 v20, 0
                v_mov_b32 v21, s34
                s_mov_b32 s35, {512*128}
                v_cmp_eq_u32 vcc, 0, v{vlane}
                s_and_saveexec_b64 s[42:43], vcc
                buffer_store_dword v21, v20, s[{sF}:{sF+3}], s35 offen sc1
                s_mov_b64 exec, s[42:43]
                s_branch {L}_end
                ''')
                return
            a('s_barrier')
            if st == 3 and role == 'F':
                a(f'''
                s_waitcnt lgkmcnt(0)
                s_add_u32 s34, s{s_ep}, {EPOCH_INC}
                v_mov_b32 v8, 0
                v_mov_b32 v9, s34
                s_lshl_b32 s35, s{s_mt}, 4
                s_add_u32 s35, s35, s{s_nt}
                s_lshl_b32 s35, s35, 7
                v_cmp_eq_u32 vcc, 0, v{vlane}
                s_and_saveexec_b64 s[42:43], vcc
                buffer_store_dword v9, v8, s[{sF}:{sF+3}], s35 offen sc1
                s_mov_b64 exec, s[42:43]
                ''')
                vm.issue('flag')
            if st == 0: dma_stage(2); dma_stage(3)
            elif st + 3 < NST: dma_stage(st + 3)
            if st == 6 and role == 'A0':
                a(f'buffer_load_dword v13, v30, s[{sF}:{sF+3}], 0 offen sc1'); vm.issue('flag')
            if st == 8 and role == 'A0':
                vm.wait('flag')
                a(f'''
                s_waitcnt lgkmcnt(0)
                s_add_u32 s34, s{s_ep}, {EPOCH_INC}
                s_mov_b32 s38, 0
                {R}_poll:
                v_cmp_ne_u32 vcc, s34, v13
                s_cbranch_vccz {R}_pollok
                s_add_u32 s38, s38, 1
                s_cmp_ge_u32 s38, 100000
                s_cbranch_scc1 {R}_pollok
                s_sleep 1
                buffer_load_dword v13, v30, s[{sF}:{sF+3}], 0 offen sc1
                s_waitcnt vmcnt(0)
                s_branch {R}_poll
                {R}_pollok:
                ''')
                vm.q = []
                for k in range(10):
                    a(f's_mov_b32 s35, {k*2048*8}')
                    a(f'buffer_load_dwordx4 {vr(64+4*k,4)}, v31, s[{sP}:{sP+3}], s35 offen sc1')
                    a(f's_mov_b32 s36, {k*2048*4}')
                    a(f'buffer_load_dwordx2 {vr(104+2*k,2)}, v32, s[{sP}:{sP+3}], s36 offen sc1')
        if role == 'A1':
            sG = 44; vcol = 61
            srd(a, sS, 10, 11, WS_RS1, WS_END - WS_RS1)
            a(f'''
            s_barrier
            s_mov_b32 s40, 0xffff0000
            s_load_dwordx4 s[36:39], s[0:1], 32
            s_mov_b32 s34, s2                      ; j 0..239
            s_mul_i32 s35, s34, 1366
            s_lshr_b32 s35, s35, 16                ; part = j / 48
            s_mul_i32 s33, s35, 48
            s_sub_u32 s33, s34, s33                ; slab = j % 48
            s_cmp_ge_u32 s33, 24
            s_cselect_b32 s41, 24, 0
            s_sub_u32 s41, s33, s41
            s_lshl_b32 s41, s41, 7
            v_and_b32 v8, 7, v{vlane}
            v_lshrrev_b32 v9, 3, v{vlane}
            s_lshl_b32 s42, s35, 7
            v_add_u32 v9, s42, v9
            v_mul_u32_u24 v9, 3072, v9
            v_lshl_add_u32 v9, v8, 4, v9
            v_add_u32 v{vcol}, s41, v9
            s_mul_i32 s57, s35, {3072*4}
            s_lshl_b32 s41, s33, 8
            s_add_u32 s57, s57, s41
            s_add_u32 s57, s57, {16384+8192}
            s_waitcnt lgkmcnt(0)
            s_cmp_ge_u32 s33, 24
            s_cselect_b32 s36, s38, s36
            s_cselect_b32 s37, s39, s37
            ''')
            srd(a, sG, 36, 37, 0, D*F*2)
            for i in range(16):
                a(f's_mov_b32 s34, {i*8*3072}')
                a(f'buffer_load_dwordx4 {vr(64+4*i,4)}, v{vcol}, s[{sG}:{sG+3}], s34 offen')
            for j in range(8): a(f'v_mov_b32 v{24+j}, 0')
            for i in range(16):
                a(f's_waitcnt vmcnt({15-i})')
                for j in range(4):
                    d = 64 + 4*i + j
                    a(f'v_lshlrev_b32 v10, 16, v{d}')
                    a(f'v_and_b32 v11, s40, v{d}')
                    pk(a, 'v_pk_add_f32', 24+2*j, vr(24+2*j,2), vr(10,2))
            for j in range(8):
                a(f'v_add_f32_dpp v{24+j}, v{24+j}, v{24+j} row_ror:8 row_mask:0xf bank_mask:0xf')
            for j in range(8): a(f'v_mov_b32 v{40+j}, v{24+j}')
            for j in range(8): a(f'v_permlane16_swap_b32 v{40+j}, v{24+j}')
            for j in range(8): a(f'v_add_f32 v{24+j}, v{24+j}, v{40+j}')
            for j in range(8): a(f'v_mov_b32 v{40+j}, v{24+j}')
            for j in range(8): a(f'v_permlane32_swap_b32 v{40+j}, v{24+j}')
            for j in range(8): a(f'v_add_f32 v{24+j}, v{24+j}, v{40+j}')
            a(f'''
            v_cmp_gt_u32 vcc, 8, v{vlane}
            s_and_saveexec_b64 s[42:43], vcc
            v_lshlrev_b32 v10, 5, v{vlane}
            buffer_store_dwordx4 {vr(24,4)}, v10, s[{sS}:{sS+3}], s57 offen
            buffer_store_dwordx4 {vr(28,4)}, v10, s[{sS}:{sS+3}], s57 offen offset:16
            ''')
        a(f's_branch {L}_end')
    a(f'''
    s_cmp_eq_u32 s{s_w}, 1
    s_cbranch_scc1 {L}_roleA1
    s_cmp_eq_u32 s{s_w}, 2
    s_cbranch_scc1 {L}_roleF
    s_cmp_eq_u32 s{s_w}, 3
    s_cbranch_scc1 {L}_roleN
    ''')
    loader('A0')
    a.label(f'{L}_roleA1'); loader('A1')
    a.label(f'{L}_roleF'); loader('F')
    a.label(f'{L}_roleN'); loader('N')
    a.label(f'{L}_comp')
    if 'nocpf' not in exp:
        a(f'''
        s_getpc_b64 s[48:49]
        {L}_pc:
        s_sub_u32 s48, s48, {L}_pc-{L}
        s_subb_u32 s49, s49, 0
        v_lshlrev_b32 v2, 7, v{vlane}
        s_mul_i32 s34, s{s_w}, {3*8192}
        v_add_u32 v2, s34, v2
        ''')
        for i in range(3):
            a(f'v_add_u32 v3, {i*8192}, v2')
            a(f'v_min_u32 v3, text_end-{L}-4, v3')
            a(f'global_load_dword v{200+i}, v3, s[48:49]')
    a(f'''
    s_lshr_b32 s{s_wm}, s{s_w}, 1
    s_and_b32 s{s_wn}, s{s_w}, 1
    v_and_b32 v2, 31, v{vlane}       ; r
    v_lshrrev_b32 v3, 5, v{vlane}    ; hh
    s_lshl_b32 s36, s{s_wm}, 6       ; m base
    s_lshl_b32 s38, s{s_wn}, 6       ; n base
    v_add_u32 v4, s36, v2
    v_lshlrev_b32 v8, 2, v4
    v_add_u32 v{EL}, {STAT}, v8
    s_lshl_b32 s34, s{s_mt}, 7
    v_add_u32 v9, s34, v4
    v_lshlrev_b32 v{EL+4}, 3, v9
    s_lshl_b32 s34, s{s_ks}, 14
    v_add_u32 v{EL+4}, s34, v{EL+4}
    v_lshlrev_b32 v4, 7, v4
    v_bfe_u32 v5, v2, 1, 3           ; (r>>1)&7
    v_add_u32 v10, s38, v2
    v_lshlrev_b32 v12, 2, v10
    v_add_u32 v{EL+1}, {STAT+1024}, v12
    s_lshl_b32 s34, s{s_nt}, 9
    s_lshl_b32 s35, s{s_ks}, 13
    s_add_u32 s34, s34, s35
    s_add_u32 s34, s34, {10*2048*8}
    v_add_u32 v{EL+5}, s34, v12
    ''')
    aA1 = [132 + t for t in range(4)]
    for t in range(4):
        a(f'''
        v_add_u32 v6, {2*t}, v3
        v_xor_b32 v6, v6, v5
        v_lshl_add_u32 v{aA1[t]}, v6, 4, v4
        ''')
    a(f'''
    v_bfe_u32 v13, v{vlane}, 2, 2    ; rr
    v_and_b32 v4, 3, v{vlane}        ; cq
    v_bfe_u32 v5, v{vlane}, 4, 1     ; nhalf
    v_lshl_add_u32 v6, v3, 3, v13    ; 8hh+rr
    v_lshlrev_b32 v6, 8, v6
    v_add_u32 v6, 65536, v6
    v_and_b32 v7, 1, v4
    v_lshl_add_u32 v6, v7, 3, v6
    v_lshrrev_b32 v7, 1, v4
    v_lshl_add_u32 v7, v5, 1, v7
    v_lshl_add_u32 v6, v7, 4, v6
    s_lshl_b32 s34, s{s_wn}, 1
    s_add_u32 s35, s34, 1
    v_xor_b32 v7, s34, v13
    v_lshl_add_u32 v{aB[0]}, v7, 6, v6
    v_xor_b32 v7, s35, v13
    v_lshl_add_u32 v{aB[1]}, v7, 6, v6
    s_lshl_b32 s42, s{s_mt}, 2
    s_lshl_b32 s43, s{s_wm}, 1
    s_add_u32 s42, s42, s43
    s_mul_i32 s{s_t0}, s42, 1280
    s_add_u32 s{s_t1}, s{s_t0}, 1280
    s_mov_b32 s47, 81920
    s_mov_b32 s40, 0xffff0000
    s_cmp_lt_u32 s{s_nt}, 5
    s_cselect_b32 s{s_scale}, {fbits(QSCALE)}, 1.0
    s_mov_b32 s{s_it}, 0
    s_waitcnt lgkmcnt(0)
    ''')
    srd(a, sO, 10, 11, WS_Q, 3*32*81920)
    srd(a, sP, 10, 11, WS_RP, 10*2048*12)
    if 'notlb' not in exp:
        a(f'''
        v_lshlrev_b32 v204, 17, v{vlane}
        buffer_load_dword v205, v204, s[{sO}:{sO+3}], 0 offen
        ''')
    for r in range(64): a(f'v_mov_b32 v{68+r}, 0')
    SX = [TB, TB+4]; SQ = [TB+2, TB+6]; SW = [TB+8, TB+10]; TT = TB + 12
    for r in range(12): a(f'v_mov_b32 v{TB+r}, 0')
    a(f'''
    s_cmp_ge_u32 s{s_nt}, 10
    s_cbranch_scc1 {L}_v
    ''')
    def rd(t, b):
        o = []
        for i in range(2):
            o.append(f'ds_read_b128 {vr(XF(b,i),4)}, v{aA1[t]} offset:{i*4096}')
            for e in range(2):
                o.append(f'ds_read_b64_tr_b16 {vr(WF(b,i)+2*e,2)}, v{aB[i]} offset:{t*4096 + e*1024}')
        return o
    def stat_ops(b):
        o = []
        n = 0
        for i in range(2):
            for r in range(4):
                t0 = TT + 2*(n % 4); n += 1
                d = XF(b, i) + r
                o += [f'v_lshlrev_b32 v{t0}, 16, v{d}', f'v_and_b32 v{t0+1}, s40, v{d}',
                      f'v_pk_add_f32 {vr(SX[i],2)}, {vr(SX[i],2)}, {vr(t0,2)}',
                      f'v_pk_fma_f32 {vr(SQ[i],2)}, {vr(t0,2)}, {vr(t0,2)}, {vr(SQ[i],2)}']
            for r in range(4):
                t0 = TT + 2*(n % 4); n += 1
                d = WF(b, i) + r
                o += [f'v_lshlrev_b32 v{t0}, 16, v{d}', f'v_and_b32 v{t0+1}, s40, v{d}',
                      f'v_pk_add_f32 {vr(SW[i],2)}, {vr(SW[i],2)}, {vr(t0,2)}']
        return o
    def stage(V, gx, with_stats=False, vmw=False, stampi=None):
        for t in range(4):
            b = t & 1
            def MF(p, q):
                if V == 'qk': return f'v_mfma_f32_32x32x16_bf16 {vr(ACC(p,q),16)}, {vr(WF(b,p),4)}, {vr(XF(b,q),4)}, {vr(ACC(p,q),16)}'
                return f'v_mfma_f32_32x32x16_bf16 {vr(ACC(q,p),16)}, {vr(XF(b,q),4)}, {vr(WF(b,p),4)}, {vr(ACC(q,p),16)}'
            so = stat_ops(b) if with_stats else []
            q4 = len(so) // 4
            if t == 3:
                a('s_waitcnt lgkmcnt(0)' if not vmw else 's_waitcnt vmcnt(0) lgkmcnt(0)')
                a('s_barrier')
                if stampi is not None: P.stamp(stampi)
                a(MF(0, 0))
                for tt in range(4): a(f'v_xor_b32 v{aA1[tt]}, {gx}, v{aA1[tt]}')
                for j in range(2): a(f'v_xor_b32 v{aB[j]}, {gx}, v{aB[j]}')
                R = rd(0, b ^ 1)
                for o in R[:3]: a(o)
                for o in so[:q4]: a(o)
                a(MF(0, 1))
                for o in R[3:]: a(o)
                for o in so[q4:2*q4]: a(o)
                a(MF(1, 0))
                for o in so[2*q4:3*q4]: a(o)
                a(MF(1, 1))
                for o in so[3*q4:]: a(o)
            else:
                R = rd(t + 1, b ^ 1)
                if with_stats:
                    a('s_waitcnt lgkmcnt(0)')
                    a(MF(0, 0))
                    for o in R[:3]: a(o)
                    for o in so[:q4]: a(o)
                    a(MF(0, 1))
                    for o in R[3:]: a(o)
                    for o in so[q4:2*q4]: a(o)
                    a(MF(1, 0))
                    for o in so[2*q4:3*q4]: a(o)
                    a(MF(1, 1))
                    for o in so[3*q4:]: a(o)
                else:
                    a('s_waitcnt lgkmcnt(3)')
                    a(MF(0, 0))
                    for o in R[:3]: a(o)
                    a('s_waitcnt lgkmcnt(5)')
                    a(MF(0, 1))
                    for o in R[3:]: a(o)
                    a('s_waitcnt lgkmcnt(6)')
                    a(MF(1, 0)); a(MF(1, 1))
    def stat_store():
        for i in range(2):
            a(f'v_add_f32 v{SX[i]}, v{SX[i]}, v{SX[i]+1}')
            a(f'v_add_f32 v{SX[i]+1}, v{SQ[i]}, v{SQ[i]+1}')
            a(f'v_add_f32 v{SW[i]}, v{SW[i]}, v{SW[i]+1}')
        regs = [SX[0], SX[0]+1, SX[1], SX[1]+1, SW[0], SW[1]]
        for n, r in enumerate(regs): a(f'v_mov_b32 v{TT+n}, v{r}')
        for n, r in enumerate(regs): a(f'v_permlane32_swap_b32 v{TT+n}, v{r}')
        for n, r in enumerate(regs): a(f'v_add_f32 v{r}, v{r}, v{TT+n}')
        a(f'''
        v_cmp_gt_u32 vcc, 32, v{vlane}
        s_and_saveexec_b64 s[42:43], vcc
        buffer_store_dwordx2 {vr(SX[0],2)}, v{EL+4}, s[{sP}:{sP+3}], 0 offen sc1
        buffer_store_dwordx2 {vr(SX[1],2)}, v{EL+4}, s[{sP}:{sP+3}], 0 offen offset:256 sc1
        buffer_store_dword v{SW[0]}, v{EL+5}, s[{sP}:{sP+3}], 0 offen sc1
        buffer_store_dword v{SW[1]}, v{EL+5}, s[{sP}:{sP+3}], 0 offen offset:128 sc1
        s_mov_b64 exec, s[42:43]
        ''')
    fine = RT.get('fine')
    def mainloop(V):
        P.stamp(3)
        a('s_barrier')
        P.stamp(4)
        for o in rd(0, 0): a(o)
        stage(V, 0x4000, with_stats=True, stampi=8 if fine else None)
        stat_store()
        stage(V, 0x8000, stampi=9 if fine else None)
        stage(V, 0x4000, vmw=True, stampi=10 if fine else None)
        a.label(f'{L}_{V}_loop')
        stage(V, 0x8000)
        stage(V, 0x4000)
        a(f'''
        s_add_u32 s{s_it}, s{s_it}, 1
        s_cmp_lt_u32 s{s_it}, 3
        s_cbranch_scc1 {L}_{V}_loop
        ''')
        if fine: P.stamp(11)
        stage(V, 0x8000, stampi=12 if fine else None)
        P.stamp(5)
    a(f'''
    v_lshlrev_b32 v6, 4, v3           ; 4hh*4
    s_lshl_b32 s34, s38, 2
    v_add_u32 v7, s34, v6
    v_add_u32 v{EL+2}, {STAT+1024}, v7
    s_cmp_ge_u32 s{s_nt}, 5
    s_cselect_b32 s40, 1, 0
    s_mul_i32 s41, s40, 5
    s_sub_u32 s41, s{s_nt}, s41      ; nt5
    s_mul_i32 s40, s40, {32*81920}
    s_add_u32 s{s_t0}, s{s_t0}, s40
    s_add_u32 s{s_t1}, s{s_t1}, s40
    s_lshl_b32 s44, s41, 5
    s_lshr_b32 s45, s38, 2
    s_add_u32 s45, s45, s44
    s_add_u32 s46, s45, 8
    v_lshlrev_b32 v9, 4, v2          ; r*16
    v_lshlrev_b32 v10, 3, v2         ; r*8
    v_add_u32 v10, 1024, v10
    s_mov_b32 s40, 0xffff0000
    ''')
    for p in range(2):
        for a4 in range(4):
            a(f'''
            v_add_u32 v11, s{45+p}, v3
            v_add_u32 v11, {2*a4}, v11           ; qd
            v_mul_u32_u24 v12, 205, v11
            v_lshrrev_b32 v12, 10, v12           ; head
            v_mul_u32_u24 v13, 5, v12
            v_sub_u32 v13, v11, v13              ; dq
            v_lshrrev_b32 v14, 1, v13
            v_lshl_add_u32 v14, v14, 9, v9       ; (dq>>1)*512 + r*16
            v_and_b32 v15, 1, v13
            v_lshl_add_u32 v14, v15, 3, v14
            v_cmp_eq_u32 vcc, 4, v13
            v_cndmask_b32 v14, v14, v10, vcc
            v_mul_lo_u32 v12, v12, s47
            v_add_u32 v{EA+p*4+a4}, v14, v12
            ''')
    mainloop('qk')
    RS = [36, 38]; MR = [40, 42]
    CSB = TB
    a(f'''
    s_waitcnt lgkmcnt(0)
    ds_read_b32 v{RS[0]}, v{EL}
    ds_read_b32 v{MR[0]}, v{EL} offset:512
    ds_read_b32 v{RS[1]}, v{EL} offset:128
    ds_read_b32 v{MR[1]}, v{EL} offset:640
    ''')
    for p in range(2):
        for a4 in range(4):
            a(f'ds_read_b128 {vr(CSB+(p*4+a4)*4,4)}, v{EL+2} offset:{p*128 + a4*32}')
    a('s_waitcnt lgkmcnt(8)')
    for q in range(2):
        a(f'v_mul_f32 v{RS[q]}, s{s_scale}, v{RS[q]}')
        a(f'v_mul_f32 v{MR[q]}, s{s_scale}, v{MR[q]}')
    a('s_waitcnt lgkmcnt(0)')
    for p in range(2):
        for a4 in range(4):
            for q in range(2):
                A0 = ACC(p, q) + a4*4
                C0 = CSB + (p*4+a4)*4
                for h2 in range(2):
                    pk(a, 'v_pk_mul_f32', A0+2*h2, vr(A0+2*h2,2), vr(RS[q],2), mods='op_sel_hi:[1,0]')
                    pk(a, 'v_pk_fma_f32', A0+2*h2, vr(MR[q],2), vr(C0+2*h2,2), vr(A0+2*h2,2), mods='op_sel_hi:[0,1,1] neg_lo:[1,0,0] neg_hi:[1,0,0]')
                a(f'v_cvt_pk_bf16_f32 v{A0}, v{A0}, v{A0+1}')
                a(f'v_cvt_pk_bf16_f32 v{A0+1}, v{A0+2}, v{A0+3}')
                a(f'buffer_store_dwordx2 {vr(A0,2)}, v{EA+p*4+a4}, s[{sO}:{sO+3}], s{[s_t0,s_t1][q]} offen')
    a(f's_branch {L}_fin')
    a.label(f'{L}_v')
    a(f'''
    s_lshl_b32 s36, s36, 2
    v_lshlrev_b32 v8, 4, v3
    v_add_u32 v9, s36, v8
    v_add_u32 v{EL+2}, {STAT}, v9
    s_sub_u32 s41, s{s_nt}, 10
    s_lshl_b32 s41, s41, 7
    s_add_u32 s{s_t0}, s{s_t0}, {2*32*81920}
    s_add_u32 s{s_t1}, s{s_t1}, {2*32*81920}
    v_mul_u32_u24 v8, 320, v3       ; hh*320
    ''')
    for q in range(2):
        a(f'''
        v_add_u32 v12, s41, v10
        v_add_u32 v12, {32*q}, v12
        v_mul_u32_u24 v13, 3277, v12
        v_lshrrev_b32 v13, 16, v13          ; head
        v_mul_u32_u24 v14, 20, v13
        v_sub_u32 v14, v12, v14             ; d
        v_mul_lo_u32 v13, v13, s47
        v_lshl_add_u32 v14, v14, 4, v8
        v_add_u32 v{EA+q}, v14, v13
        ''')
    mainloop('v')
    RSB = TB; MRB = TB + 32
    CSV = [36, 38]
    a(f'''
    s_waitcnt lgkmcnt(0)
    ds_read_b32 v{CSV[0]}, v{EL+1}
    ds_read_b32 v{CSV[1]}, v{EL+1} offset:128
    ''')
    for p in range(2):
        for a4 in range(4):
            a(f'ds_read_b128 {vr(RSB+(p*4+a4)*4,4)}, v{EL+2} offset:{p*128 + a4*32}')
            a(f'ds_read_b128 {vr(MRB+(p*4+a4)*4,4)}, v{EL+2} offset:{512 + p*128 + a4*32}')
    a('s_waitcnt lgkmcnt(0)')
    for p in range(2):
        for q in range(2):
            for mf in range(2):
                A0 = ACC(p, q) + mf*8
                for h2 in range(4):
                    a4 = mf*2 + h2//2
                    o = (p*4+a4)*4 + (h2 & 1)*2
                    r = A0 + h2*2
                    pk(a, 'v_pk_mul_f32', r, vr(r,2), vr(RSB+o,2))
                    pk(a, 'v_pk_fma_f32', r, vr(MRB+o,2), vr(CSV[q],2), vr(r,2), mods='op_sel_hi:[1,0,1] neg_lo:[1,0,0] neg_hi:[1,0,0]')
                for k in range(4):
                    a(f'v_cvt_pk_bf16_f32 v{A0+k}, v{A0+2*k}, v{A0+2*k+1}')
                a(f'buffer_store_dwordx4 {vr(A0,4)}, v{EA+q}, s[{sO}:{sO+3}], s{[s_t0,s_t1][p]} offen offset:{mf*640}')
    a.label(f'{L}_fin')
    P.finish()
    a.label(f'{L}_end')
    rt_end(a, prof)
    a('s_endpgm')
    a.fix_hazards()
    for V in ('qk', 'v'):
        bad = a.check_loop(f'{L}_{V}_loop', f's_cbranch_scc1 {L}_{V}_loop')
        assert not bad, bad
    return kernel_wrap(name, a.text(), vgpr=224, sgpr=100), 131072 + 2048
```
